```python
import torch

def _softmax(x, axis=-1):
    return torch.softmax(x, dim=axis)
def _gelu(x):
    return torch.nn.functional.gelu(x, approximate="tanh")
def _silu(x):
    return torch.nn.functional.silu(x)
def _sigmoid(x):
    return torch.sigmoid(x)
def _layernorm(x, axis=-1, eps=1e-5):
    m = x.mean(dim=axis, keepdim=True)
    v = x.var(dim=axis, keepdim=True, unbiased=False)
    return (x - m) / torch.sqrt(v + eps)
def _scatter_add(tgt, idx, src, axis=0):
    return tgt.clone().index_add_(axis, idx, src)
def _segment_sum(src, seg, n):
    out = torch.zeros((n,) + src.shape[1:], dtype=src.dtype)
    return out.index_add_(0, seg, src)
def _pad(x, pw):
    flat = tuple(v for pair in reversed(pw) for v in pair)
    return torch.nn.functional.pad(x, flat)

kernel_name = 'parallel_sum__gqa_block_cached__glu_gated_geglu__decode'

def setup_inputs():

    _w = (lambda a: (lambda t: t.to(torch.bfloat16) if t.is_floating_point() else t)(torch.as_tensor(a)))
    def _A_setup():
        B, Sq, D = 8, 1, 1024
        Hq, Hkv, Sk, Dh = 32, 4, 8192, 128
        assert Hq % Hkv == 0, (Hq, Hkv)
        return {
            "x": _w((lambda *s: torch.randn(*s, dtype=torch.bfloat16) * 0.05)(B, Sq, D)),
            "k_cache": _w((lambda *s: torch.randn(*s, dtype=torch.bfloat16) * 1.6)(B, Hkv, Sk, Dh)),
            "v_cache": _w((lambda *s: torch.randn(*s, dtype=torch.bfloat16) * 0.8)(B, Hkv, Sk, Dh)),
            "wq": _w((lambda *s: torch.randn(*s, dtype=torch.bfloat16) * 1.6)(D, Hq * Dh) * (D ** -0.5)),
            "wo": _w((lambda *s: torch.randn(*s, dtype=torch.bfloat16) * 0.8)(Hq * Dh, D) * ((Hq * Dh) ** -0.5)),
        }
    _A_in = _A_setup()

    def _B_setup():
        B, S, Dm, Df = 8, 1, 1024, 3584
        return {
            "x": _w((lambda *s: torch.randn(*s, dtype=torch.bfloat16) * 0.05)(B, S, Dm)),
            "w_gate": _w((lambda *s: torch.randn(*s, dtype=torch.bfloat16) * 0.4)(Dm, Df) * (Dm ** -0.5)),
            "w_up": _w((lambda *s: torch.randn(*s, dtype=torch.bfloat16) * 0.4)(Dm, Df) * (Dm ** -0.5)),
            "w_down": _w((lambda *s: torch.randn(*s, dtype=torch.bfloat16) * 0.4)(Df, Dm) * (Df ** -0.5)),
        }
    _B_in = _B_setup()

    return {
        "A_x": _A_in["x"],
        "A_k_cache": _A_in["k_cache"],
        "A_v_cache": _A_in["v_cache"],
        "A_wq": _A_in["wq"],
        "A_wo": _A_in["wo"],
        "B_x": _B_in["x"],
        "B_w_gate": _B_in["w_gate"],
        "B_w_up": _B_in["w_up"],
        "B_w_down": _B_in["w_down"],
    }

def reference(A_x, A_k_cache, A_v_cache, A_wq, A_wo, B_x, B_w_gate, B_w_up, B_w_down):
    def _A_ref(x, k_cache, v_cache, wq, wo):
        B, Sq, D = x.shape
        Hq, Dh = 32, 128
        Hkv = k_cache.shape[1]
        rep = Hq // Hkv
        q = (lambda x, *d: x.permute(*d))((x @ wq).reshape(B, Sq, Hq, Dh), 0, 2, 1, 3)
        k = (lambda x, n, axis: torch.repeat_interleave(x, n, dim=axis))(k_cache, rep, axis=1)
        v = (lambda x, n, axis: torch.repeat_interleave(x, n, dim=axis))(v_cache, rep, axis=1)
        scores = torch.einsum("bhqd,bhkd->bhqk", q, k) * (Dh ** -0.5)
        p = _softmax(scores, axis=-1)
        o = torch.einsum("bhqk,bhkd->bhqd", p, v)
        return (lambda x, *d: x.permute(*d))(o, 0, 2, 1, 3).reshape(B, Sq, Hq * Dh) @ wo

    def _B_ref(x, w_gate, w_up, w_down):
        g = torch.einsum("bsd,df->bsf", x, w_gate)
        u = torch.einsum("bsd,df->bsf", x, w_up)
        h = _gelu(g) * u
        return torch.einsum("bsf,fd->bsd", h, w_down)

    x = A_x
    xn = _layernorm(x, axis=-1)
    return x + _A_ref(xn, A_k_cache, A_v_cache, A_wq, A_wo) + _B_ref(xn, B_w_gate, B_w_up, B_w_down)
```

```python
import re

_REG = re.compile(r"^(v|s|a)(?:(\d+)|\[(\d+):(\d+)\])$")
TRANS = ("v_exp_f32", "v_rcp_f32", "v_sqrt_f32", "v_rsq_f32", "v_log_f32", "v_sin_f32", "v_cos_f32")


def regs_of(tok):
    t = tok.strip()
    t = t.lstrip("-")
    if t.startswith("|") and t.endswith("|"):
        t = t[1:-1]
    m = re.match(r"^abs\((.*)\)$", t)
    if m:
        t = m.group(1)
    if t == "vcc":
        return {("s", 106), ("s", 107)}
    if t == "vcc_lo":
        return {("s", 106)}
    if t == "vcc_hi":
        return {("s", 107)}
    if t == "exec":
        return {("s", 126), ("s", 127)}
    if t == "exec_lo":
        return {("s", 126)}
    if t == "exec_hi":
        return {("s", 127)}
    if t == "m0":
        return {("s", 124)}
    m = _REG.match(t)
    if not m:
        return set()
    f = m.group(1)
    if m.group(2) is not None:
        return {(f, int(m.group(2)))}
    return {(f, k) for k in range(int(m.group(3)), int(m.group(4)) + 1)}


def split_ops(s):
    out, depth, cur = [], 0, ""
    for ch in s:
        if ch in "[(":
            depth += 1
        if ch in "])":
            depth -= 1
        if ch == "," and depth == 0:
            out.append(cur.strip())
            cur = ""
        else:
            cur += ch
    if cur.strip():
        out.append(cur.strip())
    return out


class Ins:
    __slots__ = ("text", "mn", "cls", "wr", "rd", "dpp_rd", "mfma_c", "mfma_ab", "passes", "states",
                 "store_data", "trans", "perm_rd", "lane_rd", "is_lds_dma", "mfma_d")


def parse(text):
    ins = Ins()
    ins.text = text
    code = text.split(";")[0].strip()
    parts = code.split(None, 1)
    mn = parts[0]
    rest = parts[1] if len(parts) > 1 else ""
    ins.mn = mn
    ins.wr, ins.rd = set(), set()
    ins.dpp_rd, ins.mfma_c, ins.mfma_ab, ins.mfma_d = set(), set(), set(), set()
    ins.store_data, ins.perm_rd, ins.lane_rd = set(), set(), set()
    ins.passes = 0
    ins.states = 1
    ins.trans = False
    ins.is_lds_dma = False
    ops = split_ops(rest)
    if ops:
        last = ops[-1].split()
        mods = last[1:]
        ops[-1] = last[0] if last else ""
    else:
        mods = []
    if mn == "s_nop":
        ins.cls = "salu"
        ins.states = int(ops[0], 0) + 1
        return ins
    if mn.startswith("v_mfma"):
        ins.cls = "mfma"
        ins.mfma_d = regs_of(ops[0])
        ins.wr = set(ins.mfma_d)
        ins.mfma_ab = regs_of(ops[1]) | regs_of(ops[2])
        ins.mfma_c = regs_of(ops[3])
        ins.rd = ins.mfma_ab | ins.mfma_c
        ins.passes = 8 if "32x32" in mn else 4
        return ins
    if mn.startswith("v_"):
        ins.cls = "valu"
        base = mn.replace("_dpp", "").replace("_e32", "").replace("_e64", "")
        ins.trans = base in TRANS
        if base.startswith("v_cmp"):
            ins.wr = regs_of(ops[0])
            if base.startswith("v_cmpx"):
                ins.wr |= regs_of("exec")
            for o in ops[1:]:
                ins.rd |= regs_of(o)
        elif base.startswith("v_permlane") and "swap" in base:
            ins.wr = regs_of(ops[0]) | regs_of(ops[1])
            ins.rd = set(ins.wr)
            ins.perm_rd = set(ins.wr)
        elif base in ("v_readlane_b32", "v_readfirstlane_b32"):
            ins.wr = regs_of(ops[0])
            ins.rd = regs_of(ops[1])
            ins.lane_rd = regs_of(ops[1])
            if len(ops) > 2:
                ins.rd |= regs_of(ops[2])
        elif base in ("v_add_co_u32", "v_sub_co_u32", "v_addc_co_u32", "v_subb_co_u32"):
            ins.wr = regs_of(ops[0]) | regs_of(ops[1])
            for o in ops[2:]:
                ins.rd |= regs_of(o)
        else:
            ins.wr = regs_of(ops[0])
            for o in ops[1:]:
                ins.rd |= regs_of(o)
            if base in ("v_fmac_f32", "v_dot2c_f32_bf16") or "_dpp" in mn:
                ins.rd |= regs_of(ops[0])
        if "_dpp" in mn:
            ins.dpp_rd = regs_of(ops[1])
        return ins
    if mn.startswith("buffer_") or mn.startswith("global_"):
        ins.cls = "vmem"
        if mn in ("buffer_inv", "buffer_wbl2"):
            return ins
        is_lds = "lds" in mods
        if is_lds:
            ins.is_lds_dma = True
            for o in ops:
                ins.rd |= regs_of(o)
            ins.rd |= regs_of("m0")
        elif "_load" in mn:
            ins.wr = regs_of(ops[0])
            for o in ops[1:]:
                ins.rd |= regs_of(o)
        else:
            for o in ops:
                ins.rd |= regs_of(o)
            if mn.startswith("buffer_"):
                data = regs_of(ops[0])
            else:
                data = regs_of(ops[1])
            if "x4" in mn or "x3" in mn:
                ins.store_data = data
            if "atomic" in mn and "sc0" in mods:
                ins.wr = data
        return ins
    if mn.startswith("ds_"):
        ins.cls = "ds"
        if mn.startswith("ds_read") or mn.startswith("ds_bpermute") or mn.startswith("ds_swizzle") or "rtn" in mn:
            ins.wr = regs_of(ops[0])
            for o in ops[1:]:
                ins.rd |= regs_of(o)
        else:
            for o in ops:
                ins.rd |= regs_of(o)
        return ins
    ins.cls = "salu"
    if mn.startswith("s_cmp") or mn.startswith("s_cbranch") or mn.startswith("s_branch") or mn in (
            "s_waitcnt", "s_barrier", "s_endpgm", "s_sleep", "s_setprio"):
        for o in ops:
            ins.rd |= regs_of(o)
    else:
        if ops:
            ins.wr = regs_of(ops[0])
        for o in ops[1:]:
            ins.rd |= regs_of(o)
        if "saveexec" in mn:
            ins.wr |= regs_of("exec")
    return ins


MFMA_TABLE = {
    4: (6, 8, 8, 3),
    8: (10, 12, 12, 7),
}


def needed(prod, cons):
    n = 0
    pv = {r for r in prod.wr if r[0] in "va"}
    ps = {r for r in prod.wr if r[0] == "s"}
    if prod.cls == "valu":
        if cons.cls == "mfma" and pv & cons.rd:
            n = max(n, 2)
        if cons.cls == "valu":
            if pv & cons.dpp_rd:
                n = max(n, 2)
            if pv & cons.perm_rd:
                n = max(n, 2)
            if pv & cons.lane_rd:
                n = max(n, 1)
            if prod.trans and not cons.trans and pv & cons.rd:
                n = max(n, 1)
            if prod.trans and pv & cons.rd:
                n = max(n, 1)
            if ps & cons.rd:
                n = max(n, 4 if cons.lane_rd else 2)
            if cons.mn.startswith("v_cndmask") and ("s", 106) in ps:
                n = max(n, 2)
            if ("s", 126) in ps or ("s", 127) in ps:
                n = max(n, 5)
        if cons.cls == "mfma" and (("s", 126) in ps):
            n = max(n, 4)
        if cons.cls == "vmem" and ps & cons.rd:
            n = max(n, 5)
        if cons.cls == "salu" and ps & cons.rd:
            n = max(n, 1)
        if cons.cls == "salu" and cons.mn.startswith("s_cbranch_vcc") and ("s", 106) in ps:
            n = max(n, 1)
    if prod.cls == "mfma":
        cov, ab, rw, war = MFMA_TABLE[prod.passes]
        if cons.cls == "mfma":
            if prod.mfma_d & cons.mfma_ab:
                n = max(n, ab)
            if prod.mfma_d & cons.mfma_c and not (prod.mfma_d == cons.mfma_c and prod.passes == cons.passes):
                n = max(n, cov)
            if prod.mfma_d & cons.mfma_d and not (prod.mfma_d == cons.mfma_c):
                n = max(n, cov)
        else:
            if prod.mfma_d & (cons.rd | cons.wr):
                n = max(n, rw)
            if cons.cls == "valu" and prod.mfma_c & cons.wr:
                n = max(n, war)
    if prod.cls == "vmem" and prod.store_data:
        if prod.store_data & cons.wr:
            n = max(n, 2)
    if prod.cls == "salu":
        if ("s", 124) in ps and cons.is_lds_dma:
            n = max(n, 1)
    return n


class Asm:
    def __init__(self):
        self.lines = []
        self.hist = []
        self.nlabel = 0

    def raw(self, s):
        self.lines.append(s)

    def c(self, s):
        self.lines.append("    ; " + s)

    def _pad(self, k):
        while k > 0:
            n = min(k, 16)
            t = "s_nop %d" % (n - 1)
            self.lines.append("    " + t)
            self.hist.append(parse(t))
            k -= n

    def i(self, text):
        ins = parse(text)
        dist = 0
        need = 0
        for p in reversed(self.hist[-24:]):
            nn = needed(p, ins)
            if nn - dist > need:
                need = nn - dist
            dist += p.states
            if dist >= 20:
                break
        if need > 0:
            self._pad(need)
        self.lines.append("    " + text)
        self.hist.append(ins)
        if len(self.hist) > 64:
            self.hist = self.hist[-32:]

    def drain(self):
        dist = 0
        need = 0
        for p in reversed(self.hist[-24:]):
            worst = 0
            if p.cls == "mfma":
                worst = MFMA_TABLE[p.passes][1]
            elif p.cls == "valu":
                worst = 5 if any(r[0] == "s" for r in p.wr) else 2
            elif p.cls == "vmem" and p.store_data:
                worst = 2
            elif p.cls == "salu" and ("s", 124) in p.wr:
                worst = 1
            if worst - dist - 1 > need:
                need = worst - dist - 1
            dist += p.states
            if dist >= 20:
                break
        if need > 0:
            self._pad(need)

    def br(self, text):
        self.drain()
        self.i(text)

    def label(self, name):
        self.lines.append(name + ":")

    def newlabel(self, stem="L"):
        self.nlabel += 1
        return "%s_%d" % (stem, self.nlabel)

    def text(self):
        return "\n".join(self.lines) + "\n"


def v(n, cnt=1):
    return "v%d" % n if cnt == 1 else "v[%d:%d]" % (n, n + cnt - 1)


def s(n, cnt=1):
    return "s%d" % n if cnt == 1 else "s[%d:%d]" % (n, n + cnt - 1)
```

```python
import sys
from asmlib import Asm, v, s

NAME = "parallel_sum__gqa_block_cached__glu_gated_geglu__decode_kernel"

QP = 0x000000
GP = 0x080000
UP = 0x100000
OB1 = 0x200000
ST = 0x300000
OB2 = 0x400000
STAMP = 0x800000
WS_SIZE = 0x1000000

DUMP = 0
QL = 512
HL = 2688
OL = 3712
SM = 4736
SL = 5248
FL = 5760
CNT = 6016
XN = 6144
R1 = 22656
ORED = 6144
TW = 75776
LDS_SIZE = TW + 65536

sW, sWV = 2, 3
sX, sK, sV, sW1, sWT, sWS, sOUT, sDBG = 40, 44, 48, 52, 56, 60, 64, 68
sSELLO, sSELHI = 72, 73
sT = 74
sCH, sB, sKVH, sS, sCB, sKS = 78, 79, 80, 81, 82, 83
sW1OFF, sPITCH, sSPIN, sLOG2E = 84, 85, 86, 87
sMEV, sMOD, sMLO, sMHI = 88, 90, 92, 94
sK0, sCG, sSG = 96, 97, 98
sSCALE = 99
sTMP = 4

vLANE, vOFFK, vOFFV = 0, 1, 2
KV = 64
vSTAMP = 11


def gen(cfg):
    a = Asm()
    NT = " nt" if cfg.get("nt", 1) else ""
    NTW = " nt" if cfg.get("ntw", 1) else ""
    diag = cfg.get("diag", 0)
    SPIN_G = cfg.get("spin_g", 1 << 17)
    SPIN_L = cfg.get("spin_l", 1 << 22)

    def stamp(idx):
        if not diag:
            return
        a.i("s_memrealtime s[14:15]")
        a.i("s_waitcnt lgkmcnt(0)")
        a.i("v_writelane_b32 v%d, s14, %d" % (vSTAMP, idx))

    def srd(d, p, size, off_lo=None, off_hi=None):
        if off_lo is None:
            a.i("s_mov_b32 s%d, s%d" % (d, p))
            a.i("s_and_b32 s%d, s%d, 0xffff" % (d + 1, p + 1))
        else:
            a.i("s_add_u32 s%d, s%d, s%d" % (d, p, off_lo))
            a.i("s_addc_u32 s%d, s%d, 0" % (d + 1, p + 1))
            a.i("s_and_b32 s%d, s%d, 0xffff" % (d + 1, d + 1))
        if size is not None:
            a.i("s_mov_b32 s%d, 0x%x" % (d + 2, size))
        a.i("s_mov_b32 s%d, 0x00020000" % (d + 3))

    def bf16_round_pair(dst, x0, x1):
        a.i("v_cvt_pk_bf16_f32 v%d, v%d, v%d" % (dst, x0, x1))

    def unpack_lo(dst, src):
        a.i("v_lshlrev_b32 v%d, 16, v%d" % (dst, src))

    def unpack_hi(dst, src):
        a.i("v_and_b32 v%d, 0xffff0000, v%d" % (dst, src))

    def allreduce_rows(op, x, tmp, do16=True, do32=True):
        if do16:
            a.i("v_mov_b32 v%d, v%d" % (tmp, x))
            a.i("v_permlane16_swap_b32 v%d, v%d" % (x, tmp))
            a.i("%s v%d, v%d, v%d" % (op, x, x, tmp))
        if do32:
            a.i("v_mov_b32 v%d, v%d" % (tmp, x))
            a.i("v_permlane32_swap_b32 v%d, v%d" % (x, tmp))
            a.i("%s v%d, v%d, v%d" % (op, x, x, tmp))

    def dpp_reduce16(op, x, n=4):
        pats = ["quad_perm:[1,0,3,2]", "quad_perm:[2,3,0,1]", "row_half_mirror", "row_mirror"]
        for p in pats[:n]:
            a.i("%s_dpp v%d, v%d, v%d %s row_mask:0xf bank_mask:0xf" % (op, x, x, x, p))

    hdr = open("parallel_sum__gqa_block_cached__glu_gated_geglu__decode.s.ref").read().split("\n")
    for l in hdr:
        if l.startswith("; @launch"):
            break
        a.raw(l)
    a.raw("; @launch grid=(256,1,1) block=(1024,1,1) lds=%d" % LDS_SIZE)
    a.raw('.amdgcn_target "amdgcn-amd-amdhsa--gfx950"')
    a.raw(".text")
    a.raw(".globl " + NAME)
    a.raw(".p2align 8")
    a.raw(".type %s,@function" % NAME)
    a.raw(NAME + ":")

    a.i("s_cmp_ge_u32 s2, 256")
    a.i("s_cbranch_scc1 L_end")
    a.i("s_load_dwordx16 s[16:31], s[0:1], 0")
    a.i("s_load_dwordx8 s[32:39], s[0:1], 64")
    a.i("v_lshrrev_b32 v1, 6, v0")
    a.i("v_readfirstlane_b32 s3, v1")
    a.i("v_and_b32 v0, 63, v0")
    if diag:
        a.i("v_mov_b32 v%d, 0" % vSTAMP)
    a.i("s_and_b32 s4, s2, 31")
    a.i("s_lshr_b32 s%d, s2, 5" % sS)
    a.i("s_lshl_b32 s%d, s4, 3" % sCH)
    a.i("s_add_u32 s%d, s%d, s%d" % (sCH, sCH, sS))
    a.i("s_lshr_b32 s%d, s4, 2" % sB)
    a.i("s_and_b32 s%d, s4, 3" % sKVH)
    a.i("s_lshr_b32 s%d, s2, 6" % sCB)
    a.i("s_and_b32 s%d, s2, 63" % sKS)
    a.i("s_mul_i32 s%d, s2, 1171" % sSG)
    a.i("s_lshr_b32 s%d, s%d, 16" % (sSG, sSG))
    a.i("s_mul_i32 s5, s%d, 56" % sSG)
    a.i("s_sub_u32 s%d, s2, s5" % sCG)
    a.i("s_mov_b32 s%d, 0x05040100" % sSELLO)
    a.i("s_mov_b32 s%d, 0x07060302" % sSELHI)
    a.i("s_mov_b32 s%d, 0x3fb8aa3b" % sLOG2E)
    a.i("s_mov_b32 s%d, 0x3db504f3" % sSCALE)
    for r, m in ((sMEV, 0x55555555), (sMOD, 0xaaaaaaaa), (sMLO, 0x33333333), (sMHI, 0xcccccccc)):
        a.i("s_mov_b32 s%d, 0x%x" % (r, m))
        a.i("s_mov_b32 s%d, 0x%x" % (r + 1, m))
    a.i("v_lshlrev_b32 v%d, 4, v0" % vOFFV)
    a.i("v_bfe_u32 v3, v0, 2, 2")
    a.i("v_lshlrev_b32 v3, 8, v3")
    a.i("v_lshrrev_b32 v4, 4, v0")
    a.i("v_lshl_add_u32 v3, v4, 6, v3")
    a.i("v_and_b32 v4, 3, v0")
    a.i("v_lshl_add_u32 v%d, v4, 4, v3" % vOFFK)
    a.i("v_lshlrev_b32 v10, 9, v0")
    a.i("s_lshl_b32 s6, s%d, 12" % sKVH)
    a.i("s_lshl_b32 s7, s%d, 6" % sB)
    a.i("s_add_u32 s6, s6, s7")
    a.i("s_lshl_b32 s7, s%d, 3" % sS)
    a.i("s_add_u32 s6, s6, s7")
    a.i("s_add_u32 s6, s6, 0x%x" % ST)
    a.i("v_add_u32 v10, s6, v10")
    a.i("v_cmp_gt_u32 vcc, 8, v0")
    a.i("v_mov_b32 v5, 0x7ffffff0")
    a.i("v_cndmask_b32 v10, v5, v10, vcc")
    a.i("s_lshl_b32 s6, s3, 14")
    a.i("s_add_u32 s7, s3, s2")
    for t in range(4):
        a.i("s_add_u32 s8, s7, %d" % t)
        a.i("s_and_b32 s8, s8, 3")
        a.i("s_lshl_b32 s8, s8, 12")
        a.i("s_add_u32 s%d, s6, s8" % (sT + t))
    a.i("s_lshr_b32 s9, s3, 2")
    a.i("s_and_b32 s10, s3, 3")
    a.i("s_movk_i32 s%d, 7168" % sPITCH)
    a.i("s_cmp_eq_u32 s9, 0")
    a.i("s_cselect_b32 s%d, 8192, s%d" % (sPITCH, sPITCH))
    a.i("s_cselect_b32 s11, s%d, s%d" % (sCB, sSG))
    a.i("s_cselect_b32 s12, s%d, s%d" % (sKS, sCG))
    a.i("s_lshl_b32 s%d, s11, 8" % sK0)
    a.i("s_lshl_b32 s13, s10, 6")
    a.i("s_add_u32 s%d, s%d, s13" % (sK0, sK0))
    a.i("s_mul_i32 s%d, s%d, s%d" % (sW1OFF, sK0, sPITCH))
    a.i("s_lshl_b32 s12, s12, 7")
    a.i("s_add_u32 s%d, s%d, s12" % (sW1OFF, sW1OFF))
    a.i("s_lshl_b32 s14, s%d, 18" % sCH)
    a.i("s_waitcnt lgkmcnt(0)")
    srd(sK, 18, 0x40000, off_lo=14)
    srd(sV, 20, 0x40000, off_lo=14)
    a.i("s_cmp_eq_u32 s9, 1")
    a.i("s_cselect_b32 s%d, s28, s30" % sW1)
    a.i("s_cselect_b32 s%d, s29, s31" % (sW1 + 1))
    a.i("s_cmp_lt_u32 s2, 224")
    a.i("s_cselect_b32 s%d, 0x700000, 0" % (sW1 + 2))
    a.i("s_cmp_eq_u32 s9, 0")
    a.i("s_cselect_b32 s%d, s22, s%d" % (sW1, sW1))
    a.i("s_cselect_b32 s%d, s23, s%d" % (sW1 + 1, sW1 + 1))
    a.i("s_cselect_b32 s%d, 0x800000, s%d" % (sW1 + 2, sW1 + 2))
    a.i("s_and_b32 s%d, s%d, 0xffff" % (sW1 + 1, sW1 + 1))
    a.i("s_mov_b32 s%d, 0x00020000" % (sW1 + 3))
    srd(sX, 16, 16384)
    srd(sWS, 38, WS_SIZE)
    srd(sOUT, 34, 16384)
    srd(sDBG, 36, 256)
    a.i("s_mov_b32 s15, 0x700000")
    a.i("s_cmp_ge_u32 s3, 8")
    a.i("s_cselect_b32 s%d, s24, s32" % sWT)
    a.i("s_cselect_b32 s%d, s25, s33" % (sWT + 1))
    a.i("s_cselect_b32 s%d, 0x800000, s15" % (sWT + 2))
    a.i("s_and_b32 s%d, s%d, 0xffff" % (sWT + 1, sWT + 1))
    a.i("s_mov_b32 s%d, 0x00020000" % (sWT + 3))
    stamp(0)

    def k_loads():
        for t in range(4):
            for r in range(4):
                a.i("buffer_load_dwordx4 %s, v%d, %s, s%d offen offset:%d%s" % (
                    v(KV + (t * 4 + r) * 4, 4), vOFFK, s(sK, 4), sT + t, r * 1024, NT))

    a.i("s_cmp_ge_u32 s3, 12")
    a.br("s_cbranch_scc1 L_ln_waves")
    a.i("v_lshrrev_b32 v3, 4, v0")
    a.i("v_lshlrev_b32 v3, 3, v3")
    a.i("v_bfe_u32 v4, v0, 3, 1")
    a.i("v_lshl_add_u32 v3, v4, 5, v3")
    a.i("v_mul_lo_u32 v3, v3, s%d" % sPITCH)
    a.i("v_and_b32 v4, 7, v0")
    a.i("v_lshl_add_u32 v3, v4, 4, v3")
    a.i("s_mov_b32 s4, s%d" % sW1OFF)
    for j in range(8):
        a.i("buffer_load_dwordx4 %s, v3, %s, s4 offen%s" % (v(12 + 4 * j, 4), s(sW1, 4), NTW))
        if j < 7:
            a.i("s_add_u32 s4, s4, s%d" % sPITCH)
    k_loads()
    a.br("s_branch L_bar1")

    a.label("L_ln_waves")
    a.i("v_lshrrev_b32 v3, 5, v0")
    a.i("v_lshlrev_b32 v3, 11, v3")
    a.i("v_and_b32 v4, 31, v0")
    a.i("v_lshl_add_u32 v3, v4, 4, v3")
    a.i("s_sub_u32 s4, s3, 12")
    a.i("s_lshl_b32 s5, s4, 12")
    for u in range(4):
        a.i("buffer_load_dwordx4 %s, v3, %s, s5 offen offset:%d" % (v(12 + 4 * u, 4), s(sX, 4), u * 512))
    a.i("s_cmp_eq_u32 s3, 15")
    a.br("s_cbranch_scc1 L_comm_clear")
    k_loads()
    a.i("s_waitcnt vmcnt(16)")
    a.br("s_branch L_ln")
    a.label("L_comm_clear")
    for k in range(4):
        a.i("v_mov_b32 v%d, -1" % (60 + k))
    a.i("s_lshl_b32 s6, s%d, 12" % sCH)
    a.i("s_add_u32 s6, s6, 0x%x" % OB1)
    for k in range(4):
        a.i("buffer_store_dwordx4 v[60:63], v%d, %s, s6 offen offset:%d sc1" % (vOFFV, s(sWS, 4), k * 1024))
    a.i("s_lshl_b32 s6, s2, 13")
    a.i("s_add_u32 s6, s6, 0x%x" % OB2)
    for k in range(4):
        a.i("buffer_store_dwordx4 v[60:63], v%d, %s, s6 offen offset:%d sc1" % (vOFFV, s(sWS, 4), k * 1024))
    a.i("s_add_u32 s6, s6, 4096")
    for k in range(4):
        a.i("buffer_store_dwordx4 v[60:63], v%d, %s, s6 offen offset:%d sc1" % (vOFFV, s(sWS, 4), k * 1024))
    a.i("buffer_store_dwordx2 v[60:61], v10, %s, 0 offen sc1" % s(sWS, 4))
    a.i("v_mov_b32 v5, %d" % CNT)
    a.i("v_mov_b32 v6, 0")
    a.i("v_mov_b32 v7, 0")
    a.i("ds_write_b64 v5, v[6:7]")
    a.i("s_waitcnt vmcnt(13)")

    a.label("L_ln")
    for k in range(16):
        unpack_lo(28 + 2 * k, 12 + k)
        unpack_hi(29 + 2 * k, 12 + k)
    a.i("v_add_f32 v4, v28, v29")
    a.i("v_add_f32 v5, v30, v31")
    for k in range(4, 32, 2):
        a.i("v_add_f32 v4, v4, v%d" % (28 + k))
        a.i("v_add_f32 v5, v5, v%d" % (29 + k))
    a.i("v_add_f32 v4, v4, v5")
    dpp_reduce16("v_add_f32", 4)
    allreduce_rows("v_add_f32", 4, 5, do32=False)
    a.i("v_mul_f32 v4, 0x3a800000, v4")
    a.i("v_mov_b32 v6, 0")
    a.i("v_mov_b32 v7, 0")
    for k in range(0, 32, 2):
        a.i("v_sub_f32 v8, v%d, v4" % (28 + k))
        a.i("v_sub_f32 v9, v%d, v4" % (29 + k))
        a.i("v_fmac_f32 v6, v8, v8")
        a.i("v_fmac_f32 v7, v9, v9")
    a.i("v_add_f32 v6, v6, v7")
    dpp_reduce16("v_add_f32", 6)
    allreduce_rows("v_add_f32", 6, 7, do32=False)
    a.i("v_mul_f32 v6, 0x3a800000, v6")
    bf16_round_pair(5, 4, 6)
    unpack_lo(4, 5)
    unpack_hi(6, 5)
    a.i("v_add_f32 v6, 0x3727c5ac, v6")
    bf16_round_pair(6, 6, 6)
    unpack_lo(6, 6)
    a.i("v_sqrt_f32 v6, v6")
    bf16_round_pair(6, 6, 6)
    unpack_lo(6, 6)
    a.i("v_rcp_f32 v6, v6")
    for k in range(16):
        a.i("v_sub_f32 v8, v%d, v4" % (28 + 2 * k))
        a.i("v_sub_f32 v9, v%d, v4" % (29 + 2 * k))
        bf16_round_pair(8, 8, 9)
        unpack_hi(9, 8)
        unpack_lo(8, 8)
        a.i("v_mul_f32 v8, v8, v6")
        a.i("v_mul_f32 v9, v9, v6")
        bf16_round_pair(12 + k, 8, 9)
    a.i("v_lshrrev_b32 v4, 5, v0")
    a.i("s_lshl_b32 s5, s4, 1")
    a.i("v_add_u32 v4, s5, v4")
    a.i("v_mul_u32_u24 v4, 2064, v4")
    a.i("v_and_b32 v5, 31, v0")
    a.i("v_lshl_add_u32 v4, v5, 4, v4")
    for u in range(4):
        a.i("ds_write_b128 v4, %s offset:%d" % (v(12 + 4 * u, 4), XN + u * 512))
    a.i("s_waitcnt lgkmcnt(0)")

    a.label("L_bar1")
    a.i("s_barrier")
    stamp(1)
    a.i("s_cmp_ge_u32 s3, 12")
    a.br("s_cbranch_scc1 L_bar2")
    a.i("v_and_b32 v3, 7, v0")
    a.i("v_mul_u32_u24 v3, 2064, v3")
    a.i("v_bfe_u32 v4, v0, 3, 1")
    a.i("v_lshl_add_u32 v3, v4, 6, v3")
    a.i("v_lshrrev_b32 v5, 4, v0")
    a.i("v_lshl_add_u32 v3, v5, 4, v3")
    a.i("s_lshl_b32 s4, s%d, 1" % sK0)
    a.i("s_and_b32 s4, s4, 2047")
    a.i("v_add_u32 v3, s4, v3")
    a.i("ds_read_b128 v[44:47], v3 offset:%d" % XN)
    a.i("v_lshrrev_b32 v6, 5, v0")
    a.i("s_lshl_b32 s5, s3, 1")
    a.i("v_add_u32 v7, s5, v6")
    a.i("v_mul_u32_u24 v7, 2176, v7")
    a.i("v_and_b32 v8, 7, v0")
    a.i("v_mul_u32_u24 v8, 272, v8")
    a.i("v_add_u32 v7, v7, v8")
    a.i("v_bfe_u32 v8, v0, 4, 1")
    a.i("v_lshl_add_u32 v7, v8, 7, v7")
    a.i("v_add_u32 v7, %d, v7" % R1)
    a.i("v_cmp_eq_u32 vcc, v4, v6")
    a.i("v_mov_b32 v8, %d" % DUMP)
    a.i("v_cndmask_b32 v7, v8, v7, vcc")
    a.i("s_waitcnt vmcnt(16) lgkmcnt(0)")
    for q in range(4):
        for p in range(4):
            a.i("v_perm_b32 v%d, v%d, v%d, s%d" % (48 + p, 12 + (2 * p + 1) * 4 + q, 12 + (2 * p) * 4 + q, sSELLO))
        for p in range(4):
            a.i("v_perm_b32 v%d, v%d, v%d, s%d" % (52 + p, 12 + (2 * p + 1) * 4 + q, 12 + (2 * p) * 4 + q, sSELHI))
        a.i("v_mfma_f32_16x16x32_bf16 v[56:59], v[48:51], v[44:47], 0")
        a.i("v_mfma_f32_16x16x32_bf16 v[60:63], v[52:55], v[44:47], 0")
        for r in range(4):
            a.i("ds_write2_b32 v7, v%d, v%d offset0:%d offset1:%d" % (56 + r, 60 + r, 8 * r + 2 * q, 8 * r + 2 * q + 1))
    a.i("s_waitcnt lgkmcnt(0)")
    a.label("L_bar2")
    a.i("s_barrier")
    stamp(2)
    a.i("s_cmp_lg_u32 s3, 15")
    a.br("s_cbranch_scc1 L_bar3")

    a.i("v_lshrrev_b32 v3, 4, v0")
    a.i("v_mul_u32_u24 v3, 272, v3")
    a.i("v_and_b32 v4, 15, v0")
    a.i("v_lshl_add_u32 v3, v4, 4, v3")
    a.i("v_add_u32 v3, %d, v3" % R1)
    a.i("v_lshrrev_b32 v5, 4, v0")
    a.i("v_lshlrev_b32 v6, 14, v5")
    a.i("v_lshl_add_u32 v6, v4, 4, v6")
    a.i("v_mul_u32_u24 v7, 14336, v5")
    a.i("v_lshl_add_u32 v7, v4, 4, v7")
    a.i("s_lshl_b32 s4, s%d, 17" % sCB)
    a.i("s_lshl_b32 s5, s%d, 8" % sKS)
    a.i("s_add_u32 s4, s4, s5")
    a.i("s_add_u32 s4, s4, 0x%x" % QP)
    a.i("s_mul_i32 s5, s%d, %d" % (sSG, 8 * 14336))
    a.i("s_lshl_b32 s6, s%d, 8" % sCG)
    a.i("s_add_u32 s5, s5, s6")
    a.i("s_add_u32 s6, s5, 0x%x" % UP)
    a.i("s_add_u32 s5, s5, 0x%x" % GP)
    for mat in range(3):
        if mat == 1:
            a.i("s_cmp_ge_u32 s2, 224")
            a.br("s_cbranch_scc1 L_pub_done")
        for u in range(2):
            base = KV + u * 32
            for c in range(8):
                a.i("ds_read_b128 %s, v3 offset:%d" % (v(base + 4 * c, 4), (mat * 8 + c) * 2176 + u * 4 * 272))
        for u in range(2):
            base = KV + u * 32
            a.i("s_waitcnt lgkmcnt(%d)" % (8 if u == 0 else 0))
            for c in range(1, 8):
                for e in range(4):
                    a.i("v_add_f32 v%d, v%d, v%d" % (base + e, base + e, base + 4 * c + e))
            sb = 12 + (mat * 2 + u) * 4
            for e in range(4):
                a.i("v_mov_b32 v%d, v%d" % (sb + e, base + e))
            if mat == 0:
                a.i("s_add_u32 s7, s4, %d" % (u * 4 * 16384))
                a.i("buffer_store_dwordx4 %s, v6, %s, s7 offen sc1" % (v(sb, 4), s(sWS, 4)))
            else:
                a.i("s_add_u32 s7, s%d, %d" % (5 if mat == 1 else 6, u * 4 * 14336))
                a.i("buffer_store_dwordx4 %s, v7, %s, s7 offen sc1" % (v(sb, 4), s(sWS, 4)))
    a.label("L_pub_done")
    a.i("s_waitcnt vmcnt(0)")
    stamp(3)
    a.i("s_lshr_b32 s4, s2, 2")
    a.i("s_lshl_b32 s4, s4, 2")
    a.i("v_mov_b32 v3, s4")
    a.i("v_mov_b32 v4, 1")
    a.i("s_mov_b64 exec, 1")
    a.i("buffer_atomic_add v4, v3, %s, 0 offen sc1" % s(sDBG, 4))
    a.i("s_mov_b64 exec, -1")
    a.i("v_lshlrev_b32 v3, 2, v0")
    a.i("s_mov_b32 s%d, %d" % (sSPIN, SPIN_G))
    a.label("L_poll1")
    a.i("buffer_load_dword v4, v3, %s, 0 offen sc1" % s(sDBG, 4))
    a.i("s_waitcnt vmcnt(0)")
    a.i("v_cmp_ne_u32 vcc, 4, v4")
    a.br("s_cbranch_vccz L_poll1_done")
    a.i("s_sleep 2")
    a.i("s_sub_u32 s%d, s%d, 1" % (sSPIN, sSPIN))
    a.i("s_cmp_lg_u32 s%d, 0" % sSPIN)
    a.br("s_cbranch_scc1 L_poll1")
    a.label("L_poll1_done")
    stamp(4)
    a.i("s_lshl_b32 s4, s%d, 14" % sB)
    a.i("s_lshl_b32 s5, s%d, 12" % sKVH)
    a.i("s_add_u32 s4, s4, s5")
    a.i("s_add_u32 s4, s4, 0x%x" % QP)
    for sp in range(4):
        for u in range(4):
            a.i("buffer_load_dwordx4 %s, v%d, %s, s4 offen offset:%d sc1" % (
                v(KV + (sp * 4 + u) * 4, 4), vOFFV, s(sWS, 4), u * 1024))
        if sp < 3:
            a.i("s_add_u32 s4, s4, %d" % (8 * 16384))
    a.i("v_lshrrev_b32 v3, 5, v0")
    a.i("v_mul_u32_u24 v3, 272, v3")
    a.i("v_and_b32 v4, 31, v0")
    a.i("v_lshl_add_u32 v3, v4, 3, v3")
    a.i("s_waitcnt vmcnt(0)")
    for u in range(4):
        for e in range(4):
            r0 = KV + u * 4 + e
            a.i("v_add_f32 v%d, v%d, v%d" % (r0, r0, r0 + 16))
            a.i("v_add_f32 v%d, v%d, v%d" % (r0 + 32, r0 + 32, r0 + 48))
            a.i("v_add_f32 v%d, v%d, v%d" % (r0, r0, r0 + 32))
        bf16_round_pair(12 + 2 * u, KV + u * 4, KV + u * 4 + 1)
        bf16_round_pair(13 + 2 * u, KV + u * 4 + 2, KV + u * 4 + 3)
        a.i("ds_write_b64 v3, %s offset:%d" % (v(12 + 2 * u, 2), QL + u * 544))
    a.i("v_and_b32 v3, 7, v0")
    a.i("v_mul_u32_u24 v3, 14336, v3")
    a.i("v_bfe_u32 v4, v0, 3, 1")
    a.i("v_lshl_add_u32 v3, v4, 7, v3")
    a.i("v_lshrrev_b32 v5, 4, v0")
    a.i("v_lshl_add_u32 v3, v5, 5, v3")
    a.i("v_cmp_le_u32 vcc, 56, v0")
    a.i("v_mov_b32 v6, 0x7ffffff0")
    a.i("v_cndmask_b32 v3, v3, v6, vcc")
    a.i("s_mul_i32 s4, s%d, 224" % sKS)
    a.i("s_add_u32 s5, s4, 0x%x" % UP)
    a.i("s_add_u32 s4, s4, 0x%x" % GP)
    for sp in range(4):
        for hf in range(2):
            a.i("buffer_load_dwordx4 %s, v3, %s, s4 offen offset:%d sc1" % (v(KV + (sp * 2 + hf) * 4, 4), s(sWS, 4), hf * 16))
            a.i("buffer_load_dwordx4 %s, v3, %s, s5 offen offset:%d sc1" % (v(KV + 32 + (sp * 2 + hf) * 4, 4), s(sWS, 4), hf * 16))
        if sp < 3:
            a.i("s_add_u32 s4, s4, %d" % (8 * 14336))
            a.i("s_add_u32 s5, s5, %d" % (8 * 14336))
    a.i("s_waitcnt lgkmcnt(0)")
    a.i("s_barrier")
    stamp(5)
    a.i("s_waitcnt vmcnt(0)")
    for m in range(2):
        for e in range(8):
            r0 = KV + m * 32 + e
            a.i("v_add_f32 v%d, v%d, v%d" % (r0, r0, r0 + 8))
            a.i("v_add_f32 v%d, v%d, v%d" % (r0 + 16, r0 + 16, r0 + 24))
            a.i("v_add_f32 v%d, v%d, v%d" % (r0, r0, r0 + 16))
    a.i("s_mov_b32 s4, 0x3d372713")
    a.i("s_mov_b32 s5, 0xc0135761")
    for e in range(0, 8, 2):
        g0, g1, u0, u1 = KV + e, KV + e + 1, KV + 32 + e, KV + 33 + e
        bf16_round_pair(12, g0, g1)
        bf16_round_pair(13, u0, u1)
        unpack_lo(g0, 12)
        unpack_hi(g1, 12)
        unpack_lo(u0, 13)
        unpack_hi(u1, 13)
        for gg, tt in ((g0, 14), (g1, 15)):
            a.i("v_mul_f32 v%d, v%d, v%d" % (tt, gg, gg))
            a.i("v_mul_f32 v%d, s4, v%d" % (tt, tt))
            a.i("v_fma_f32 v%d, v%d, v%d, v%d" % (tt, tt, gg, gg))
            a.i("v_mul_f32 v%d, s5, v%d" % (tt, tt))
            a.i("v_exp_f32 v%d, v%d" % (tt, tt))
            a.i("v_add_f32 v%d, 1.0, v%d" % (tt, tt))
            a.i("v_rcp_f32 v%d, v%d" % (tt, tt))
            a.i("v_mul_f32 v%d, v%d, v%d" % (tt, tt, gg))
        bf16_round_pair(14, 14, 15)
        unpack_hi(15, 14)
        unpack_lo(14, 14)
        a.i("v_mul_f32 v14, v14, v%d" % u0)
        a.i("v_mul_f32 v15, v15, v%d" % u1)
        bf16_round_pair(16 + e // 2, 14, 15)
    a.i("v_and_b32 v3, 7, v0")
    a.i("v_lshlrev_b32 v3, 6, v3")
    a.i("v_lshl_add_u32 v3, v4, 9, v3")
    a.i("v_lshl_add_u32 v3, v5, 4, v3")
    a.i("ds_write_b128 v3, v[16:19] offset:%d" % HL)
    k_loads()
    a.br("s_branch L_kpass")

    a.label("L_bar3")
    a.i("s_barrier")
    stamp(5)
    a.label("L_kpass")
    Q, S, T, Y0 = 12, 28, 44, 60
    a.i("v_and_b32 v3, 7, v0")
    a.i("v_mul_u32_u24 v3, 272, v3")
    a.i("v_lshrrev_b32 v4, 4, v0")
    a.i("v_lshl_add_u32 v3, v4, 6, v3")
    for j in range(4):
        a.i("ds_read_b128 %s, v3 offset:%d" % (v(Q + 4 * j, 4), QL + j * 16))
    DPPA = "quad_perm:[1,0,3,2] row_mask:0xf bank_mask:0xf"
    DPPB = "quad_perm:[2,3,0,1] row_mask:0xf bank_mask:0xf"
    for t in range(4):
        X = KV + t * 16
        a.i("s_waitcnt vmcnt(12)")
        a.i("s_mov_b64 vcc, s[%d:%d]" % (sMEV, sMEV + 1))
        for pr in (0, 2):
            for e in range(4):
                a.i("v_cndmask_b32_dpp v%d, v%d, v%d, vcc %s" % (T + pr * 4 + e, X + (pr + 1) * 4 + e, X + pr * 4 + e, DPPA))
        a.i("s_mov_b64 vcc, s[%d:%d]" % (sMOD, sMOD + 1))
        for pr in (0, 2):
            for e in range(4):
                a.i("v_cndmask_b32_dpp v%d, v%d, v%d, vcc %s" % (T + (pr + 1) * 4 + e, X + pr * 4 + e, X + (pr + 1) * 4 + e, DPPA))
        for r in range(4):
            a.i("buffer_load_dwordx4 %s, v%d, %s, s%d offen offset:%d%s" % (
                v(X + r * 4, 4), vOFFV, s(sV, 4), sT + t, r * 1024, NT))
        a.i("s_mov_b64 vcc, s[%d:%d]" % (sMLO, sMLO + 1))
        for e in range(4):
            a.i("v_cndmask_b32_dpp v%d, v%d, v%d, vcc %s" % (Y0 + e, T + 8 + e, T + e, DPPB))
        a.i("s_mov_b64 vcc, s[%d:%d]" % (sMHI, sMHI + 1))
        for e in range(4):
            a.i("v_cndmask_b32_dpp v%d, v%d, v%d, vcc %s" % (T + 8 + e, T + e, T + 8 + e, DPPB))
        a.i("s_mov_b64 vcc, s[%d:%d]" % (sMLO, sMLO + 1))
        for e in range(4):
            a.i("v_cndmask_b32_dpp v%d, v%d, v%d, vcc %s" % (T + e, T + 12 + e, T + 4 + e, DPPB))
        a.i("s_mov_b64 vcc, s[%d:%d]" % (sMHI, sMHI + 1))
        for e in range(4):
            a.i("v_cndmask_b32_dpp v%d, v%d, v%d, vcc %s" % (T + 12 + e, T + 4 + e, T + 12 + e, DPPB))
        if t == 0:
            a.i("s_waitcnt lgkmcnt(0)")
        ys = [Y0, T, T + 8, T + 12]
        for j in range(4):
            a.i("v_mfma_f32_16x16x32_bf16 %s, %s, %s, %s" % (
                v(S + 4 * t, 4), v(ys[j], 4), v(Q + 4 * j, 4), "0" if j == 0 else v(S + 4 * t, 4)))
    stamp(6)
    a.i("s_sub_u32 s4, s3, 4")
    a.i("s_cmp_ge_u32 s4, 8")
    a.br("s_cbranch_scc1 L_nodma")
    a.i("s_and_b32 s5, s4, 1")
    a.i("s_lshr_b32 s6, s4, 1")
    a.i("s_and_b32 s7, s6, 1")
    a.i("s_movk_i32 s9, 16384")
    a.i("s_cmp_ge_u32 s3, 8")
    a.i("s_cselect_b32 s8, 64, 56")
    a.i("s_cselect_b32 s9, 4096, s9")
    a.i("s_mul_i32 s8, s8, s%d" % sKS)
    a.i("s_lshl_b32 s10, s7, 5")
    a.i("s_add_u32 s8, s8, s10")
    a.i("s_lshl_b32 s8, s8, 11")
    a.i("s_lshl_b32 s10, s%d, 9" % sCB)
    a.i("s_add_u32 s8, s8, s10")
    a.i("s_lshl_b32 s10, s5, 8")
    a.i("s_add_u32 s8, s8, s10")
    a.i("s_cmp_eq_u32 s6, 1")
    a.i("s_cselect_b32 s10, 2, 3")
    a.i("v_lshrrev_b32 v3, 4, v0")
    a.i("v_min_u32 v3, s10, v3")
    a.i("v_mul_lo_u32 v3, v3, s9")
    a.i("v_and_b32 v4, 15, v0")
    a.i("v_lshl_add_u32 v3, v4, 4, v3")
    a.i("s_lshl_b32 s10, s5, 2")
    a.i("s_add_u32 s10, s10, s6")
    a.i("s_lshl_b32 s10, s10, 13")
    a.i("s_add_u32 s10, s10, %d" % TW)
    for j in range(8):
        jr_wd = j * 2048
        jr_wo = (8 * (j & 3) + (j >> 2)) * 2048
        a.i("s_mov_b32 s11, %d" % jr_wd)
        a.i("s_cmp_ge_u32 s3, 8")
        a.i("s_cselect_b32 s11, %d, s11" % jr_wo)
        a.i("s_add_u32 s11, s11, s8")
        a.i("s_add_u32 m0, s10, %d" % (j * 1024))
        a.i("buffer_load_dwordx4 v3, %s, s11 offen%s lds" % (s(sWT, 4), NTW))
    a.label("L_nodma")

    for k in range(0, 16, 2):
        bf16_round_pair(44, S + k, S + k + 1)
        unpack_lo(S + k, 44)
        unpack_hi(S + k + 1, 44)
        a.i("v_mul_f32 v%d, s%d, v%d" % (S + k, sSCALE, S + k))
        a.i("v_mul_f32 v%d, s%d, v%d" % (S + k + 1, sSCALE, S + k + 1))
        bf16_round_pair(44, S + k, S + k + 1)
        unpack_lo(S + k, 44)
        unpack_hi(S + k + 1, 44)
    a.i("v_max3_f32 v4, v%d, v%d, v%d" % (S, S + 1, S + 2))
    for k in range(3, 15, 2):
        a.i("v_max3_f32 v4, v4, v%d, v%d" % (S + k, S + k + 1))
    a.i("v_max_f32 v4, v4, v%d" % (S + 15))
    allreduce_rows("v_max_f32", 4, 5)
    a.i("v_mul_f32 v6, s%d, v4" % sLOG2E)
    for k in range(16):
        a.i("v_fma_f32 v%d, v%d, s%d, -v6" % (S + k, S + k, sLOG2E))
    for k in range(16):
        a.i("v_exp_f32 v%d, v%d" % (S + k, S + k))
    a.i("v_add_f32 v5, v%d, v%d" % (S, S + 1))
    a.i("v_add_f32 v7, v%d, v%d" % (S + 2, S + 3))
    for k in range(4, 16, 2):
        a.i("v_add_f32 v5, v5, v%d" % (S + k))
        a.i("v_add_f32 v7, v7, v%d" % (S + k + 1))
    a.i("v_add_f32 v5, v5, v7")
    allreduce_rows("v_add_f32", 5, 7)
    a.i("v_and_b32 v3, 7, v0")
    a.i("v_lshlrev_b32 v3, 6, v3")
    a.i("s_lshl_b32 s4, s3, 2")
    a.i("v_add_u32 v7, s4, v3")
    a.i("ds_write_b32 v7, v4 offset:%d" % SM)
    a.i("ds_write_b32 v7, v5 offset:%d" % SL)
    a.i("v_lshrrev_b32 v8, 4, v0")
    a.i("v_lshl_add_u32 v3, v8, 4, v3")
    a.i("s_waitcnt lgkmcnt(0)")
    a.i("s_barrier")
    stamp(7)
    a.i("ds_read_b128 v[44:47], v3 offset:%d" % SM)
    a.i("ds_read_b128 v[48:51], v3 offset:%d" % SL)
    a.i("s_waitcnt lgkmcnt(0)")
    a.i("v_max3_f32 v7, v44, v45, v46")
    a.i("v_max_f32 v7, v7, v47")
    allreduce_rows("v_max_f32", 7, 8)
    a.i("v_mul_f32 v8, s%d, v7" % sLOG2E)
    a.i("v_sub_f32 v9, v6, v8")
    a.i("v_exp_f32 v9, v9")
    for k in range(16):
        a.i("v_mul_f32 v%d, v9, v%d" % (S + k, S + k))
    for p in range(8):
        bf16_round_pair(S + p, S + 2 * p, S + 2 * p + 1)
    P = S
    a.i("s_cmp_lg_u32 s3, 15")
    a.br("s_cbranch_scc1 L_nostats")
    for k in range(4):
        a.i("v_fma_f32 v%d, v%d, s%d, -v8" % (44 + k, 44 + k, sLOG2E))
    for k in range(4):
        a.i("v_exp_f32 v%d, v%d" % (44 + k, 44 + k))
    a.i("v_mul_f32 v52, v44, v48")
    for k in range(1, 4):
        a.i("v_fmac_f32 v52, v%d, v%d" % (44 + k, 48 + k))
    allreduce_rows("v_add_f32", 52, 53)
    a.i("v_min_u32 v54, -2, v7")
    a.i("v_min_u32 v55, -2, v52")
    a.i("buffer_store_dwordx2 v[54:55], v10, %s, 0 offen sc1" % s(sWS, 4))
    a.label("L_nostats")

    D = [12, 16, 20, 24, 44, 48, 52, 56]
    PT = 36

    def pv_step(u):
        for q in range(4):
            for p in range(4):
                a.i("v_perm_b32 v%d, v%d, v%d, s%d" % (PT + p, KV + (8 * u + 2 * p + 1) * 4 + q, KV + (8 * u + 2 * p) * 4 + q, sSELLO))
            for p in range(4):
                a.i("v_perm_b32 v%d, v%d, v%d, s%d" % (PT + 4 + p, KV + (8 * u + 2 * p + 1) * 4 + q, KV + (8 * u + 2 * p) * 4 + q, sSELHI))
            for h in range(2):
                i = 2 * q + h
                a.i("v_mfma_f32_16x16x32_bf16 %s, %s, %s, %s" % (
                    v(D[i], 4), v(PT + 4 * h, 4), v(P + 4 * u, 4), "0" if u == 0 else v(D[i], 4)))

    def role_wait(n_plain):
        l1, l2, l3 = a.newlabel("L_w"), a.newlabel("L_w"), a.newlabel("L_w")
        a.i("s_sub_u32 s4, s3, 4")
        a.i("s_cmp_lt_u32 s4, 8")
        a.br("s_cbranch_scc1 %s" % l1)
        a.i("s_cmp_eq_u32 s3, 15")
        a.br("s_cbranch_scc1 %s" % l2)
        a.i("s_waitcnt vmcnt(%d)" % n_plain)
        a.br("s_branch %s" % l3)
        a.label(l1)
        a.i("s_waitcnt vmcnt(%d)" % (n_plain + 8))
        a.br("s_branch %s" % l3)
        a.label(l2)
        a.i("s_waitcnt vmcnt(%d)" % (n_plain + 1))
        a.label(l3)

    role_wait(8)
    pv_step(0)
    role_wait(0)
    stamp(8)
    pv_step(1)
    a.i("v_and_b32 v3, 15, v0")
    a.i("v_mul_u32_u24 v4, 528, v3")
    a.i("v_lshrrev_b32 v5, 4, v0")
    a.i("v_lshl_add_u32 v4, v5, 7, v4")
    a.i("s_mul_i32 s4, s3, 4224")
    a.i("s_add_u32 s4, s4, %d" % ORED)
    a.i("v_add_u32 v4, s4, v4")
    a.i("v_cmp_gt_u32 vcc, 8, v3")
    a.i("v_mov_b32 v5, %d" % DUMP)
    a.i("v_cndmask_b32 v4, v5, v4, vcc")
    for i in range(8):
        a.i("ds_write_b128 v4, %s offset:%d" % (v(D[i], 4), i * 16))
    a.i("s_waitcnt lgkmcnt(0)")
    a.i("s_barrier")
    stamp(9)
    a.i("s_cmp_lt_u32 s3, 4")
    a.br("s_cbranch_scc1 L_reducer")
    a.i("s_cmp_lt_u32 s3, 12")
    a.br("s_cbranch_scc1 L_dmawave")
    a.i("s_cmp_eq_u32 s3, 12")
    a.br("s_cbranch_scc1 L_final")
    a.i("s_cmp_eq_u32 s3, 15")
    a.br("s_cbranch_scc1 L_gather")
    a.br("s_branch L_tail")

    a.label("L_reducer")
    a.i("v_lshrrev_b32 v3, 5, v0")
    a.i("s_lshl_b32 s4, s3, 1")
    a.i("v_add_u32 v3, s4, v3")
    a.i("v_mul_u32_u24 v3, 528, v3")
    a.i("v_and_b32 v4, 31, v0")
    a.i("v_lshl_add_u32 v3, v4, 4, v3")
    a.i("v_add_u32 v3, %d, v3" % ORED)
    for w2 in range(16):
        a.i("ds_read_b128 %s, v3 offset:%d" % (v(KV + 4 * w2, 4), w2 * 4224))
    a.i("s_lshl_b32 s4, s%d, 12" % sCH)
    a.i("s_lshl_b32 s5, s3, 10")
    a.i("s_add_u32 s4, s4, s5")
    a.i("s_add_u32 s4, s4, 0x%x" % OB1)
    a.i("s_waitcnt lgkmcnt(8)")
    for w2 in range(0, 8, 2):
        for e in range(4):
            a.i("v_add_f32 v%d, v%d, v%d" % (KV + 4 * w2 + e, KV + 4 * w2 + e, KV + 4 * w2 + 4 + e))
    for w2 in (0, 4):
        for e in range(4):
            a.i("v_add_f32 v%d, v%d, v%d" % (KV + 4 * w2 + e, KV + 4 * w2 + e, KV + 4 * w2 + 8 + e))
    for e in range(4):
        a.i("v_add_f32 v%d, v%d, v%d" % (KV + e, KV + e, KV + 16 + e))
    a.i("s_waitcnt lgkmcnt(0)")
    for w2 in range(8, 16, 2):
        for e in range(4):
            a.i("v_add_f32 v%d, v%d, v%d" % (KV + 4 * w2 + e, KV + 4 * w2 + e, KV + 4 * w2 + 4 + e))
    for w2 in (8, 12):
        for e in range(4):
            a.i("v_add_f32 v%d, v%d, v%d" % (KV + 4 * w2 + e, KV + 4 * w2 + e, KV + 4 * w2 + 8 + e))
    for e in range(4):
        a.i("v_add_f32 v%d, v%d, v%d" % (KV + 32 + e, KV + 32 + e, KV + 48 + e))
    for e in range(4):
        a.i("v_add_f32 v%d, v%d, v%d" % (KV + e, KV + e, KV + 32 + e))
    for e in range(4):
        a.i("v_min_u32 v%d, -2, v%d" % (KV + e, KV + e))
    a.i("buffer_store_dwordx4 %s, v%d, %s, s4 offen sc1" % (v(KV, 4), vOFFV, s(sWS, 4)))
    stamp(10)
    a.br("s_branch L_exit")

    a.label("L_dmawave")
    a.i("s_waitcnt vmcnt(0)")
    a.i("v_mov_b32 v3, %d" % CNT)
    a.i("v_mov_b32 v4, 1")
    a.i("s_mov_b64 exec, 1")
    a.i("ds_add_u32 v3, v4")
    a.i("s_mov_b64 exec, -1")
    stamp(10)
    a.br("s_branch L_exit")

    a.label("L_gather")
    a.i("s_lshr_b32 s4, s%d, 1" % sKS)
    a.i("s_lshl_b32 s5, s4, 9")
    a.i("s_add_u32 s5, s5, 0x%x" % ST)
    a.i("v_lshlrev_b32 v3, 3, v0")
    a.i("s_mov_b32 s%d, %d" % (sSPIN, SPIN_G))
    a.label("L_poll_st")
    a.i("buffer_load_dwordx2 v[4:5], v3, %s, s5 offen sc1" % s(sWS, 4))
    a.i("s_waitcnt vmcnt(0)")
    a.i("v_max_u32 v6, v4, v5")
    a.i("v_cmp_eq_u32 vcc, -1, v6")
    a.br("s_cbranch_vccz L_poll_st_done")
    a.i("s_sleep 1")
    a.i("s_sub_u32 s%d, s%d, 1" % (sSPIN, sSPIN))
    a.i("s_cmp_lg_u32 s%d, 0" % sSPIN)
    a.br("s_cbranch_scc1 L_poll_st")
    a.label("L_poll_st_done")
    a.i("v_lshrrev_b32 v7, 4, v0")
    a.i("v_lshlrev_b32 v7, 17, v7")
    a.i("v_and_b32 v8, 15, v0")
    a.i("v_lshl_add_u32 v7, v8, 4, v7")
    a.i("s_lshr_b32 s6, s4, 3")
    a.i("s_lshl_b32 s6, s6, 15")
    a.i("s_and_b32 s7, s%d, 15" % sKS)
    a.i("s_lshl_b32 s7, s7, 8")
    a.i("s_add_u32 s6, s6, s7")
    a.i("s_add_u32 s6, s6, 0x%x" % OB1)

    def gather_loads():
        for bh in range(2):
            for sp in range(8):
                a.i("s_add_u32 s7, s6, %d" % (bh * 4 * 32 * 4096 + sp * 4096))
                a.i("buffer_load_dwordx4 %s, v7, %s, s7 offen sc1" % (v(KV + (bh * 8 + sp) * 4, 4), s(sWS, 4)))

    gather_loads()
    a.i("v_mov_b32 v6, v4")
    dpp_reduce16("v_max_f32", 6, n=3)
    a.i("v_sub_f32 v6, v4, v6")
    a.i("v_mul_f32 v6, s%d, v6" % sLOG2E)
    a.i("v_exp_f32 v6, v6")
    a.i("v_mul_f32 v9, v6, v5")
    dpp_reduce16("v_add_f32", 9, n=3)
    a.i("v_rcp_f32 v9, v9")
    a.i("v_mul_f32 v6, v6, v9")
    a.i("v_lshlrev_b32 v3, 2, v0")
    a.i("ds_write_b32 v3, v6 offset:%d" % FL)
    a.i("v_lshrrev_b32 v3, 4, v0")
    a.i("v_lshlrev_b32 v3, 5, v3")
    a.i("s_waitcnt lgkmcnt(0)")
    for bh in range(2):
        for hf in range(2):
            a.i("ds_read_b128 %s, v3 offset:%d" % (v(12 + bh * 8 + hf * 4, 4), FL + bh * 128 + hf * 16))
    a.i("s_mov_b32 s%d, %d" % (sSPIN, SPIN_G))
    a.label("L_poll_o")
    a.i("s_waitcnt vmcnt(0)")
    a.i("v_max3_u32 v4, v%d, v%d, v%d" % (KV, KV + 1, KV + 2))
    a.i("v_max3_u32 v5, v%d, v%d, v%d" % (KV + 3, KV + 4, KV + 5))
    for k in range(6, 62, 4):
        a.i("v_max3_u32 v4, v4, v%d, v%d" % (KV + k, KV + k + 1))
        a.i("v_max3_u32 v5, v5, v%d, v%d" % (KV + k + 2, KV + k + 3))
    a.i("v_max3_u32 v4, v4, v%d, v%d" % (KV + 62, KV + 63))
    a.i("v_max_u32 v4, v4, v5")
    a.i("v_cmp_eq_u32 vcc, -1, v4")
    a.br("s_cbranch_vccz L_poll_o_done")
    a.i("s_sub_u32 s%d, s%d, 1" % (sSPIN, sSPIN))
    a.i("s_cmp_eq_u32 s%d, 0" % sSPIN)
    a.br("s_cbranch_scc1 L_poll_o_done")
    gather_loads()
    a.br("s_branch L_poll_o")
    a.label("L_poll_o_done")
    stamp(10)
    a.i("s_waitcnt lgkmcnt(0)")
    for bh in range(2):
        for e in range(4):
            a.i("v_mul_f32 v%d, v%d, v%d" % (28 + bh * 4 + e, 12 + bh * 8, KV + bh * 32 + e))
        for sp in range(1, 8):
            for e in range(4):
                a.i("v_fmac_f32 v%d, v%d, v%d" % (28 + bh * 4 + e, 12 + bh * 8 + sp, KV + (bh * 8 + sp) * 4 + e))
    a.i("v_bfe_u32 v3, v0, 3, 1")
    a.i("v_lshlrev_b32 v3, 9, v3")
    a.i("v_lshrrev_b32 v4, 4, v0")
    a.i("v_lshl_add_u32 v3, v4, 6, v3")
    a.i("v_and_b32 v4, 7, v0")
    a.i("v_lshl_add_u32 v3, v4, 3, v3")
    for bh in range(2):
        bf16_round_pair(36 + 2 * bh, 28 + bh * 4, 29 + bh * 4)
        bf16_round_pair(37 + 2 * bh, 30 + bh * 4, 31 + bh * 4)
        a.i("ds_write_b64 v3, %s offset:%d" % (v(36 + 2 * bh, 2), OL + bh * 256))
    a.i("v_mov_b32 v3, %d" % CNT)
    a.i("v_mov_b32 v4, 1")
    a.i("s_waitcnt lgkmcnt(0)")
    a.i("ds_write_b32 v3, v4 offset:4")
    stamp(11)
    a.br("s_branch L_exit")

    a.label("L_tail")
    a.i("v_mov_b32 v3, %d" % CNT)
    a.i("s_mov_b32 s%d, %d" % (sSPIN, SPIN_L))
    a.label("L_spin_dma")
    a.i("ds_read_b32 v4, v3")
    a.i("s_waitcnt lgkmcnt(0)")
    a.i("v_cmp_ne_u32 vcc, 8, v4")
    a.br("s_cbranch_vccz L_spin_dma_done")
    a.i("s_sleep 1")
    a.i("s_sub_u32 s%d, s%d, 1" % (sSPIN, sSPIN))
    a.i("s_cmp_lg_u32 s%d, 0" % sSPIN)
    a.br("s_cbranch_scc1 L_spin_dma")
    a.label("L_spin_dma_done")
    stamp(10)
    a.i("s_sub_u32 s4, s3, 13")
    a.i("s_lshl_b32 s5, s4, 15")
    a.i("s_add_u32 s5, s5, %d" % TW)
    a.i("v_add_u32 v5, s5, v%d" % vOFFV)
    a.i("v_and_b32 v6, 7, v0")
    a.i("v_lshlrev_b32 v6, 6, v6")
    a.i("v_lshrrev_b32 v7, 4, v0")
    a.i("v_lshl_add_u32 v6, v7, 4, v6")
    a.i("ds_read_b128 v[28:31], v6 offset:%d" % HL)
    a.i("ds_read_b128 v[32:35], v6 offset:%d" % (HL + 512))
    for st in range(2):
        for j in range(8):
            a.i("ds_read_b128 %s, v5 offset:%d" % (v(KV + (st * 8 + j) * 4, 4), st * 8192 + j * 1024))
    for st in range(2):
        a.i("s_waitcnt lgkmcnt(%d)" % (8 if st == 0 else 0))
        for q in range(4):
            for p in range(4):
                a.i("v_perm_b32 v%d, v%d, v%d, s%d" % (PT + p, KV + (8 * st + 2 * p + 1) * 4 + q, KV + (8 * st + 2 * p) * 4 + q, sSELLO))
            for p in range(4):
                a.i("v_perm_b32 v%d, v%d, v%d, s%d" % (PT + 4 + p, KV + (8 * st + 2 * p + 1) * 4 + q, KV + (8 * st + 2 * p) * 4 + q, sSELHI))
            for h in range(2):
                i = 2 * q + h
                a.i("v_mfma_f32_16x16x32_bf16 %s, %s, %s, %s" % (
                    v(D[i], 4), v(28 + 4 * st, 4), v(PT + 4 * h, 4), "0" if st == 0 else v(D[i], 4)))
    for st in range(2):
        for j in range(8):
            a.i("ds_read_b128 %s, v5 offset:%d" % (v(KV + (st * 8 + j) * 4, 4), (2 + st) * 8192 + j * 1024))
    a.i("s_mov_b32 s%d, %d" % (sSPIN, SPIN_L))
    a.label("L_spin_o")
    a.i("ds_read_b32 v4, v3 offset:4")
    a.i("s_waitcnt lgkmcnt(0)")
    a.i("v_cmp_ne_u32 vcc, 1, v4")
    a.br("s_cbranch_vccz L_spin_o_done")
    a.i("s_sub_u32 s%d, s%d, 1" % (sSPIN, sSPIN))
    a.i("s_cmp_lg_u32 s%d, 0" % sSPIN)
    a.br("s_cbranch_scc1 L_spin_o")
    a.label("L_spin_o_done")
    a.i("ds_read_b128 v[28:31], v6 offset:%d" % OL)
    a.i("ds_read_b128 v[32:35], v6 offset:%d" % (OL + 512))
    for st in range(2):
        for q in range(4):
            for p in range(4):
                a.i("v_perm_b32 v%d, v%d, v%d, s%d" % (PT + p, KV + (8 * st + 2 * p + 1) * 4 + q, KV + (8 * st + 2 * p) * 4 + q, sSELLO))
            for p in range(4):
                a.i("v_perm_b32 v%d, v%d, v%d, s%d" % (PT + 4 + p, KV + (8 * st + 2 * p + 1) * 4 + q, KV + (8 * st + 2 * p) * 4 + q, sSELHI))
            if st == 0 and q == 0:
                a.i("s_waitcnt lgkmcnt(0)")
            for h in range(2):
                i = 2 * q + h
                a.i("v_mfma_f32_16x16x32_bf16 %s, %s, %s, %s" % (
                    v(D[i], 4), v(28 + 4 * st, 4), v(PT + 4 * h, 4), v(D[i], 4)))
    a.i("s_lshl_b32 s5, s2, 13")
    a.i("s_lshl_b32 s6, s4, 12")
    a.i("s_add_u32 s5, s5, s6")
    a.i("s_add_u32 s5, s5, 0x%x" % OB2)
    a.i("s_mov_b32 exec_hi, 0")
    for i in range(8):
        for e in range(4):
            a.i("v_min_u32 v%d, -2, v%d" % (D[i] + e, D[i] + e))
        a.i("buffer_store_dwordx4 %s, v%d, %s, s5 offen offset:%d sc1" % (v(D[i], 4), vOFFV, s(sWS, 4), i * 512))
    a.i("s_mov_b64 exec, -1")
    stamp(11)
    a.br("s_branch L_exit")

    a.label("L_final")
    a.i("s_lshr_b32 s4, s%d, 5" % sKS)
    a.i("s_lshl_b32 s4, s4, 7")
    a.i("s_lshl_b32 s5, s%d, 8" % sCB)
    a.i("s_add_u32 s4, s4, s5")
    a.i("s_lshr_b32 s5, s%d, 2" % sKS)
    a.i("s_and_b32 s5, s5, 7")
    a.i("s_add_u32 s4, s4, s5")
    a.i("s_and_b32 s5, s%d, 1" % sKS)
    a.i("s_lshl_b32 s5, s5, 6")
    a.i("s_add_u32 s4, s4, s5")
    a.i("s_lshr_b32 s5, s%d, 1" % sKS)
    a.i("s_and_b32 s5, s5, 1")
    a.i("s_lshl_b32 s5, s5, 12")
    a.i("s_add_u32 s4, s4, s5")
    a.i("s_lshl_b32 s4, s4, 1")
    a.i("v_lshrrev_b32 v3, 3, v0")
    a.i("v_and_b32 v4, 7, v0")
    a.i("v_lshlrev_b32 v5, 11, v3")
    a.i("v_lshl_add_u32 v5, v4, 4, v5")
    a.i("v_add_u32 v5, s4, v5")
    a.i("v_cmp_gt_u32 vcc, 32, v0")
    a.i("v_mov_b32 v6, 0x7ffffff0")
    a.i("v_cndmask_b32 v5, v6, v5, vcc")
    a.i("buffer_load_ushort v9, v5, %s, 0 offen" % s(sX, 4))
    a.i("v_lshlrev_b32 v6, 13, v3")
    a.i("v_lshl_add_u32 v6, v4, 4, v6")
    a.i("s_lshl_b32 s5, s%d, 19" % sCB)
    a.i("s_lshl_b32 s6, s%d, 7" % sKS)
    a.i("s_add_u32 s5, s5, s6")
    a.i("s_add_u32 s5, s5, 0x%x" % OB2)
    a.i("s_mov_b32 s%d, %d" % (sSPIN, SPIN_G))
    a.label("L_poll_f")
    for t in range(8):
        a.i("s_add_u32 s6, s5, %d" % (t * 65536))
        a.i("buffer_load_dwordx4 %s, v6, %s, s6 offen sc1" % (v(KV + 4 * t, 4), s(sWS, 4)))
    a.i("s_waitcnt vmcnt(0)")
    a.i("v_max3_u32 v7, v%d, v%d, v%d" % (KV, KV + 1, KV + 2))
    a.i("v_max3_u32 v8, v%d, v%d, v%d" % (KV + 3, KV + 4, KV + 5))
    for k in range(6, 30, 4):
        a.i("v_max3_u32 v7, v7, v%d, v%d" % (KV + k, KV + k + 1))
        a.i("v_max3_u32 v8, v8, v%d, v%d" % (KV + k + 2, KV + k + 3))
    a.i("v_max3_u32 v7, v7, v%d, v%d" % (KV + 30, KV + 31))
    a.i("v_max_u32 v7, v7, v8")
    a.i("v_cmp_eq_u32 vcc, -1, v7")
    a.br("s_cbranch_vccz L_poll_f_done")
    a.i("s_sleep 1")
    a.i("s_sub_u32 s%d, s%d, 1" % (sSPIN, sSPIN))
    a.i("s_cmp_lg_u32 s%d, 0" % sSPIN)
    a.br("s_cbranch_scc1 L_poll_f")
    a.label("L_poll_f_done")
    stamp(10)
    for t in range(0, 8, 2):
        for e in range(4):
            a.i("v_add_f32 v%d, v%d, v%d" % (KV + 4 * t + e, KV + 4 * t + e, KV + 4 * t + 4 + e))
    for t in (0, 4):
        for e in range(4):
            a.i("v_add_f32 v%d, v%d, v%d" % (KV + 4 * t + e, KV + 4 * t + e, KV + 4 * t + 8 + e))
    for e in range(4):
        a.i("v_add_f32 v%d, v%d, v%d" % (KV + e, KV + e, KV + 16 + e))
    for e in range(4):
        a.i("v_add_f32_dpp v%d, v%d, v%d row_ror:8 row_mask:0xf bank_mask:0xf" % (KV + e, KV + e, KV + e))
    for e in range(4):
        allreduce_rows("v_add_f32", KV + e, KV + 8 + e)
    a.i("v_cmp_eq_u32 vcc, 1, v3")
    a.i("v_cndmask_b32 v7, v%d, v%d, vcc" % (KV, KV + 1))
    a.i("v_cmp_eq_u32 vcc, 2, v3")
    a.i("v_cndmask_b32 v7, v7, v%d, vcc" % (KV + 2))
    a.i("v_cmp_eq_u32 vcc, 3, v3")
    a.i("v_cndmask_b32 v7, v7, v%d, vcc" % (KV + 3))
    a.i("v_lshlrev_b32 v9, 16, v9")
    a.i("v_add_f32 v7, v7, v9")
    bf16_round_pair(7, 7, 7)
    a.i("buffer_store_short v7, v5, %s, 0 offen" % s(sOUT, 4))
    stamp(11)

    a.label("L_exit")
    if diag:
        a.i("s_lshl_b32 s4, s2, 4")
        a.i("s_add_u32 s4, s4, s3")
        a.i("s_lshl_b32 s4, s4, 8")
        a.i("s_add_u32 s4, s4, 0x%x" % STAMP)
        a.i("v_lshlrev_b32 v3, 2, v0")
        a.i("buffer_store_dword v%d, v3, %s, s4 offen" % (vSTAMP, s(sWS, 4)))
    a.label("L_end")
    a.i("s_endpgm")

    a.raw('.section .rodata,"a"')
    a.raw(".p2align 6")
    a.raw(".amdhsa_kernel " + NAME)
    a.raw("  .amdhsa_next_free_vgpr 128")
    a.raw("  .amdhsa_next_free_sgpr 102")
    a.raw("  .amdhsa_accum_offset 128")
    a.raw("  .amdhsa_group_segment_fixed_size 0")
    a.raw("  .amdhsa_kernarg_size 96")
    a.raw("  .amdhsa_user_sgpr_count 2")
    a.raw("  .amdhsa_user_sgpr_kernarg_segment_ptr 1")
    a.raw("  .amdhsa_system_sgpr_workgroup_id_x 1")
    a.raw(".end_amdhsa_kernel")
    return a.text()


if __name__ == "__main__":
    cfg = {}
    out = sys.argv[1]
    for kv in sys.argv[2:]:
        k, val = kv.split("=")
        cfg[k] = int(val, 0)
    open(out, "w").write(gen(cfg))
```

```python
import sys
from asmlib import Asm, v, s

NAME = "parallel_sum__gqa_block_cached__glu_gated_geglu__decode_kernel"

QP = 0x000000
GP = 0x080000
UP = 0x100000
OB1 = 0x200000
ST = 0x300000
MB = 0x380000
OB2 = 0x400000
STAMP = 0x800000
WS_SIZE = 0x1000000

DUMP = 0
QL = 512
HL = 2688
OL = 3712
SM = 4736
SL = 5248
FL = 5760
CNT = 6016
C_DMA, C_ORDY, C_PUB, C_QRDY, C_M, C_P1 = 0, 4, 8, 12, 16, 20
C_BC = 32
ROOT = 255
XN = 6144
R1 = 22656
ORED = 6144
TW = 75776
LDS_SIZE = TW + 65536

sX, sK, sV, sW1, sWT, sWS, sOUT, sDBG = 40, 44, 48, 52, 56, 60, 64, 68
sSELLO, sSELHI = 72, 73
sT = 74
sCH, sB, sKVH, sS, sCB, sKS = 78, 79, 80, 81, 82, 83
sW1OFF, sPITCH, sSPIN, sLOG2E = 84, 85, 86, 87
sMEV, sMOD, sMLO, sMHI = 88, 90, 92, 94
sK0, sCG, sSG = 96, 97, 98
sSCALE = 99
sDMA = 100
sMBX = 101

vOFFK, vOFFV = 1, 2
vST = 10
vSTAMP = 11
KV = 64


def gen(cfg):
    a = Asm()
    NT = " nt" if cfg.get("nt", 1) else ""
    NTW = " nt" if cfg.get("ntw", 1) else ""
    NTT = " nt" if cfg.get("ntt", 1) else ""
    diag = cfg.get("diag", 0)
    SPIN_G = cfg.get("spin_g", 1 << 17)
    SPIN_L = cfg.get("spin_l", 1 << 21)
    WD_MODE = cfg.get("wd", 2)
    WO_MODE = cfg.get("wo", 2)
    PF = cfg.get("pf", 1)
    PRIO = cfg.get("prio", 1)

    def prio(n):
        if PRIO:
            a.i("s_setprio %d" % n)

    def stamp(idx):
        if not diag:
            return
        a.i("s_memrealtime s[14:15]")
        a.i("s_waitcnt lgkmcnt(0)")
        a.i("v_writelane_b32 v%d, s14, %d" % (vSTAMP, idx))

    def srd(d, p, size, off_lo=None):
        if off_lo is None:
            a.i("s_mov_b32 s%d, s%d" % (d, p))
            a.i("s_and_b32 s%d, s%d, 0xffff" % (d + 1, p + 1))
        else:
            a.i("s_add_u32 s%d, s%d, s%d" % (d, p, off_lo))
            a.i("s_addc_u32 s%d, s%d, 0" % (d + 1, p + 1))
            a.i("s_and_b32 s%d, s%d, 0xffff" % (d + 1, d + 1))
        a.i("s_mov_b32 s%d, 0x%x" % (d + 2, size))
        a.i("s_mov_b32 s%d, 0x00020000" % (d + 3))

    def bf16_round_pair(dst, x0, x1):
        a.i("v_cvt_pk_bf16_f32 v%d, v%d, v%d" % (dst, x0, x1))

    def unpack_lo(dst, src):
        a.i("v_lshlrev_b32 v%d, 16, v%d" % (dst, src))

    def unpack_hi(dst, src):
        a.i("v_and_b32 v%d, 0xffff0000, v%d" % (dst, src))

    def allreduce_rows(op, x, tmp, do16=True, do32=True):
        if do16:
            a.i("v_mov_b32 v%d, v%d" % (tmp, x))
            a.i("v_permlane16_swap_b32 v%d, v%d" % (x, tmp))
            a.i("%s v%d, v%d, v%d" % (op, x, x, tmp))
        if do32:
            a.i("v_mov_b32 v%d, v%d" % (tmp, x))
            a.i("v_permlane32_swap_b32 v%d, v%d" % (x, tmp))
            a.i("%s v%d, v%d, v%d" % (op, x, x, tmp))

    def dpp_reduce16(op, x, n=4):
        pats = ["quad_perm:[1,0,3,2]", "quad_perm:[2,3,0,1]", "row_half_mirror", "row_mirror"]
        for p in pats[:n]:
            a.i("%s_dpp v%d, v%d, v%d %s row_mask:0xf bank_mask:0xf" % (op, x, x, x, p))

    def lds_spin(off, val, va, vd, sleep=1):
        l0, l1 = a.newlabel("L_sp"), a.newlabel("L_sp")
        a.i("v_mov_b32 v%d, %d" % (va, CNT))
        a.i("s_mov_b32 s%d, %d" % (sSPIN, SPIN_L))
        a.label(l0)
        a.i("ds_read_b32 v%d, v%d offset:%d" % (vd, va, off))
        a.i("s_waitcnt lgkmcnt(0)")
        a.i("v_cmp_ne_u32 vcc, %d, v%d" % (val, vd))
        a.br("s_cbranch_vccz %s" % l1)
        if sleep:
            a.i("s_sleep %d" % sleep)
        a.i("s_sub_u32 s%d, s%d, 1" % (sSPIN, sSPIN))
        a.i("s_cmp_lg_u32 s%d, 0" % sSPIN)
        a.br("s_cbranch_scc1 %s" % l0)
        a.label(l1)

    def lds_inc(off, va, vd):
        a.i("v_mov_b32 v%d, %d" % (va, CNT))
        a.i("v_mov_b32 v%d, 1" % vd)
        a.i("s_mov_b64 exec, 1")
        a.i("ds_add_u32 v%d, v%d offset:%d" % (va, vd, off))
        a.i("s_mov_b64 exec, -1")

    def vgather(loads, t0, t1, between=None):
        ltop, ldone = a.newlabel("L_vg"), a.newlabel("L_vg")
        for dst, ins in loads:
            for x in ins:
                a.i(x)
        if between:
            between()
        a.i("s_mov_b32 s%d, %d" % (sSPIN, SPIN_G))
        a.label(ltop)
        a.i("s_waitcnt vmcnt(0)")
        regs = [dst + e for dst, _ in loads for e in range(4)]
        a.i("v_max3_u32 v%d, v%d, v%d, v%d" % (t0, regs[0], regs[1], regs[2]))
        a.i("v_max3_u32 v%d, v%d, v%d, v%d" % (t1, regs[3], regs[4], regs[5]))
        k = 6
        while k + 4 <= len(regs):
            a.i("v_max3_u32 v%d, v%d, v%d, v%d" % (t0, t0, regs[k], regs[k + 1]))
            a.i("v_max3_u32 v%d, v%d, v%d, v%d" % (t1, t1, regs[k + 2], regs[k + 3]))
            k += 4
        assert len(regs) - k == 2
        a.i("v_max3_u32 v%d, v%d, v%d, v%d" % (t0, t0, regs[k], regs[k + 1]))
        a.i("v_max_u32 v%d, v%d, v%d" % (t0, t0, t1))
        a.i("v_cmp_eq_u32 vcc, -1, v%d" % t0)
        a.br("s_cbranch_vccz %s" % ldone)
        a.i("s_sub_u32 s%d, s%d, 1" % (sSPIN, sSPIN))
        a.i("s_cmp_eq_u32 s%d, 0" % sSPIN)
        a.br("s_cbranch_scc1 %s" % ldone)
        for dst, ins in loads:
            lsk = a.newlabel("L_vs")
            a.i("v_max3_u32 v%d, v%d, v%d, v%d" % (t0, dst, dst + 1, dst + 2))
            a.i("v_max_u32 v%d, v%d, v%d" % (t0, t0, dst + 3))
            a.i("v_cmp_eq_u32 vcc, -1, v%d" % t0)
            a.br("s_cbranch_vccz %s" % lsk)
            for x in ins:
                a.i(x)
            a.label(lsk)
        a.br("s_branch %s" % ltop)
        a.label(ldone)

    def pub_addr(vq, vg, t0, t1):
        a.i("v_and_b32 v%d, 15, v0" % t0)
        a.i("v_lshrrev_b32 v%d, 4, v0" % t1)
        a.i("v_lshlrev_b32 v%d, 14, v%d" % (vq, t1))
        a.i("v_lshl_add_u32 v%d, v%d, 4, v%d" % (vq, t0, vq))
        a.i("v_mul_u32_u24 v%d, 14336, v%d" % (vg, t1))
        a.i("v_lshl_add_u32 v%d, v%d, 4, v%d" % (vg, t0, vg))
        a.i("s_cmp_lt_u32 s2, 224")
        a.i("s_cselect_b32 s4, 0, 0x7ffffff0")
        a.i("v_or_b32 v%d, s4, v%d" % (vg, vg))
        a.i("s_lshl_b32 s4, s%d, 17" % sCB)
        a.i("s_lshl_b32 s5, s%d, 8" % sKS)
        a.i("s_add_u32 s4, s4, s5")
        a.i("s_add_u32 s4, s4, 0x%x" % QP)
        a.i("s_mul_i32 s5, s%d, %d" % (sSG, 8 * 14336))
        a.i("s_lshl_b32 s6, s%d, 8" % sCG)
        a.i("s_add_u32 s5, s5, s6")
        a.i("s_add_u32 s6, s5, 0x%x" % UP)
        a.i("s_add_u32 s5, s5, 0x%x" % GP)

    hdr = open("parallel_sum__gqa_block_cached__glu_gated_geglu__decode.s.ref").read().split("\n")
    for l in hdr:
        if l.startswith("; @launch"):
            break
        a.raw(l)
    a.raw("; @launch grid=(256,1,1) block=(1024,1,1) lds=%d" % LDS_SIZE)
    a.raw('.amdgcn_target "amdgcn-amd-amdhsa--gfx950"')
    a.raw(".text")
    a.raw(".globl " + NAME)
    a.raw(".p2align 8")
    a.raw(".type %s,@function" % NAME)
    a.raw(NAME + ":")

    a.i("s_cmp_ge_u32 s2, 256")
    a.i("s_cbranch_scc1 L_end")
    a.i("s_load_dwordx16 s[16:31], s[0:1], 0")
    a.i("s_load_dwordx8 s[32:39], s[0:1], 64")
    a.i("v_lshrrev_b32 v1, 6, v0")
    a.i("v_readfirstlane_b32 s3, v1")
    a.i("v_and_b32 v0, 63, v0")
    if diag:
        a.i("v_mov_b32 v%d, 0" % vSTAMP)
    a.i("s_and_b32 s4, s2, 31")
    a.i("s_lshr_b32 s%d, s2, 5" % sS)
    a.i("s_lshl_b32 s%d, s4, 3" % sCH)
    a.i("s_add_u32 s%d, s%d, s%d" % (sCH, sCH, sS))
    a.i("s_lshr_b32 s%d, s4, 2" % sB)
    a.i("s_and_b32 s%d, s4, 3" % sKVH)
    a.i("s_lshr_b32 s%d, s2, 6" % sCB)
    a.i("s_and_b32 s%d, s2, 63" % sKS)
    a.i("s_mul_i32 s%d, s2, 1171" % sSG)
    a.i("s_lshr_b32 s%d, s%d, 16" % (sSG, sSG))
    a.i("s_mul_i32 s5, s%d, 56" % sSG)
    a.i("s_sub_u32 s%d, s2, s5" % sCG)
    a.i("s_sub_u32 s8, s3, 4")
    a.i("s_lshr_b32 s9, s8, 2")
    a.i("s_and_b32 s10, s8, 3")
    a.i("s_movk_i32 s%d, 7168" % sPITCH)
    a.i("s_cmp_eq_u32 s9, 0")
    a.i("s_cselect_b32 s%d, 8192, s%d" % (sPITCH, sPITCH))
    a.i("s_cselect_b32 s11, s%d, s%d" % (sCB, sSG))
    a.i("s_cselect_b32 s12, s%d, s%d" % (sKS, sCG))
    a.i("s_lshl_b32 s%d, s11, 8" % sK0)
    a.i("s_lshl_b32 s13, s10, 6")
    a.i("s_add_u32 s%d, s%d, s13" % (sK0, sK0))
    a.i("s_mul_i32 s%d, s%d, s%d" % (sW1OFF, sK0, sPITCH))
    a.i("s_lshl_b32 s12, s12, 7")
    a.i("s_add_u32 s%d, s%d, s12" % (sW1OFF, sW1OFF))
    a.i("s_lshl_b32 s14, s%d, 18" % sCH)
    a.i("v_lshrrev_b32 v3, 4, v0")
    a.i("v_lshlrev_b32 v3, 3, v3")
    a.i("v_bfe_u32 v4, v0, 3, 1")
    a.i("v_lshl_add_u32 v3, v4, 5, v3")
    a.i("v_mul_lo_u32 v3, v3, s%d" % sPITCH)
    a.i("v_and_b32 v4, 7, v0")
    a.i("v_lshl_add_u32 v3, v4, 4, v3")
    a.i("v_lshrrev_b32 v5, 5, v0")
    a.i("v_lshlrev_b32 v5, 11, v5")
    a.i("v_and_b32 v4, 31, v0")
    a.i("v_lshl_add_u32 v5, v4, 4, v5")
    a.i("s_lshl_b32 s5, s3, 12")
    a.i("s_lshr_b32 s6, s2, 2")
    a.i("s_lshl_b32 s6, s6, 7")
    a.i("s_and_b32 s7, s2, 3")
    a.i("s_lshl_b32 s7, s7, 2")
    a.i("s_add_u32 s6, s6, s7")
    a.i("s_add_u32 s%d, s6, 0x%x" % (sMBX, MB))
    a.i("s_waitcnt lgkmcnt(0)")
    srd(sX, 16, 16384)
    srd(sWS, 38, WS_SIZE)
    a.i("s_cmp_eq_u32 s9, 1")
    a.i("s_cselect_b32 s%d, s28, s30" % sW1)
    a.i("s_cselect_b32 s%d, s29, s31" % (sW1 + 1))
    a.i("s_cmp_lt_u32 s2, 224")
    a.i("s_cselect_b32 s%d, 0x700000, 0" % (sW1 + 2))
    a.i("s_cmp_eq_u32 s9, 0")
    a.i("s_cselect_b32 s%d, s22, s%d" % (sW1, sW1))
    a.i("s_cselect_b32 s%d, s23, s%d" % (sW1 + 1, sW1 + 1))
    a.i("s_cselect_b32 s%d, 0x800000, s%d" % (sW1 + 2, sW1 + 2))
    a.i("s_and_b32 s%d, s%d, 0xffff" % (sW1 + 1, sW1 + 1))
    a.i("s_mov_b32 s%d, 0x00020000" % (sW1 + 3))
    a.i("s_cmp_lt_u32 s3, 4")
    a.br("s_cbranch_scc1 L_xload")
    a.i("s_mov_b32 s4, s%d" % sW1OFF)
    for j in range(8):
        a.i("buffer_load_dwordx4 %s, v3, %s, s4 offen%s" % (v(12 + 4 * j, 4), s(sW1, 4), NTW))
        if j < 7:
            a.i("s_add_u32 s4, s4, s%d" % sPITCH)
    a.br("s_branch L_pro2")
    a.label("L_xload")
    a.i("s_mov_b32 s13, s5")
    a.i("s_cmp_lg_u32 s3, 0")
    a.br("s_cbranch_scc1 L_xload2")
    prio(3)
    for k in range(4):
        a.i("v_mov_b32 v%d, -1" % (60 + k))
    pub_addr(6, 7, 3, 4)
    for u in range(2):
        a.i("s_add_u32 s7, s4, %d" % (u * 4 * 16384))
        a.i("buffer_store_dwordx4 v[60:63], v6, %s, s7 offen sc1" % s(sWS, 4))
        for sg in (5, 6):
            a.i("s_add_u32 s7, s%d, %d" % (sg, u * 4 * 14336))
            a.i("buffer_store_dwordx4 v[60:63], v7, %s, s7 offen sc1" % s(sWS, 4))
    a.i("v_mov_b32 v3, s%d" % sMBX)
    a.i("s_mov_b64 exec, 1")
    a.i("buffer_store_dword v60, v3, %s, 0 offen sc1" % s(sWS, 4))
    a.i("s_mov_b64 exec, -1")
    a.label("L_xload2")
    for u in range(4):
        a.i("buffer_load_dwordx4 %s, v5, %s, s13 offen offset:%d" % (v(12 + 4 * u, 4), s(sX, 4), u * 512))
    a.label("L_pro2")
    srd(sK, 18, 0x40000, off_lo=14)
    srd(sV, 20, 0x40000, off_lo=14)
    srd(sOUT, 34, 16384)
    srd(sDBG, 36, 256)
    a.i("s_mov_b32 s15, 0x700000")
    a.i("s_cmp_ge_u32 s3, 12")
    a.i("s_cselect_b32 s%d, s24, s32" % sWT)
    a.i("s_cselect_b32 s%d, s25, s33" % (sWT + 1))
    a.i("s_cselect_b32 s%d, 0x800000, s15" % (sWT + 2))
    a.i("s_cselect_b32 s%d, %d, %d" % (sDMA, WO_MODE, WD_MODE))
    a.i("s_and_b32 s%d, s%d, 0xffff" % (sWT + 1, sWT + 1))
    a.i("s_mov_b32 s%d, 0x00020000" % (sWT + 3))
    a.i("s_cmp_lt_u32 s3, 8")
    a.i("s_cselect_b32 s%d, 0, s%d" % (sDMA, sDMA))
    a.i("s_mov_b32 s%d, 0x05040100" % sSELLO)
    a.i("s_mov_b32 s%d, 0x07060302" % sSELHI)
    a.i("s_mov_b32 s%d, 0x3fb8aa3b" % sLOG2E)
    a.i("s_mov_b32 s%d, 0x3db504f3" % sSCALE)
    for r, m in ((sMEV, 0x55555555), (sMOD, 0xaaaaaaaa), (sMLO, 0x33333333), (sMHI, 0xcccccccc)):
        a.i("s_mov_b32 s%d, 0x%x" % (r, m))
        a.i("s_mov_b32 s%d, 0x%x" % (r + 1, m))
    a.i("v_lshlrev_b32 v%d, 4, v0" % vOFFV)
    a.i("v_bfe_u32 v3, v0, 2, 2")
    a.i("v_lshlrev_b32 v3, 8, v3")
    a.i("v_lshrrev_b32 v4, 4, v0")
    a.i("v_lshl_add_u32 v3, v4, 6, v3")
    a.i("v_and_b32 v4, 3, v0")
    a.i("v_lshl_add_u32 v%d, v4, 4, v3" % vOFFK)
    a.i("s_lshl_b32 s6, s%d, 7" % sCH)
    a.i("s_add_u32 s6, s6, 0x%x" % ST)
    a.i("v_lshlrev_b32 v%d, 3, v0" % vST)
    a.i("v_add_u32 v%d, s6, v%d" % (vST, vST))
    a.i("v_cmp_gt_u32 vcc, 8, v0")
    a.i("v_mov_b32 v5, 0x7ffffff0")
    a.i("v_cndmask_b32 v%d, v5, v%d, vcc" % (vST, vST))
    a.i("s_lshl_b32 s6, s3, 14")
    a.i("s_add_u32 s7, s3, s2")
    for t in range(4):
        a.i("s_add_u32 s8, s7, %d" % t)
        a.i("s_and_b32 s8, s8, 3")
        a.i("s_lshl_b32 s8, s8, 12")
        a.i("s_add_u32 s%d, s6, s8" % (sT + t))
    stamp(0)

    def k_loads():
        for t in range(4):
            for r in range(4):
                a.i("buffer_load_dwordx4 %s, v%d, %s, s%d offen offset:%d%s" % (
                    v(KV + (t * 4 + r) * 4, 4), vOFFK, s(sK, 4), sT + t, r * 1024, NT))

    def v_loads():
        for t in range(4):
            for r in range(4):
                a.i("buffer_load_dwordx4 %s, v%d, %s, s%d offen offset:%d%s" % (
                    v(KV + (t * 4 + r) * 4, 4), vOFFV, s(sV, 4), sT + t, r * 1024, NT))

    def tw_dma():
        a.i("s_sub_u32 s4, s3, 8")
        a.i("s_and_b32 s5, s4, 1")
        a.i("s_lshr_b32 s6, s4, 1")
        a.i("s_and_b32 s7, s6, 1")
        a.i("s_movk_i32 s9, 16384")
        a.i("s_cmp_ge_u32 s3, 12")
        a.i("s_cselect_b32 s8, 64, 56")
        a.i("s_cselect_b32 s9, 4096, s9")
        a.i("s_mul_i32 s8, s8, s%d" % sKS)
        a.i("s_lshl_b32 s10, s7, 5")
        a.i("s_add_u32 s8, s8, s10")
        a.i("s_lshl_b32 s8, s8, 11")
        a.i("s_lshl_b32 s10, s%d, 9" % sCB)
        a.i("s_add_u32 s8, s8, s10")
        a.i("s_lshl_b32 s10, s5, 8")
        a.i("s_add_u32 s8, s8, s10")
        a.i("s_cmp_eq_u32 s6, 1")
        a.i("s_cselect_b32 s10, 2, 3")
        a.i("v_lshrrev_b32 v3, 4, v0")
        a.i("v_min_u32 v3, s10, v3")
        a.i("v_mul_lo_u32 v3, v3, s9")
        a.i("v_and_b32 v8, 15, v0")
        a.i("v_lshl_add_u32 v3, v8, 4, v3")
        a.i("s_lshl_b32 s10, s5, 2")
        a.i("s_add_u32 s10, s10, s6")
        a.i("s_lshl_b32 s10, s10, 13")
        a.i("s_add_u32 s10, s10, %d" % TW)
        for j in range(8):
            jr_wd = j * 2048
            jr_wo = (8 * (j & 3) + (j >> 2)) * 2048
            a.i("s_mov_b32 s11, %d" % jr_wd)
            a.i("s_cmp_ge_u32 s3, 12")
            a.i("s_cselect_b32 s11, %d, s11" % jr_wo)
            a.i("s_add_u32 s11, s11, s8")
            a.i("s_add_u32 m0, s10, %d" % (j * 1024))
            a.i("buffer_load_dwordx4 v3, %s, s11 offen%s lds" % (s(sWT, 4), NTT))

    a.i("s_cmp_ge_u32 s3, 4")
    a.br("s_cbranch_scc1 L_bar1")
    a.i("s_cmp_eq_u32 s3, 0")
    a.br("s_cbranch_scc1 L_comm_clear")
    NPF = cfg.get("npf", 6)
    if PF:
        a.i("s_cmp_lg_u32 s3, 1")
        a.br("s_cbranch_scc1 L_nopf")
        a.i("s_getpc_b64 s[6:7]")
        a.label("L_pc")
        a.i("v_lshlrev_b32 v3, 6, v0")
        for k in range(NPF):
            a.i("v_min_u32 v4, L_end-L_pc, v3")
            a.i("global_load_dword v%d, v4, s[6:7]" % (60 + (k & 3)))
            if k < NPF - 1:
                a.i("v_add_u32 v3, 4096, v3")
        a.i("s_waitcnt vmcnt(%d)" % NPF)
        a.br("s_branch L_ln")
        a.label("L_nopf")
    a.i("s_waitcnt vmcnt(0)")
    a.br("s_branch L_ln")
    a.label("L_comm_clear")
    a.i("s_lshl_b32 s6, s%d, 12" % sCH)
    a.i("s_add_u32 s6, s6, 0x%x" % OB1)
    for k in range(4):
        a.i("buffer_store_dwordx4 v[60:63], v%d, %s, s6 offen offset:%d sc1" % (vOFFV, s(sWS, 4), k * 1024))
    a.i("s_lshl_b32 s6, s2, 13")
    a.i("s_add_u32 s6, s6, 0x%x" % OB2)
    for k in range(4):
        a.i("buffer_store_dwordx4 v[60:63], v%d, %s, s6 offen offset:%d sc1" % (vOFFV, s(sWS, 4), k * 1024))
    a.i("s_add_u32 s6, s6, 4096")
    for k in range(4):
        a.i("buffer_store_dwordx4 v[60:63], v%d, %s, s6 offen offset:%d sc1" % (vOFFV, s(sWS, 4), k * 1024))
    a.i("buffer_store_dwordx2 v[60:61], v%d, %s, 0 offen sc1" % (vST, s(sWS, 4)))
    a.i("v_mov_b32 v5, %d" % CNT)
    for k in range(4):
        a.i("v_mov_b32 v%d, 0" % (6 + k))
    a.i("ds_write_b128 v5, v[6:9]")
    a.i("ds_write_b128 v5, v[6:9] offset:16")
    a.i("ds_write_b128 v5, v[6:9] offset:32")
    a.i("s_and_b32 s6, s2, 31")
    a.i("s_lshl_b32 s6, s6, 2")
    a.i("v_mov_b32 v3, s6")
    a.i("v_mov_b32 v4, 1")
    a.i("s_waitcnt vmcnt(13)")
    a.i("s_mov_b64 exec, 1")
    a.i("buffer_atomic_add v4, v3, %s, 0 offen sc1" % s(sDBG, 4))
    a.i("s_mov_b64 exec, -1")
    stamp(14)

    a.label("L_ln")
    for k in range(16):
        unpack_lo(28 + 2 * k, 12 + k)
        unpack_hi(29 + 2 * k, 12 + k)
    a.i("v_add_f32 v4, v28, v29")
    a.i("v_add_f32 v5, v30, v31")
    for k in range(4, 32, 2):
        a.i("v_add_f32 v4, v4, v%d" % (28 + k))
        a.i("v_add_f32 v5, v5, v%d" % (29 + k))
    a.i("v_add_f32 v4, v4, v5")
    dpp_reduce16("v_add_f32", 4)
    allreduce_rows("v_add_f32", 4, 5, do32=False)
    a.i("v_mul_f32 v4, 0x3a800000, v4")
    a.i("v_mov_b32 v6, 0")
    a.i("v_mov_b32 v7, 0")
    for k in range(0, 32, 2):
        a.i("v_sub_f32 v8, v%d, v4" % (28 + k))
        a.i("v_sub_f32 v9, v%d, v4" % (29 + k))
        a.i("v_fmac_f32 v6, v8, v8")
        a.i("v_fmac_f32 v7, v9, v9")
    a.i("v_add_f32 v6, v6, v7")
    dpp_reduce16("v_add_f32", 6)
    allreduce_rows("v_add_f32", 6, 7, do32=False)
    a.i("v_mul_f32 v6, 0x3a800000, v6")
    bf16_round_pair(5, 4, 6)
    unpack_lo(4, 5)
    unpack_hi(6, 5)
    a.i("v_add_f32 v6, 0x3727c5ac, v6")
    bf16_round_pair(6, 6, 6)
    unpack_lo(6, 6)
    a.i("v_sqrt_f32 v6, v6")
    bf16_round_pair(6, 6, 6)
    unpack_lo(6, 6)
    a.i("v_rcp_f32 v6, v6")
    for k in range(16):
        a.i("v_sub_f32 v8, v%d, v4" % (28 + 2 * k))
        a.i("v_sub_f32 v9, v%d, v4" % (29 + 2 * k))
        bf16_round_pair(8, 8, 9)
        unpack_hi(9, 8)
        unpack_lo(8, 8)
        a.i("v_mul_f32 v8, v8, v6")
        a.i("v_mul_f32 v9, v9, v6")
        bf16_round_pair(12 + k, 8, 9)
    a.i("v_lshrrev_b32 v4, 5, v0")
    a.i("s_lshl_b32 s5, s3, 1")
    a.i("v_add_u32 v4, s5, v4")
    a.i("v_mul_u32_u24 v4, 2064, v4")
    a.i("v_and_b32 v5, 31, v0")
    a.i("v_lshl_add_u32 v4, v5, 4, v4")
    for u in range(4):
        a.i("ds_write_b128 v4, %s offset:%d" % (v(12 + 4 * u, 4), XN + u * 512))
    a.i("s_waitcnt lgkmcnt(0)")

    a.label("L_bar1")
    a.i("s_barrier")
    stamp(1)
    a.i("s_cmp_eq_u32 s3, 0")
    a.br("s_cbranch_scc1 L_comm")
    a.i("s_cmp_lt_u32 s3, 4")
    a.br("s_cbranch_scc1 L_kload")
    a.i("v_and_b32 v3, 7, v0")
    a.i("v_mul_u32_u24 v3, 2064, v3")
    a.i("v_bfe_u32 v4, v0, 3, 1")
    a.i("v_lshl_add_u32 v3, v4, 6, v3")
    a.i("v_lshrrev_b32 v5, 4, v0")
    a.i("v_lshl_add_u32 v3, v5, 4, v3")
    a.i("s_lshl_b32 s4, s%d, 1" % sK0)
    a.i("s_and_b32 s4, s4, 2047")
    a.i("v_add_u32 v3, s4, v3")
    a.i("ds_read_b128 v[44:47], v3 offset:%d" % XN)
    a.i("v_lshrrev_b32 v6, 5, v0")
    a.i("s_lshl_b32 s5, s3, 1")
    a.i("s_sub_u32 s5, s5, 8")
    a.i("v_add_u32 v7, s5, v6")
    a.i("v_mul_u32_u24 v7, 2176, v7")
    a.i("v_and_b32 v8, 7, v0")
    a.i("v_mul_u32_u24 v8, 272, v8")
    a.i("v_add_u32 v7, v7, v8")
    a.i("v_bfe_u32 v8, v0, 4, 1")
    a.i("v_lshl_add_u32 v7, v8, 7, v7")
    a.i("v_add_u32 v7, %d, v7" % R1)
    a.i("v_cmp_eq_u32 vcc, v4, v6")
    a.i("v_mov_b32 v8, %d" % DUMP)
    a.i("v_cndmask_b32 v7, v8, v7, vcc")
    a.i("s_waitcnt vmcnt(0) lgkmcnt(0)")
    stamp(2)
    for q in range(4):
        A0 = KV + q * 16
        for p in range(4):
            a.i("v_perm_b32 v%d, v%d, v%d, s%d" % (A0 + p, 12 + (2 * p + 1) * 4 + q, 12 + (2 * p) * 4 + q, sSELLO))
        for p in range(4):
            a.i("v_perm_b32 v%d, v%d, v%d, s%d" % (A0 + 4 + p, 12 + (2 * p + 1) * 4 + q, 12 + (2 * p) * 4 + q, sSELHI))
        a.i("v_mfma_f32_16x16x32_bf16 %s, %s, v[44:47], 0" % (v(A0 + 8, 4), v(A0, 4)))
        a.i("v_mfma_f32_16x16x32_bf16 %s, %s, v[44:47], 0" % (v(A0 + 12, 4), v(A0 + 4, 4)))
    for q in range(4):
        A0 = KV + q * 16
        for r in range(4):
            a.i("ds_write2_b32 v7, v%d, v%d offset0:%d offset1:%d" % (A0 + 8 + r, A0 + 12 + r, 8 * r + 2 * q, 8 * r + 2 * q + 1))
    a.i("s_waitcnt lgkmcnt(0)")
    a.i("s_sub_u32 s8, s3, 4")
    a.i("s_lshr_b32 s9, s8, 2")
    a.i("s_lshl_b32 s8, s9, 2")
    a.i("s_add_u32 s8, s8, %d" % (CNT + C_P1))
    a.i("v_mov_b32 v3, s8")
    a.i("v_mov_b32 v4, 1")
    a.i("s_mov_b64 exec, 1")
    a.i("ds_add_rtn_u32 v5, v3, v4")
    a.i("s_mov_b64 exec, -1")
    a.i("s_waitcnt lgkmcnt(0)")
    a.i("v_readfirstlane_b32 s8, v5")
    a.i("s_cmp_lg_u32 s8, 3")
    a.br("s_cbranch_scc1 L_waitpub")
    prio(3)
    a.i("v_lshrrev_b32 v3, 4, v0")
    a.i("v_mul_u32_u24 v3, 272, v3")
    a.i("v_and_b32 v4, 15, v0")
    a.i("v_lshl_add_u32 v3, v4, 4, v3")
    a.i("s_mul_i32 s8, s9, %d" % (8 * 2176))
    a.i("s_add_u32 s8, s8, %d" % R1)
    a.i("v_add_u32 v3, s8, v3")
    for u in range(2):
        base = KV + u * 32
        for c in range(8):
            a.i("ds_read_b128 %s, v3 offset:%d" % (v(base + 4 * c, 4), c * 2176 + u * 4 * 272))
    pub_addr(6, 7, 4, 5)
    a.i("s_cmp_eq_u32 s9, 1")
    a.i("s_cselect_b32 s5, s5, s6")
    a.i("s_movk_i32 s10, %d" % (14336 * 2))
    a.i("s_cmp_eq_u32 s9, 0")
    a.i("s_cselect_b32 s4, s4, s5")
    a.i("s_cselect_b32 s10, 0x8000, s10")
    a.i("s_cselect_b64 vcc, -1, 0")
    a.i("s_lshl_b32 s10, s10, 1")
    a.i("v_cndmask_b32 v6, v7, v6, vcc")
    for u in range(2):
        base = KV + u * 32
        sb = 12 + u * 4
        a.i("s_waitcnt lgkmcnt(%d)" % (8 if u == 0 else 0))
        for c in (0, 2, 4, 6):
            for e in range(4):
                a.i("v_add_f32 v%d, v%d, v%d" % (base + 4 * c + e, base + 4 * c + e, base + 4 * c + 4 + e))
        for c in (0, 4):
            for e in range(4):
                a.i("v_add_f32 v%d, v%d, v%d" % (base + 4 * c + e, base + 4 * c + e, base + 4 * c + 8 + e))
        for e in range(4):
            a.i("v_add_f32 v%d, v%d, v%d" % (sb + e, base + e, base + 16 + e))
        for e in range(4):
            a.i("v_min_u32 v%d, -2, v%d" % (sb + e, sb + e))
        a.i("buffer_store_dwordx4 %s, v6, %s, s4 offen sc1" % (v(sb, 4), s(sWS, 4)))
        if u == 0:
            a.i("s_add_u32 s4, s4, s10")
    lds_inc(C_PUB, 3, 4)
    stamp(15)
    a.label("L_waitpub")
    if cfg.get("hold", 1):
        lds_spin(C_PUB, 3, 3, 4, sleep=1)
    a.label("L_kload")
    a.i("s_cmp_lg_u32 s2, %d" % ROOT)
    a.br("s_cbranch_scc1 L_kload2")
    lds_spin(C_BC, 1, 3, 4, sleep=1)
    a.label("L_kload2")
    prio(1)
    k_loads()
    prio(0)
    a.i("s_cmp_lg_u32 s%d, 1" % sDMA)
    a.br("s_cbranch_scc1 L_noearly")
    tw_dma()
    a.label("L_noearly")
    stamp(3)
    lds_spin(C_QRDY, 1, 3, 4, sleep=2)
    a.br("s_branch L_kpass")

    def root_bcast(off, val, tag):
        a.i("v_and_b32 v3, 31, v0")
        a.i("v_lshlrev_b32 v3, 2, v3")
        a.i("s_mov_b32 s%d, %d" % (sSPIN, SPIN_G))
        a.label(tag + "_p")
        a.i("buffer_load_dword v4, v3, %s, 0 offen offset:%d sc1" % (s(sDBG, 4), off))
        a.i("s_waitcnt vmcnt(0)")
        a.i("v_cmp_ne_u32 vcc, 8, v4")
        a.br("s_cbranch_vccz %s_d" % tag)
        a.i("s_sleep 2")
        a.i("s_sub_u32 s%d, s%d, 1" % (sSPIN, sSPIN))
        a.i("s_cmp_lg_u32 s%d, 0" % sSPIN)
        a.br("s_cbranch_scc1 %s_p" % tag)
        a.label(tag + "_d")
        for k in range(4):
            a.i("v_mov_b32 v%d, %d" % (60 + k, val))
        a.i("v_lshlrev_b32 v3, 7, v0")
        a.i("s_mov_b32 s4, 0x%x" % MB)
        a.i("buffer_store_dwordx4 v[60:63], v3, %s, s4 offen sc1" % s(sWS, 4))

    def mbox_wait(minval, tag):
        a.i("v_mov_b32 v3, s%d" % sMBX)
        a.i("s_mov_b32 s%d, %d" % (sSPIN, SPIN_G))
        a.label(tag + "_p")
        a.i("buffer_load_dword v4, v3, %s, 0 offen sc1" % s(sWS, 4))
        a.i("s_waitcnt vmcnt(0)")
        a.i("v_subrev_u32 v4, %d, v4" % minval)
        a.i("v_cmp_lt_u32 vcc, %d, v4" % (2 - minval))
        a.br("s_cbranch_vccz %s_d" % tag)
        a.i("s_sleep 2")
        a.i("s_sub_u32 s%d, s%d, 1" % (sSPIN, sSPIN))
        a.i("s_cmp_lg_u32 s%d, 0" % sSPIN)
        a.br("s_cbranch_scc1 %s_p" % tag)
        a.label(tag + "_d")

    a.label("L_comm")
    a.i("s_cmp_lg_u32 s2, %d" % ROOT)
    a.br("s_cbranch_scc1 L_notroot")
    root_bcast(0, 1, "L_rba")
    lds_inc(C_BC, 3, 4)
    a.br("s_branch L_poll1_done")
    a.label("L_notroot")
    mbox_wait(1, "L_mba")
    a.label("L_poll1_done")
    stamp(16)
    a.i("s_and_b32 s6, s2, 31")
    a.i("s_lshl_b32 s6, s6, 2")
    a.i("v_mov_b32 v3, s6")
    a.i("v_mov_b32 v4, 1")
    a.i("s_waitcnt vmcnt(1)")
    a.i("s_mov_b64 exec, 1")
    a.i("buffer_atomic_add v4, v3, %s, 0 offen offset:128 sc1" % s(sDBG, 4))
    a.i("s_mov_b64 exec, -1")
    stamp(3)
    lds_spin(C_PUB, 3, 3, 4, sleep=1)
    stamp(4)
    a.i("s_lshl_b32 s4, s%d, 14" % sB)
    a.i("s_lshl_b32 s5, s%d, 12" % sKVH)
    a.i("s_add_u32 s4, s4, s5")
    a.i("s_add_u32 s4, s4, 0x%x" % QP)
    for sp in range(1, 4):
        a.i("s_add_u32 s%d, s4, %d" % (4 + sp, sp * 8 * 16384))
    vgather([(KV + (sp * 4 + u) * 4, ["buffer_load_dwordx4 %s, v%d, %s, s%d offen offset:%d sc1" % (
        v(KV + (sp * 4 + u) * 4, 4), vOFFV, s(sWS, 4), 4 + sp, u * 1024)]) for sp in range(4) for u in range(4)], 5, 6)
    a.i("v_lshrrev_b32 v3, 5, v0")
    a.i("v_mul_u32_u24 v3, 272, v3")
    a.i("v_and_b32 v4, 31, v0")
    a.i("v_lshl_add_u32 v3, v4, 3, v3")
    for u in range(4):
        for e in range(4):
            r0 = KV + u * 4 + e
            a.i("v_add_f32 v%d, v%d, v%d" % (r0, r0, r0 + 16))
            a.i("v_add_f32 v%d, v%d, v%d" % (r0 + 32, r0 + 32, r0 + 48))
            a.i("v_add_f32 v%d, v%d, v%d" % (r0, r0, r0 + 32))
        bf16_round_pair(12 + 2 * u, KV + u * 4, KV + u * 4 + 1)
        bf16_round_pair(13 + 2 * u, KV + u * 4 + 2, KV + u * 4 + 3)
        a.i("ds_write_b64 v3, %s offset:%d" % (v(12 + 2 * u, 2), QL + u * 544))
    a.i("v_mov_b32 v8, %d" % CNT)
    a.i("v_mov_b32 v9, 1")
    a.i("s_waitcnt lgkmcnt(0)")
    a.i("ds_write_b32 v8, v9 offset:%d" % C_QRDY)
    stamp(5)
    a.i("v_and_b32 v3, 7, v0")
    a.i("v_mul_u32_u24 v3, 14336, v3")
    a.i("v_bfe_u32 v4, v0, 3, 1")
    a.i("v_lshl_add_u32 v3, v4, 7, v3")
    a.i("v_lshrrev_b32 v5, 4, v0")
    a.i("v_lshl_add_u32 v3, v5, 5, v3")
    a.i("v_cmp_le_u32 vcc, 56, v0")
    a.i("v_mov_b32 v6, 0x7ffffff0")
    a.i("v_cndmask_b32 v3, v3, v6, vcc")
    a.i("s_mul_i32 s4, s%d, 224" % sKS)
    a.i("s_add_u32 s8, s4, 0x%x" % UP)
    a.i("s_add_u32 s4, s4, 0x%x" % GP)
    for sp in range(1, 4):
        a.i("s_add_u32 s%d, s4, %d" % (4 + sp, sp * 8 * 14336))
        a.i("s_add_u32 s%d, s8, %d" % (8 + sp, sp * 8 * 14336))
    lds = []
    for sp in range(4):
        for hf in range(2):
            for m in range(2):
                d = KV + m * 32 + (sp * 2 + hf) * 4
                lds.append((d, ["buffer_load_dwordx4 %s, v3, %s, s%d offen offset:%d sc1" % (v(d, 4), s(sWS, 4), 4 + 4 * m + sp, hf * 16)]))
    vgather(lds, 6, 7)
    a.i("s_cmp_lg_u32 s2, %d" % ROOT)
    a.br("s_cbranch_scc1 L_notroot2")
    a.i("v_mov_b32 v8, v4")
    root_bcast(128, 2, "L_rbb")
    a.i("v_mov_b32 v4, v8")
    a.label("L_notroot2")
    G0, U0 = 28, 36
    for m, dst in ((0, G0), (1, U0)):
        for e in range(8):
            r0 = KV + m * 32 + e
            a.i("v_add_f32 v%d, v%d, v%d" % (r0, r0, r0 + 8))
            a.i("v_add_f32 v%d, v%d, v%d" % (r0 + 16, r0 + 16, r0 + 24))
            a.i("v_add_f32 v%d, v%d, v%d" % (dst + e, r0, r0 + 16))
    k_loads()
    a.i("s_mov_b32 s4, 0x3d372713")
    a.i("s_mov_b32 s5, 0xc0135761")
    for e in range(0, 8, 2):
        g0, g1, u0, u1 = G0 + e, G0 + e + 1, U0 + e, U0 + 1 + e
        bf16_round_pair(12, g0, g1)
        bf16_round_pair(13, u0, u1)
        unpack_lo(g0, 12)
        unpack_hi(g1, 12)
        unpack_lo(u0, 13)
        unpack_hi(u1, 13)
        for gg, tt in ((g0, 14), (g1, 15)):
            a.i("v_mul_f32 v%d, v%d, v%d" % (tt, gg, gg))
            a.i("v_mul_f32 v%d, s4, v%d" % (tt, tt))
            a.i("v_fma_f32 v%d, v%d, v%d, v%d" % (tt, tt, gg, gg))
            a.i("v_mul_f32 v%d, s5, v%d" % (tt, tt))
            a.i("v_exp_f32 v%d, v%d" % (tt, tt))
            a.i("v_add_f32 v%d, 1.0, v%d" % (tt, tt))
            a.i("v_rcp_f32 v%d, v%d" % (tt, tt))
            a.i("v_mul_f32 v%d, v%d, v%d" % (tt, tt, gg))
        bf16_round_pair(14, 14, 15)
        unpack_hi(15, 14)
        unpack_lo(14, 14)
        a.i("v_mul_f32 v14, v14, v%d" % u0)
        a.i("v_mul_f32 v15, v15, v%d" % u1)
        bf16_round_pair(16 + e // 2, 14, 15)
    a.i("v_and_b32 v3, 7, v0")
    a.i("v_lshlrev_b32 v3, 6, v3")
    a.i("v_lshl_add_u32 v3, v4, 9, v3")
    a.i("v_lshl_add_u32 v3, v5, 4, v3")
    a.i("ds_write_b128 v3, v[16:19] offset:%d" % HL)
    prio(0)

    a.label("L_kpass")
    stamp(6)
    Q, S, T, Y0 = 12, 28, 44, 60
    a.i("v_and_b32 v3, 7, v0")
    a.i("v_mul_u32_u24 v3, 272, v3")
    a.i("v_lshrrev_b32 v4, 4, v0")
    a.i("v_lshl_add_u32 v3, v4, 6, v3")
    for j in range(4):
        a.i("ds_read_b128 %s, v3 offset:%d" % (v(Q + 4 * j, 4), QL + j * 16))
    DPPA = "quad_perm:[1,0,3,2] row_mask:0xf bank_mask:0xf"
    DPPB = "quad_perm:[2,3,0,1] row_mask:0xf bank_mask:0xf"

    def dma_wait(n, mode):
        if WD_MODE != mode and WO_MODE != mode:
            a.i("s_waitcnt vmcnt(%d)" % n)
            return
        l1, l2 = a.newlabel("L_w"), a.newlabel("L_w")
        a.i("s_cmp_eq_u32 s%d, %d" % (sDMA, mode))
        a.br("s_cbranch_scc1 %s" % l1)
        a.i("s_waitcnt vmcnt(%d)" % n)
        a.label(l1)
        a.i("s_waitcnt vmcnt(%d)" % (n + 8))

    for t in range(4):
        X = KV + t * 16
        dma_wait(12 - 4 * t, 1)
        a.i("s_mov_b64 vcc, s[%d:%d]" % (sMEV, sMEV + 1))
        for pr in (0, 2):
            for e in range(4):
                a.i("v_cndmask_b32_dpp v%d, v%d, v%d, vcc %s" % (T + pr * 4 + e, X + (pr + 1) * 4 + e, X + pr * 4 + e, DPPA))
        a.i("s_mov_b64 vcc, s[%d:%d]" % (sMOD, sMOD + 1))
        for pr in (0, 2):
            for e in range(4):
                a.i("v_cndmask_b32_dpp v%d, v%d, v%d, vcc %s" % (T + (pr + 1) * 4 + e, X + pr * 4 + e, X + (pr + 1) * 4 + e, DPPA))
        a.i("s_mov_b64 vcc, s[%d:%d]" % (sMLO, sMLO + 1))
        for e in range(4):
            a.i("v_cndmask_b32_dpp v%d, v%d, v%d, vcc %s" % (X + e, T + 8 + e, T + e, DPPB))
        for e in range(4):
            a.i("v_cndmask_b32_dpp v%d, v%d, v%d, vcc %s" % (X + 4 + e, T + 12 + e, T + 4 + e, DPPB))
        a.i("s_mov_b64 vcc, s[%d:%d]" % (sMHI, sMHI + 1))
        for e in range(4):
            a.i("v_cndmask_b32_dpp v%d, v%d, v%d, vcc %s" % (X + 8 + e, T + e, T + 8 + e, DPPB))
        for e in range(4):
            a.i("v_cndmask_b32_dpp v%d, v%d, v%d, vcc %s" % (X + 12 + e, T + 4 + e, T + 12 + e, DPPB))
        if t == 0:
            a.i("s_waitcnt lgkmcnt(0)")
        for j in range(4):
            a.i("v_mfma_f32_16x16x32_bf16 %s, %s, %s, %s" % (
                v(S + 4 * t, 4), v(X + 4 * j, 4), v(Q + 4 * j, 4), "0" if j == 0 else v(S + 4 * t, 4)))

    for k in range(0, 16, 2):
        bf16_round_pair(44, S + k, S + k + 1)
        unpack_lo(S + k, 44)
        unpack_hi(S + k + 1, 44)
        a.i("v_mul_f32 v%d, s%d, v%d" % (S + k, sSCALE, S + k))
        a.i("v_mul_f32 v%d, s%d, v%d" % (S + k + 1, sSCALE, S + k + 1))
        bf16_round_pair(44, S + k, S + k + 1)
        unpack_lo(S + k, 44)
        unpack_hi(S + k + 1, 44)
    a.i("v_max3_f32 v4, v%d, v%d, v%d" % (S, S + 1, S + 2))
    for k in range(3, 15, 2):
        a.i("v_max3_f32 v4, v4, v%d, v%d" % (S + k, S + k + 1))
    a.i("v_max_f32 v4, v4, v%d" % (S + 15))
    allreduce_rows("v_max_f32", 4, 5)
    a.i("v_mul_f32 v6, s%d, v4" % sLOG2E)
    for k in range(16):
        a.i("v_fma_f32 v%d, v%d, s%d, -v6" % (S + k, S + k, sLOG2E))
    for k in range(16):
        a.i("v_exp_f32 v%d, v%d" % (S + k, S + k))
    a.i("v_add_f32 v5, v%d, v%d" % (S, S + 1))
    a.i("v_add_f32 v7, v%d, v%d" % (S + 2, S + 3))
    for k in range(4, 16, 2):
        a.i("v_add_f32 v5, v5, v%d" % (S + k))
        a.i("v_add_f32 v7, v7, v%d" % (S + k + 1))
    a.i("v_add_f32 v5, v5, v7")
    allreduce_rows("v_add_f32", 5, 7)
    a.i("v_and_b32 v3, 7, v0")
    a.i("v_lshlrev_b32 v3, 6, v3")
    a.i("s_lshl_b32 s4, s3, 2")
    a.i("v_add_u32 v7, s4, v3")
    a.i("ds_write_b32 v7, v4 offset:%d" % SM)
    a.i("ds_write_b32 v7, v5 offset:%d" % SL)
    a.i("v_lshrrev_b32 v8, 4, v0")
    a.i("v_lshl_add_u32 v9, v8, 4, v3")
    lds_inc(C_M, 4, 5)
    stamp(7)
    v_loads()
    a.i("s_cmp_lg_u32 s%d, 2" % sDMA)
    a.br("s_cbranch_scc1 L_nolate")
    tw_dma()
    a.label("L_nolate")
    stamp(8)
    lds_spin(C_M, 16, 4, 5, sleep=1)
    a.i("ds_read_b128 v[44:47], v9 offset:%d" % SM)
    a.i("ds_read_b128 v[48:51], v9 offset:%d" % SL)
    a.i("s_waitcnt lgkmcnt(0)")
    a.i("v_max3_f32 v7, v44, v45, v46")
    a.i("v_max_f32 v7, v7, v47")
    allreduce_rows("v_max_f32", 7, 8)
    a.i("v_mul_f32 v8, s%d, v7" % sLOG2E)
    a.i("v_sub_f32 v9, v6, v8")
    a.i("v_exp_f32 v9, v9")
    for k in range(16):
        a.i("v_mul_f32 v%d, v9, v%d" % (S + k, S + k))
    for p in range(8):
        bf16_round_pair(S + p, S + 2 * p, S + 2 * p + 1)
    P = S
    for k in range(4):
        a.i("v_fma_f32 v%d, v%d, s%d, -v8" % (44 + k, 44 + k, sLOG2E))
    for k in range(4):
        a.i("v_exp_f32 v%d, v%d" % (44 + k, 44 + k))
    a.i("v_mul_f32 v52, v44, v48")
    for k in range(1, 4):
        a.i("v_fmac_f32 v52, v%d, v%d" % (44 + k, 48 + k))
    allreduce_rows("v_add_f32", 52, 53)
    a.i("v_min_u32 v60, -2, v7")
    a.i("v_min_u32 v61, -2, v52")

    D = [12, 16, 20, 24, 44, 48, 52, 56]
    PT = 36

    def pv_step(u):
        for q in range(4):
            for p in range(4):
                a.i("v_perm_b32 v%d, v%d, v%d, s%d" % (PT + p, KV + (8 * u + 2 * p + 1) * 4 + q, KV + (8 * u + 2 * p) * 4 + q, sSELLO))
            for p in range(4):
                a.i("v_perm_b32 v%d, v%d, v%d, s%d" % (PT + 4 + p, KV + (8 * u + 2 * p + 1) * 4 + q, KV + (8 * u + 2 * p) * 4 + q, sSELHI))
            for h in range(2):
                i = 2 * q + h
                a.i("v_mfma_f32_16x16x32_bf16 %s, %s, %s, %s" % (
                    v(D[i], 4), v(PT + 4 * h, 4), v(P + 4 * u, 4), "0" if u == 0 else v(D[i], 4)))

    a.i("v_and_b32 v3, 15, v0")
    a.i("v_mul_u32_u24 v4, 528, v3")
    a.i("v_lshrrev_b32 v5, 4, v0")
    a.i("v_lshl_add_u32 v4, v5, 7, v4")
    a.i("s_mul_i32 s4, s3, 4224")
    a.i("s_add_u32 s4, s4, %d" % ORED)
    a.i("v_add_u32 v4, s4, v4")
    a.i("v_cmp_gt_u32 vcc, 8, v3")
    a.i("v_mov_b32 v5, %d" % DUMP)
    a.i("v_cndmask_b32 v4, v5, v4, vcc")
    dma_wait(8, 2)
    pv_step(0)
    dma_wait(0, 2)
    stamp(9)
    pv_step(1)
    for i in range(8):
        a.i("ds_write_b128 v4, %s offset:%d" % (v(D[i], 4), i * 16))
    a.i("s_cmp_lg_u32 s3, 0")
    a.br("s_cbranch_scc1 L_nombb")
    mbox_wait(2, "L_mbb")
    a.label("L_nombb")
    a.i("s_waitcnt lgkmcnt(0)")
    a.i("s_barrier")
    stamp(10)
    a.i("s_cmp_ge_u32 s3, 8")
    a.br("s_cbranch_scc1 L_dmawave")
    prio(3)
    a.i("s_cmp_ge_u32 s3, 4")
    a.br("s_cbranch_scc1 L_reducer")
    a.i("s_cmp_eq_u32 s3, 3")
    a.br("s_cbranch_scc1 L_final")
    a.i("s_cmp_eq_u32 s3, 0")
    a.br("s_cbranch_scc1 L_gather")
    a.br("s_branch L_tail")

    a.label("L_reducer")
    a.i("v_lshrrev_b32 v3, 5, v0")
    a.i("s_sub_u32 s6, s3, 4")
    a.i("s_lshl_b32 s4, s6, 1")
    a.i("v_add_u32 v3, s4, v3")
    a.i("v_mul_u32_u24 v3, 528, v3")
    a.i("v_and_b32 v4, 31, v0")
    a.i("v_lshl_add_u32 v3, v4, 4, v3")
    a.i("v_add_u32 v3, %d, v3" % ORED)
    for w2 in range(16):
        a.i("ds_read_b128 %s, v3 offset:%d" % (v(KV + 4 * w2, 4), w2 * 4224))
    a.i("s_lshl_b32 s4, s%d, 12" % sCH)
    a.i("s_lshl_b32 s5, s6, 10")
    a.i("s_add_u32 s4, s4, s5")
    a.i("s_add_u32 s4, s4, 0x%x" % OB1)
    a.i("s_waitcnt lgkmcnt(8)")
    for w2 in range(0, 8, 2):
        for e in range(4):
            a.i("v_add_f32 v%d, v%d, v%d" % (KV + 4 * w2 + e, KV + 4 * w2 + e, KV + 4 * w2 + 4 + e))
    for w2 in (0, 4):
        for e in range(4):
            a.i("v_add_f32 v%d, v%d, v%d" % (KV + 4 * w2 + e, KV + 4 * w2 + e, KV + 4 * w2 + 8 + e))
    for e in range(4):
        a.i("v_add_f32 v%d, v%d, v%d" % (KV + e, KV + e, KV + 16 + e))
    a.i("s_waitcnt lgkmcnt(0)")
    for w2 in range(8, 16, 2):
        for e in range(4):
            a.i("v_add_f32 v%d, v%d, v%d" % (KV + 4 * w2 + e, KV + 4 * w2 + e, KV + 4 * w2 + 4 + e))
    for w2 in (8, 12):
        for e in range(4):
            a.i("v_add_f32 v%d, v%d, v%d" % (KV + 4 * w2 + e, KV + 4 * w2 + e, KV + 4 * w2 + 8 + e))
    for e in range(4):
        a.i("v_add_f32 v%d, v%d, v%d" % (KV + 32 + e, KV + 32 + e, KV + 48 + e))
    for e in range(4):
        a.i("v_add_f32 v%d, v%d, v%d" % (KV + e, KV + e, KV + 32 + e))
    for e in range(4):
        a.i("v_min_u32 v%d, -2, v%d" % (KV + e, KV + e))
    a.i("buffer_store_dwordx4 %s, v%d, %s, s4 offen sc1" % (v(KV, 4), vOFFV, s(sWS, 4)))
    stamp(11)
    a.br("s_branch L_exit")

    a.label("L_dmawave")
    a.i("s_waitcnt vmcnt(0)")
    lds_inc(C_DMA, 3, 4)
    stamp(11)
    a.br("s_branch L_exit")

    a.label("L_gather")
    a.i("s_lshr_b32 s4, s%d, 1" % sKS)
    a.i("s_lshr_b32 s6, s4, 3")
    a.i("s_lshl_b32 s5, s6, 10")
    a.i("s_and_b32 s7, s4, 7")
    a.i("s_lshl_b32 s7, s7, 3")
    a.i("s_add_u32 s5, s5, s7")
    a.i("s_add_u32 s5, s5, 0x%x" % ST)
    a.i("v_lshrrev_b32 v3, 3, v0")
    a.i("v_lshlrev_b32 v3, 12, v3")
    a.i("v_and_b32 v4, 7, v0")
    a.i("v_lshl_add_u32 v3, v4, 7, v3")
    a.i("v_lshrrev_b32 v7, 4, v0")
    a.i("v_lshlrev_b32 v7, 17, v7")
    a.i("v_and_b32 v8, 15, v0")
    a.i("v_lshl_add_u32 v7, v8, 4, v7")
    a.i("s_lshl_b32 s6, s6, 15")
    a.i("s_and_b32 s7, s%d, 15" % sKS)
    a.i("s_lshl_b32 s7, s7, 8")
    a.i("s_add_u32 s6, s6, s7")
    a.i("s_add_u32 s6, s6, 0x%x" % OB1)
    a.i("s_mov_b32 s%d, %d" % (sSPIN, SPIN_G))
    a.label("L_poll_st")
    a.i("buffer_load_dwordx2 v[4:5], v3, %s, s5 offen sc1" % s(sWS, 4))
    a.i("s_waitcnt vmcnt(0)")
    a.i("v_max_u32 v6, v4, v5")
    a.i("v_cmp_eq_u32 vcc, -1, v6")
    a.br("s_cbranch_vccz L_poll_st_done")
    a.i("s_sleep 1")
    a.i("s_sub_u32 s%d, s%d, 1" % (sSPIN, sSPIN))
    a.i("s_cmp_lg_u32 s%d, 0" % sSPIN)
    a.br("s_cbranch_scc1 L_poll_st")
    a.label("L_poll_st_done")
    stamp(11)

    def gather_loads():
        for bh in range(2):
            for sp in range(8):
                a.i("s_add_u32 s7, s6, %d" % (bh * 4 * 32 * 4096 + sp * 4096))
                a.i("buffer_load_dwordx4 %s, v7, %s, s7 offen sc1" % (v(KV + (bh * 8 + sp) * 4, 4), s(sWS, 4)))

    gather_loads()
    a.i("v_mov_b32 v6, v4")
    dpp_reduce16("v_max_f32", 6, n=3)
    a.i("v_sub_f32 v6, v4, v6")
    a.i("v_mul_f32 v6, s%d, v6" % sLOG2E)
    a.i("v_exp_f32 v6, v6")
    a.i("v_mul_f32 v9, v6, v5")
    dpp_reduce16("v_add_f32", 9, n=3)
    a.i("v_rcp_f32 v9, v9")
    a.i("v_mul_f32 v6, v6, v9")
    a.i("v_lshlrev_b32 v3, 2, v0")
    a.i("ds_write_b32 v3, v6 offset:%d" % FL)
    a.i("v_lshrrev_b32 v3, 4, v0")
    a.i("v_lshlrev_b32 v3, 5, v3")
    a.i("s_waitcnt lgkmcnt(0)")
    for bh in range(2):
        for hf in range(2):
            a.i("ds_read_b128 %s, v3 offset:%d" % (v(12 + bh * 8 + hf * 4, 4), FL + bh * 128 + hf * 16))
    a.i("s_mov_b32 s%d, %d" % (sSPIN, SPIN_G))
    a.label("L_poll_o")
    a.i("s_waitcnt vmcnt(0)")
    a.i("v_max3_u32 v4, v%d, v%d, v%d" % (KV, KV + 1, KV + 2))
    a.i("v_max3_u32 v5, v%d, v%d, v%d" % (KV + 3, KV + 4, KV + 5))
    for k in range(6, 62, 4):
        a.i("v_max3_u32 v4, v4, v%d, v%d" % (KV + k, KV + k + 1))
        a.i("v_max3_u32 v5, v5, v%d, v%d" % (KV + k + 2, KV + k + 3))
    a.i("v_max3_u32 v4, v4, v%d, v%d" % (KV + 62, KV + 63))
    a.i("v_max_u32 v4, v4, v5")
    a.i("v_cmp_eq_u32 vcc, -1, v4")
    a.br("s_cbranch_vccz L_poll_o_done")
    a.i("s_sub_u32 s%d, s%d, 1" % (sSPIN, sSPIN))
    a.i("s_cmp_eq_u32 s%d, 0" % sSPIN)
    a.br("s_cbranch_scc1 L_poll_o_done")
    gather_loads()
    a.br("s_branch L_poll_o")
    a.label("L_poll_o_done")
    stamp(12)
    a.i("s_waitcnt lgkmcnt(0)")
    for bh in range(2):
        for e in range(4):
            a.i("v_mul_f32 v%d, v%d, v%d" % (28 + bh * 4 + e, 12 + bh * 8, KV + bh * 32 + e))
        for sp in range(1, 8):
            for e in range(4):
                a.i("v_fmac_f32 v%d, v%d, v%d" % (28 + bh * 4 + e, 12 + bh * 8 + sp, KV + (bh * 8 + sp) * 4 + e))
    a.i("v_bfe_u32 v3, v0, 3, 1")
    a.i("v_lshlrev_b32 v3, 9, v3")
    a.i("v_lshrrev_b32 v4, 4, v0")
    a.i("v_lshl_add_u32 v3, v4, 6, v3")
    a.i("v_and_b32 v4, 7, v0")
    a.i("v_lshl_add_u32 v3, v4, 3, v3")
    for bh in range(2):
        bf16_round_pair(36 + 2 * bh, 28 + bh * 4, 29 + bh * 4)
        bf16_round_pair(37 + 2 * bh, 30 + bh * 4, 31 + bh * 4)
        a.i("ds_write_b64 v3, %s offset:%d" % (v(36 + 2 * bh, 2), OL + bh * 256))
    a.i("v_mov_b32 v3, %d" % CNT)
    a.i("v_mov_b32 v4, 1")
    a.i("ds_write_b32 v3, v4 offset:%d" % C_ORDY)
    stamp(13)
    a.br("s_branch L_exit")

    a.label("L_tail")
    lds_spin(C_DMA, 8, 3, 4, sleep=1)
    stamp(11)
    a.i("s_sub_u32 s4, s3, 1")
    a.i("s_lshl_b32 s5, s4, 15")
    a.i("s_add_u32 s5, s5, %d" % TW)
    a.i("v_add_u32 v5, s5, v%d" % vOFFV)
    a.i("v_and_b32 v6, 7, v0")
    a.i("v_lshlrev_b32 v6, 6, v6")
    a.i("v_lshrrev_b32 v7, 4, v0")
    a.i("v_lshl_add_u32 v6, v7, 4, v6")
    a.i("ds_read_b128 v[28:31], v6 offset:%d" % HL)
    a.i("ds_read_b128 v[32:35], v6 offset:%d" % (HL + 512))
    for st in range(2):
        for j in range(8):
            a.i("ds_read_b128 %s, v5 offset:%d" % (v(KV + (st * 8 + j) * 4, 4), st * 8192 + j * 1024))
    for st in range(2):
        a.i("s_waitcnt lgkmcnt(%d)" % (8 if st == 0 else 0))
        for q in range(4):
            for p in range(4):
                a.i("v_perm_b32 v%d, v%d, v%d, s%d" % (PT + p, KV + (8 * st + 2 * p + 1) * 4 + q, KV + (8 * st + 2 * p) * 4 + q, sSELLO))
            for p in range(4):
                a.i("v_perm_b32 v%d, v%d, v%d, s%d" % (PT + 4 + p, KV + (8 * st + 2 * p + 1) * 4 + q, KV + (8 * st + 2 * p) * 4 + q, sSELHI))
            for h in range(2):
                i = 2 * q + h
                a.i("v_mfma_f32_16x16x32_bf16 %s, %s, %s, %s" % (
                    v(D[i], 4), v(28 + 4 * st, 4), v(PT + 4 * h, 4), "0" if st == 0 else v(D[i], 4)))
    for st in range(2):
        for j in range(8):
            a.i("ds_read_b128 %s, v5 offset:%d" % (v(KV + (st * 8 + j) * 4, 4), (2 + st) * 8192 + j * 1024))
    lds_spin(C_ORDY, 1, 3, 4, sleep=0)
    a.i("ds_read_b128 v[28:31], v6 offset:%d" % OL)
    a.i("ds_read_b128 v[32:35], v6 offset:%d" % (OL + 512))
    for st in range(2):
        for q in range(4):
            for p in range(4):
                a.i("v_perm_b32 v%d, v%d, v%d, s%d" % (PT + p, KV + (8 * st + 2 * p + 1) * 4 + q, KV + (8 * st + 2 * p) * 4 + q, sSELLO))
            for p in range(4):
                a.i("v_perm_b32 v%d, v%d, v%d, s%d" % (PT + 4 + p, KV + (8 * st + 2 * p + 1) * 4 + q, KV + (8 * st + 2 * p) * 4 + q, sSELHI))
            if st == 0 and q == 0:
                a.i("s_waitcnt lgkmcnt(0)")
            for h in range(2):
                i = 2 * q + h
                a.i("v_mfma_f32_16x16x32_bf16 %s, %s, %s, %s" % (
                    v(D[i], 4), v(28 + 4 * st, 4), v(PT + 4 * h, 4), v(D[i], 4)))
    a.i("s_lshl_b32 s5, s2, 13")
    a.i("s_lshl_b32 s6, s4, 12")
    a.i("s_add_u32 s5, s5, s6")
    a.i("s_add_u32 s5, s5, 0x%x" % OB2)
    a.i("s_mov_b32 exec_hi, 0")
    for i in range(8):
        for e in range(4):
            a.i("v_min_u32 v%d, -2, v%d" % (D[i] + e, D[i] + e))
        a.i("buffer_store_dwordx4 %s, v%d, %s, s5 offen offset:%d sc1" % (v(D[i], 4), vOFFV, s(sWS, 4), i * 512))
    a.i("s_mov_b64 exec, -1")
    stamp(13)
    a.br("s_branch L_exit")

    a.label("L_final")
    a.i("buffer_store_dwordx2 v[60:61], v%d, %s, 0 offen sc1" % (vST, s(sWS, 4)))
    a.i("s_lshr_b32 s4, s%d, 5" % sKS)
    a.i("s_lshl_b32 s4, s4, 7")
    a.i("s_lshl_b32 s5, s%d, 8" % sCB)
    a.i("s_add_u32 s4, s4, s5")
    a.i("s_lshr_b32 s5, s%d, 2" % sKS)
    a.i("s_and_b32 s5, s5, 7")
    a.i("s_add_u32 s4, s4, s5")
    a.i("s_and_b32 s5, s%d, 1" % sKS)
    a.i("s_lshl_b32 s5, s5, 6")
    a.i("s_add_u32 s4, s4, s5")
    a.i("s_lshr_b32 s5, s%d, 1" % sKS)
    a.i("s_and_b32 s5, s5, 1")
    a.i("s_lshl_b32 s5, s5, 12")
    a.i("s_add_u32 s4, s4, s5")
    a.i("s_lshl_b32 s4, s4, 1")
    a.i("v_lshrrev_b32 v3, 3, v0")
    a.i("v_and_b32 v4, 7, v0")
    a.i("v_lshlrev_b32 v5, 11, v3")
    a.i("v_lshl_add_u32 v5, v4, 4, v5")
    a.i("v_add_u32 v5, s4, v5")
    a.i("v_cmp_gt_u32 vcc, 32, v0")
    a.i("v_mov_b32 v6, 0x7ffffff0")
    a.i("v_cndmask_b32 v5, v6, v5, vcc")
    a.i("buffer_load_ushort v9, v5, %s, 0 offen" % s(sX, 4))
    a.i("v_lshlrev_b32 v6, 13, v3")
    a.i("v_lshl_add_u32 v6, v4, 4, v6")
    a.i("s_lshl_b32 s5, s%d, 19" % sCB)
    a.i("s_lshl_b32 s6, s%d, 7" % sKS)
    a.i("s_add_u32 s5, s5, s6")
    a.i("s_add_u32 s5, s5, 0x%x" % OB2)
    lds_spin(C_ORDY, 1, 7, 8, sleep=1)
    a.i("s_mov_b32 s%d, %d" % (sSPIN, SPIN_G))
    a.label("L_poll_f")
    for t in range(8):
        a.i("s_add_u32 s6, s5, %d" % (t * 65536))
        a.i("buffer_load_dwordx4 %s, v6, %s, s6 offen sc1" % (v(KV + 4 * t, 4), s(sWS, 4)))
    a.i("s_waitcnt vmcnt(0)")
    a.i("v_max3_u32 v7, v%d, v%d, v%d" % (KV, KV + 1, KV + 2))
    a.i("v_max3_u32 v8, v%d, v%d, v%d" % (KV + 3, KV + 4, KV + 5))
    for k in range(6, 30, 4):
        a.i("v_max3_u32 v7, v7, v%d, v%d" % (KV + k, KV + k + 1))
        a.i("v_max3_u32 v8, v8, v%d, v%d" % (KV + k + 2, KV + k + 3))
    a.i("v_max3_u32 v7, v7, v%d, v%d" % (KV + 30, KV + 31))
    a.i("v_max_u32 v7, v7, v8")
    a.i("v_cmp_eq_u32 vcc, -1, v7")
    a.br("s_cbranch_vccz L_poll_f_done")
    a.i("s_sub_u32 s%d, s%d, 1" % (sSPIN, sSPIN))
    a.i("s_cmp_lg_u32 s%d, 0" % sSPIN)
    a.br("s_cbranch_scc1 L_poll_f")
    a.label("L_poll_f_done")
    stamp(12)
    for t in range(0, 8, 2):
        for e in range(4):
            a.i("v_add_f32 v%d, v%d, v%d" % (KV + 4 * t + e, KV + 4 * t + e, KV + 4 * t + 4 + e))
    for t in (0, 4):
        for e in range(4):
            a.i("v_add_f32 v%d, v%d, v%d" % (KV + 4 * t + e, KV + 4 * t + e, KV + 4 * t + 8 + e))
    for e in range(4):
        a.i("v_add_f32 v%d, v%d, v%d" % (KV + e, KV + e, KV + 16 + e))
    for e in range(4):
        a.i("v_add_f32_dpp v%d, v%d, v%d row_ror:8 row_mask:0xf bank_mask:0xf" % (KV + e, KV + e, KV + e))
    for e in range(4):
        allreduce_rows("v_add_f32", KV + e, KV + 8 + e)
    a.i("v_cmp_eq_u32 vcc, 1, v3")
    a.i("v_cndmask_b32 v7, v%d, v%d, vcc" % (KV, KV + 1))
    a.i("v_cmp_eq_u32 vcc, 2, v3")
    a.i("v_cndmask_b32 v7, v7, v%d, vcc" % (KV + 2))
    a.i("v_cmp_eq_u32 vcc, 3, v3")
    a.i("v_cndmask_b32 v7, v7, v%d, vcc" % (KV + 3))
    a.i("v_lshlrev_b32 v9, 16, v9")
    a.i("v_add_f32 v7, v7, v9")
    bf16_round_pair(7, 7, 7)
    a.i("buffer_store_short v7, v5, %s, 0 offen" % s(sOUT, 4))
    a.i("s_cmp_lg_u32 s2, %d" % ROOT)
    a.br("s_cbranch_scc1 L_noreset")
    a.i("v_mov_b32 v3, 0")
    a.i("v_lshlrev_b32 v4, 2, v0")
    a.i("buffer_store_dword v3, v4, %s, 0 offen sc1" % s(sDBG, 4))
    a.label("L_noreset")
    stamp(13)

    a.label("L_exit")
    if diag:
        a.i("s_lshl_b32 s4, s2, 4")
        a.i("s_add_u32 s4, s4, s3")
        a.i("s_lshl_b32 s4, s4, 8")
        a.i("s_add_u32 s4, s4, 0x%x" % STAMP)
        a.i("v_lshlrev_b32 v3, 2, v0")
        a.i("buffer_store_dword v%d, v3, %s, s4 offen" % (vSTAMP, s(sWS, 4)))
    a.label("L_end")
    a.i("s_endpgm")

    a.raw('.section .rodata,"a"')
    a.raw(".p2align 6")
    a.raw(".amdhsa_kernel " + NAME)
    a.raw("  .amdhsa_next_free_vgpr 128")
    a.raw("  .amdhsa_next_free_sgpr 102")
    a.raw("  .amdhsa_accum_offset 128")
    a.raw("  .amdhsa_group_segment_fixed_size 0")
    a.raw("  .amdhsa_kernarg_size 96")
    a.raw("  .amdhsa_user_sgpr_count 2")
    a.raw("  .amdhsa_user_sgpr_kernarg_segment_ptr 1")
    a.raw("  .amdhsa_system_sgpr_workgroup_id_x 1")
    a.raw(".end_amdhsa_kernel")
    return a.text()


if __name__ == "__main__":
    cfg = {}
    out = sys.argv[1]
    for kv in sys.argv[2:]:
        k, val = kv.split("=")
        cfg[k] = int(val, 0)
    open(out, "w").write(gen(cfg))
```

```python
import sys
from asmlib import Asm, v, s

NAME = "parallel_sum__gqa_block_cached__glu_gated_geglu__decode_kernel"

QP = 0x000000
GP = 0x080000
UP = 0x100000
OB1 = 0x200000
ST = 0x300000
MB = 0x380000
OB2 = 0x400000
STAMP = 0x800000
WS_SIZE = 0x1000000

DUMP = 0
QL = 512
HL = 2688
OL = 3712
SM = 4736
SL = 5248
FL = 5760
CNT = 6016
C_DMA, C_ORDY, C_PUB, C_QRDY, C_M, C_P1 = 0, 4, 8, 12, 16, 20
C_BC = 32
ROOT = 255
XN = 6144
R1 = 22656
ORED = 6144
TW = 75776
LDS_SIZE = TW + 65536

sX, sK, sV, sW1, sWT, sWS, sOUT, sDBG = 40, 44, 48, 52, 56, 60, 64, 68
sSELLO, sSELHI = 72, 73
sT = 74
sCH, sB, sKVH, sS, sCB, sKS = 78, 79, 80, 81, 82, 83
sW1OFF, sPITCH, sSPIN, sLOG2E = 84, 85, 86, 87
sMEV, sMOD, sMLO, sMHI = 88, 90, 92, 94
sK0, sCG, sSG = 96, 97, 98
sSCALE = 99
sDMA = 100
sMBX = 101

vOFFK, vOFFV = 1, 2
vST = 10
vSTAMP = 11
KV = 64


def gen(cfg):
    a = Asm()
    NT = " nt" if cfg.get("nt", 1) else ""
    NTW = " nt" if cfg.get("ntw", 1) else ""
    NTT = " nt" if cfg.get("ntt", 1) else ""
    diag = cfg.get("diag", 0)
    SPIN_G = cfg.get("spin_g", 1 << 17)
    SPIN_L = cfg.get("spin_l", 1 << 21)
    WD_MODE = cfg.get("wd", 2)
    WO_MODE = cfg.get("wo", 2)
    PF = cfg.get("pf", 1)
    PRIO = cfg.get("prio", 1)
    AMASK = 15 if diag == 2 else 31
    AOFF = 64 if diag == 2 else 0

    def prio(n):
        if PRIO:
            a.i("s_setprio %d" % n)

    def stamp(idx):
        if not diag:
            return
        a.i("s_memrealtime s[14:15]")
        a.i("s_waitcnt lgkmcnt(0)")
        a.i("v_writelane_b32 v%d, s14, %d" % (vSTAMP, idx))

    def srd(d, p, size, off_lo=None):
        if off_lo is None:
            a.i("s_mov_b32 s%d, s%d" % (d, p))
            a.i("s_and_b32 s%d, s%d, 0xffff" % (d + 1, p + 1))
        else:
            a.i("s_add_u32 s%d, s%d, s%d" % (d, p, off_lo))
            a.i("s_addc_u32 s%d, s%d, 0" % (d + 1, p + 1))
            a.i("s_and_b32 s%d, s%d, 0xffff" % (d + 1, d + 1))
        a.i("s_mov_b32 s%d, 0x%x" % (d + 2, size))
        a.i("s_mov_b32 s%d, 0x00020000" % (d + 3))

    def bf16_round_pair(dst, x0, x1):
        a.i("v_cvt_pk_bf16_f32 v%d, v%d, v%d" % (dst, x0, x1))

    def unpack_lo(dst, src):
        a.i("v_lshlrev_b32 v%d, 16, v%d" % (dst, src))

    def unpack_hi(dst, src):
        a.i("v_and_b32 v%d, 0xffff0000, v%d" % (dst, src))

    def allreduce_rows(op, x, tmp, do16=True, do32=True):
        if do16:
            a.i("v_mov_b32 v%d, v%d" % (tmp, x))
            a.i("v_permlane16_swap_b32 v%d, v%d" % (x, tmp))
            a.i("%s v%d, v%d, v%d" % (op, x, x, tmp))
        if do32:
            a.i("v_mov_b32 v%d, v%d" % (tmp, x))
            a.i("v_permlane32_swap_b32 v%d, v%d" % (x, tmp))
            a.i("%s v%d, v%d, v%d" % (op, x, x, tmp))

    def dpp_reduce16(op, x, n=4):
        pats = ["quad_perm:[1,0,3,2]", "quad_perm:[2,3,0,1]", "row_half_mirror", "row_mirror"]
        for p in pats[:n]:
            a.i("%s_dpp v%d, v%d, v%d %s row_mask:0xf bank_mask:0xf" % (op, x, x, x, p))

    def lds_spin(off, val, va, vd, sleep=1):
        l0, l1 = a.newlabel("L_sp"), a.newlabel("L_sp")
        a.i("v_mov_b32 v%d, %d" % (va, CNT))
        a.i("s_mov_b32 s%d, %d" % (sSPIN, SPIN_L))
        a.label(l0)
        a.i("ds_read_b32 v%d, v%d offset:%d" % (vd, va, off))
        a.i("s_waitcnt lgkmcnt(0)")
        a.i("v_cmp_ne_u32 vcc, %d, v%d" % (val, vd))
        a.br("s_cbranch_vccz %s" % l1)
        if sleep:
            a.i("s_sleep %d" % sleep)
        a.i("s_sub_u32 s%d, s%d, 1" % (sSPIN, sSPIN))
        a.i("s_cmp_lg_u32 s%d, 0" % sSPIN)
        a.br("s_cbranch_scc1 %s" % l0)
        a.label(l1)

    def lds_inc(off, va, vd):
        a.i("v_mov_b32 v%d, %d" % (va, CNT))
        a.i("v_mov_b32 v%d, 1" % vd)
        a.i("s_mov_b64 exec, 1")
        a.i("ds_add_u32 v%d, v%d offset:%d" % (va, vd, off))
        a.i("s_mov_b64 exec, -1")

    def vgather(loads, t0, t1, between=None):
        ltop, ldone = a.newlabel("L_vg"), a.newlabel("L_vg")
        for dst, ins in loads:
            for x in ins:
                a.i(x)
        if between:
            between()
        a.i("s_mov_b32 s%d, %d" % (sSPIN, SPIN_G))
        a.label(ltop)
        a.i("s_waitcnt vmcnt(0)")
        regs = [dst + e for dst, _ in loads for e in range(4)]
        a.i("v_max3_u32 v%d, v%d, v%d, v%d" % (t0, regs[0], regs[1], regs[2]))
        a.i("v_max3_u32 v%d, v%d, v%d, v%d" % (t1, regs[3], regs[4], regs[5]))
        k = 6
        while k + 4 <= len(regs):
            a.i("v_max3_u32 v%d, v%d, v%d, v%d" % (t0, t0, regs[k], regs[k + 1]))
            a.i("v_max3_u32 v%d, v%d, v%d, v%d" % (t1, t1, regs[k + 2], regs[k + 3]))
            k += 4
        assert len(regs) - k == 2
        a.i("v_max3_u32 v%d, v%d, v%d, v%d" % (t0, t0, regs[k], regs[k + 1]))
        a.i("v_max_u32 v%d, v%d, v%d" % (t0, t0, t1))
        a.i("v_cmp_eq_u32 vcc, -1, v%d" % t0)
        a.br("s_cbranch_vccz %s" % ldone)
        a.i("s_sub_u32 s%d, s%d, 1" % (sSPIN, sSPIN))
        a.i("s_cmp_eq_u32 s%d, 0" % sSPIN)
        a.br("s_cbranch_scc1 %s" % ldone)
        for dst, ins in loads:
            lsk = a.newlabel("L_vs")
            a.i("v_max3_u32 v%d, v%d, v%d, v%d" % (t0, dst, dst + 1, dst + 2))
            a.i("v_max_u32 v%d, v%d, v%d" % (t0, t0, dst + 3))
            a.i("v_cmp_eq_u32 vcc, -1, v%d" % t0)
            a.br("s_cbranch_vccz %s" % lsk)
            for x in ins:
                a.i(x)
            a.label(lsk)
        a.br("s_branch %s" % ltop)
        a.label(ldone)

    def pub_addr(vq, vg, t0, t1):
        a.i("v_and_b32 v%d, 15, v0" % t0)
        a.i("v_lshrrev_b32 v%d, 4, v0" % t1)
        a.i("v_lshlrev_b32 v%d, 14, v%d" % (vq, t1))
        a.i("v_lshl_add_u32 v%d, v%d, 4, v%d" % (vq, t0, vq))
        a.i("v_mul_u32_u24 v%d, 14336, v%d" % (vg, t1))
        a.i("v_lshl_add_u32 v%d, v%d, 4, v%d" % (vg, t0, vg))
        a.i("s_cmp_lt_u32 s2, 224")
        a.i("s_cselect_b32 s4, 0, 0x7ffffff0")
        a.i("v_or_b32 v%d, s4, v%d" % (vg, vg))
        a.i("s_lshl_b32 s4, s%d, 17" % sCB)
        a.i("s_lshl_b32 s5, s%d, 8" % sKS)
        a.i("s_add_u32 s4, s4, s5")
        a.i("s_add_u32 s4, s4, 0x%x" % QP)
        a.i("s_mul_i32 s5, s%d, %d" % (sSG, 8 * 14336))
        a.i("s_lshl_b32 s6, s%d, 8" % sCG)
        a.i("s_add_u32 s5, s5, s6")
        a.i("s_add_u32 s6, s5, 0x%x" % UP)
        a.i("s_add_u32 s5, s5, 0x%x" % GP)

    hdr = open("parallel_sum__gqa_block_cached__glu_gated_geglu__decode.s.ref").read().split("\n")
    for l in hdr:
        if l.startswith("; @launch"):
            break
        a.raw(l)
    a.raw("; @launch grid=(256,1,1) block=(1024,1,1) lds=%d" % LDS_SIZE)
    a.raw('.amdgcn_target "amdgcn-amd-amdhsa--gfx950"')
    a.raw(".text")
    a.raw(".globl " + NAME)
    a.raw(".p2align 8")
    a.raw(".type %s,@function" % NAME)
    a.raw(NAME + ":")

    a.i("s_cmp_ge_u32 s2, 256")
    a.i("s_cbranch_scc1 L_end")
    a.i("s_load_dwordx16 s[16:31], s[0:1], 0")
    a.i("s_load_dwordx8 s[32:39], s[0:1], 64")
    a.i("v_lshrrev_b32 v1, 6, v0")
    a.i("v_readfirstlane_b32 s3, v1")
    a.i("v_and_b32 v0, 63, v0")
    if diag:
        a.i("v_mov_b32 v%d, 0" % vSTAMP)
    a.i("s_and_b32 s4, s2, 31")
    a.i("s_lshr_b32 s%d, s2, 5" % sS)
    a.i("s_lshl_b32 s%d, s4, 3" % sCH)
    a.i("s_add_u32 s%d, s%d, s%d" % (sCH, sCH, sS))
    a.i("s_lshr_b32 s%d, s4, 2" % sB)
    a.i("s_and_b32 s%d, s4, 3" % sKVH)
    a.i("s_lshr_b32 s%d, s2, 6" % sCB)
    a.i("s_and_b32 s%d, s2, 63" % sKS)
    a.i("s_mul_i32 s%d, s2, 1171" % sSG)
    a.i("s_lshr_b32 s%d, s%d, 16" % (sSG, sSG))
    a.i("s_mul_i32 s5, s%d, 56" % sSG)
    a.i("s_sub_u32 s%d, s2, s5" % sCG)
    a.i("s_sub_u32 s8, s3, 4")
    a.i("s_lshr_b32 s9, s8, 2")
    a.i("s_and_b32 s10, s8, 3")
    a.i("s_movk_i32 s%d, 7168" % sPITCH)
    a.i("s_cmp_eq_u32 s9, 0")
    a.i("s_cselect_b32 s%d, 8192, s%d" % (sPITCH, sPITCH))
    a.i("s_cselect_b32 s11, s%d, s%d" % (sCB, sSG))
    a.i("s_cselect_b32 s12, s%d, s%d" % (sKS, sCG))
    a.i("s_lshl_b32 s%d, s11, 8" % sK0)
    a.i("s_lshl_b32 s13, s10, 6")
    a.i("s_add_u32 s%d, s%d, s13" % (sK0, sK0))
    a.i("s_mul_i32 s%d, s%d, s%d" % (sW1OFF, sK0, sPITCH))
    a.i("s_lshl_b32 s12, s12, 7")
    a.i("s_add_u32 s%d, s%d, s12" % (sW1OFF, sW1OFF))
    a.i("s_lshl_b32 s14, s%d, 18" % sCH)
    a.i("v_lshrrev_b32 v3, 4, v0")
    a.i("v_lshlrev_b32 v3, 3, v3")
    a.i("v_bfe_u32 v4, v0, 3, 1")
    a.i("v_lshl_add_u32 v3, v4, 5, v3")
    a.i("v_mul_lo_u32 v3, v3, s%d" % sPITCH)
    a.i("v_and_b32 v4, 7, v0")
    a.i("v_lshl_add_u32 v3, v4, 4, v3")
    a.i("v_lshrrev_b32 v5, 5, v0")
    a.i("v_lshlrev_b32 v5, 11, v5")
    a.i("v_and_b32 v4, 31, v0")
    a.i("v_lshl_add_u32 v5, v4, 4, v5")
    a.i("s_lshl_b32 s5, s3, 12")
    a.i("s_lshr_b32 s6, s2, 2")
    a.i("s_lshl_b32 s6, s6, 7")
    a.i("s_and_b32 s7, s2, 3")
    a.i("s_lshl_b32 s7, s7, 2")
    a.i("s_add_u32 s6, s6, s7")
    a.i("s_add_u32 s%d, s6, 0x%x" % (sMBX, MB))
    a.i("s_waitcnt lgkmcnt(0)")
    srd(sX, 16, 16384)
    srd(sWS, 38, WS_SIZE)
    a.i("s_cmp_eq_u32 s9, 1")
    a.i("s_cselect_b32 s%d, s28, s30" % sW1)
    a.i("s_cselect_b32 s%d, s29, s31" % (sW1 + 1))
    a.i("s_cmp_lt_u32 s2, 224")
    a.i("s_cselect_b32 s%d, 0x700000, 0" % (sW1 + 2))
    a.i("s_cmp_eq_u32 s9, 0")
    a.i("s_cselect_b32 s%d, s22, s%d" % (sW1, sW1))
    a.i("s_cselect_b32 s%d, s23, s%d" % (sW1 + 1, sW1 + 1))
    a.i("s_cselect_b32 s%d, 0x800000, s%d" % (sW1 + 2, sW1 + 2))
    a.i("s_and_b32 s%d, s%d, 0xffff" % (sW1 + 1, sW1 + 1))
    a.i("s_mov_b32 s%d, 0x00020000" % (sW1 + 3))
    a.i("s_cmp_lt_u32 s3, 4")
    a.br("s_cbranch_scc1 L_xload")
    a.i("s_mov_b32 s4, s%d" % sW1OFF)
    for j in range(8):
        a.i("buffer_load_dwordx4 %s, v3, %s, s4 offen%s" % (v(12 + 4 * j, 4), s(sW1, 4), NTW))
        if j < 7:
            a.i("s_add_u32 s4, s4, s%d" % sPITCH)
    a.br("s_branch L_pro2")
    a.label("L_xload")
    a.i("s_mov_b32 s13, s5")
    a.i("s_cmp_lg_u32 s3, 0")
    a.br("s_cbranch_scc1 L_xload2")
    prio(3)
    for k in range(4):
        a.i("v_mov_b32 v%d, -1" % (60 + k))
    pub_addr(6, 7, 3, 4)
    for u in range(2):
        a.i("s_add_u32 s7, s4, %d" % (u * 4 * 16384))
        a.i("buffer_store_dwordx4 v[60:63], v6, %s, s7 offen sc1" % s(sWS, 4))
        for sg in (5, 6):
            a.i("s_add_u32 s7, s%d, %d" % (sg, u * 4 * 14336))
            a.i("buffer_store_dwordx4 v[60:63], v7, %s, s7 offen sc1" % s(sWS, 4))
    a.i("v_mov_b32 v3, s%d" % sMBX)
    a.i("s_mov_b64 exec, 1")
    a.i("buffer_store_dword v60, v3, %s, 0 offen sc1" % s(sWS, 4))
    a.i("s_mov_b64 exec, -1")
    a.label("L_xload2")
    for u in range(4):
        a.i("buffer_load_dwordx4 %s, v5, %s, s13 offen offset:%d" % (v(12 + 4 * u, 4), s(sX, 4), u * 512))
    a.label("L_pro2")
    srd(sK, 18, 0x40000, off_lo=14)
    srd(sV, 20, 0x40000, off_lo=14)
    srd(sOUT, 34, 16384)
    srd(sDBG, 36, 256)
    a.i("s_mov_b32 s15, 0x700000")
    a.i("s_cmp_ge_u32 s3, 12")
    a.i("s_cselect_b32 s%d, s24, s32" % sWT)
    a.i("s_cselect_b32 s%d, s25, s33" % (sWT + 1))
    a.i("s_cselect_b32 s%d, 0x800000, s15" % (sWT + 2))
    a.i("s_cselect_b32 s%d, %d, %d" % (sDMA, WO_MODE, WD_MODE))
    a.i("s_and_b32 s%d, s%d, 0xffff" % (sWT + 1, sWT + 1))
    a.i("s_mov_b32 s%d, 0x00020000" % (sWT + 3))
    a.i("s_cmp_lt_u32 s3, 8")
    a.i("s_cselect_b32 s%d, 0, s%d" % (sDMA, sDMA))
    a.i("s_mov_b32 s%d, 0x05040100" % sSELLO)
    a.i("s_mov_b32 s%d, 0x07060302" % sSELHI)
    a.i("s_mov_b32 s%d, 0x3fb8aa3b" % sLOG2E)
    a.i("s_mov_b32 s%d, 0x3db504f3" % sSCALE)
    for r, m in ((sMEV, 0x55555555), (sMOD, 0xaaaaaaaa), (sMLO, 0x33333333), (sMHI, 0xcccccccc)):
        a.i("s_mov_b32 s%d, 0x%x" % (r, m))
        a.i("s_mov_b32 s%d, 0x%x" % (r + 1, m))
    a.i("v_lshlrev_b32 v%d, 4, v0" % vOFFV)
    a.i("v_bfe_u32 v3, v0, 2, 2")
    a.i("v_lshlrev_b32 v3, 8, v3")
    a.i("v_lshrrev_b32 v4, 4, v0")
    a.i("v_lshl_add_u32 v3, v4, 6, v3")
    a.i("v_and_b32 v4, 3, v0")
    a.i("v_lshl_add_u32 v%d, v4, 4, v3" % vOFFK)
    a.i("s_lshl_b32 s6, s%d, 7" % sCH)
    a.i("s_add_u32 s6, s6, 0x%x" % ST)
    a.i("v_lshlrev_b32 v%d, 3, v0" % vST)
    a.i("v_add_u32 v%d, s6, v%d" % (vST, vST))
    a.i("v_cmp_gt_u32 vcc, 8, v0")
    a.i("v_mov_b32 v5, 0x7ffffff0")
    a.i("v_cndmask_b32 v%d, v5, v%d, vcc" % (vST, vST))
    a.i("s_lshl_b32 s6, s3, 14")
    a.i("s_add_u32 s7, s3, s2")
    for t in range(4):
        a.i("s_add_u32 s8, s7, %d" % t)
        a.i("s_and_b32 s8, s8, 3")
        a.i("s_lshl_b32 s8, s8, 12")
        a.i("s_add_u32 s%d, s6, s8" % (sT + t))
    stamp(0)

    def k_loads():
        for t in range(4):
            for r in range(4):
                a.i("buffer_load_dwordx4 %s, v%d, %s, s%d offen offset:%d%s" % (
                    v(KV + (t * 4 + r) * 4, 4), vOFFK, s(sK, 4), sT + t, r * 1024, NT))

    def v_loads():
        for t in range(4):
            for r in range(4):
                a.i("buffer_load_dwordx4 %s, v%d, %s, s%d offen offset:%d%s" % (
                    v(KV + (t * 4 + r) * 4, 4), vOFFV, s(sV, 4), sT + t, r * 1024, NT))

    def tw_dma():
        a.i("s_sub_u32 s4, s3, 8")
        a.i("s_and_b32 s5, s4, 1")
        a.i("s_lshr_b32 s6, s4, 1")
        a.i("s_and_b32 s7, s6, 1")
        a.i("s_movk_i32 s9, 16384")
        a.i("s_cmp_ge_u32 s3, 12")
        a.i("s_cselect_b32 s8, 64, 56")
        a.i("s_cselect_b32 s9, 4096, s9")
        a.i("s_mul_i32 s8, s8, s%d" % sKS)
        a.i("s_lshl_b32 s10, s7, 5")
        a.i("s_add_u32 s8, s8, s10")
        a.i("s_lshl_b32 s8, s8, 11")
        a.i("s_lshl_b32 s10, s%d, 9" % sCB)
        a.i("s_add_u32 s8, s8, s10")
        a.i("s_lshl_b32 s10, s5, 8")
        a.i("s_add_u32 s8, s8, s10")
        a.i("s_cmp_eq_u32 s6, 1")
        a.i("s_cselect_b32 s10, 2, 3")
        a.i("v_lshrrev_b32 v3, 4, v0")
        a.i("v_min_u32 v3, s10, v3")
        a.i("v_mul_lo_u32 v3, v3, s9")
        a.i("v_and_b32 v8, 15, v0")
        a.i("v_lshl_add_u32 v3, v8, 4, v3")
        a.i("s_lshl_b32 s10, s5, 2")
        a.i("s_add_u32 s10, s10, s6")
        a.i("s_lshl_b32 s10, s10, 13")
        a.i("s_add_u32 s10, s10, %d" % TW)
        for j in range(8):
            jr_wd = j * 2048
            jr_wo = (8 * (j & 3) + (j >> 2)) * 2048
            a.i("s_mov_b32 s11, %d" % jr_wd)
            a.i("s_cmp_ge_u32 s3, 12")
            a.i("s_cselect_b32 s11, %d, s11" % jr_wo)
            a.i("s_add_u32 s11, s11, s8")
            a.i("s_add_u32 m0, s10, %d" % (j * 1024))
            a.i("buffer_load_dwordx4 v3, %s, s11 offen%s lds" % (s(sWT, 4), NTT))

    a.i("s_cmp_ge_u32 s3, 4")
    a.br("s_cbranch_scc1 L_bar1")
    a.i("s_cmp_eq_u32 s3, 0")
    a.br("s_cbranch_scc1 L_comm_clear")
    NPF = cfg.get("npf", 6)
    if PF:
        a.i("s_cmp_lg_u32 s3, 1")
        a.br("s_cbranch_scc1 L_nopf")
        a.i("s_getpc_b64 s[6:7]")
        a.label("L_pc")
        a.i("v_lshlrev_b32 v3, 6, v0")
        for k in range(NPF):
            a.i("v_min_u32 v4, L_end-L_pc, v3")
            a.i("global_load_dword v%d, v4, s[6:7]" % (60 + (k & 3)))
            if k < NPF - 1:
                a.i("v_add_u32 v3, 4096, v3")
        a.i("s_waitcnt vmcnt(%d)" % NPF)
        a.br("s_branch L_ln")
        a.label("L_nopf")
    a.i("s_waitcnt vmcnt(0)")
    a.br("s_branch L_ln")
    a.label("L_comm_clear")
    a.i("s_lshl_b32 s6, s%d, 12" % sCH)
    a.i("s_add_u32 s6, s6, 0x%x" % OB1)
    for k in range(4):
        a.i("buffer_store_dwordx4 v[60:63], v%d, %s, s6 offen offset:%d sc1" % (vOFFV, s(sWS, 4), k * 1024))
    a.i("s_lshl_b32 s6, s2, 13")
    a.i("s_add_u32 s6, s6, 0x%x" % OB2)
    for k in range(4):
        a.i("buffer_store_dwordx4 v[60:63], v%d, %s, s6 offen offset:%d sc1" % (vOFFV, s(sWS, 4), k * 1024))
    a.i("s_add_u32 s6, s6, 4096")
    for k in range(4):
        a.i("buffer_store_dwordx4 v[60:63], v%d, %s, s6 offen offset:%d sc1" % (vOFFV, s(sWS, 4), k * 1024))
    a.i("buffer_store_dwordx2 v[60:61], v%d, %s, 0 offen sc1" % (vST, s(sWS, 4)))
    a.i("v_mov_b32 v5, %d" % CNT)
    for k in range(4):
        a.i("v_mov_b32 v%d, 0" % (6 + k))
    a.i("ds_write_b128 v5, v[6:9]")
    a.i("ds_write_b128 v5, v[6:9] offset:16")
    a.i("ds_write_b128 v5, v[6:9] offset:32")
    a.i("s_and_b32 s6, s2, %d" % AMASK)
    a.i("s_lshl_b32 s6, s6, 2")
    a.i("v_mov_b32 v3, s6")
    a.i("v_mov_b32 v4, 1")
    a.i("s_waitcnt vmcnt(13)")
    a.i("s_mov_b64 exec, 1")
    a.i("buffer_atomic_add v4, v3, %s, 0 offen offset:%d sc1" % (s(sDBG, 4), AOFF))
    a.i("s_mov_b64 exec, -1")
    stamp(14)

    a.label("L_ln")
    for k in range(16):
        unpack_lo(28 + 2 * k, 12 + k)
        unpack_hi(29 + 2 * k, 12 + k)
    a.i("v_add_f32 v4, v28, v29")
    a.i("v_add_f32 v5, v30, v31")
    for k in range(4, 32, 2):
        a.i("v_add_f32 v4, v4, v%d" % (28 + k))
        a.i("v_add_f32 v5, v5, v%d" % (29 + k))
    a.i("v_add_f32 v4, v4, v5")
    dpp_reduce16("v_add_f32", 4)
    allreduce_rows("v_add_f32", 4, 5, do32=False)
    a.i("v_mul_f32 v4, 0x3a800000, v4")
    a.i("v_mov_b32 v6, 0")
    a.i("v_mov_b32 v7, 0")
    for k in range(0, 32, 2):
        a.i("v_sub_f32 v8, v%d, v4" % (28 + k))
        a.i("v_sub_f32 v9, v%d, v4" % (29 + k))
        a.i("v_fmac_f32 v6, v8, v8")
        a.i("v_fmac_f32 v7, v9, v9")
    a.i("v_add_f32 v6, v6, v7")
    dpp_reduce16("v_add_f32", 6)
    allreduce_rows("v_add_f32", 6, 7, do32=False)
    a.i("v_mul_f32 v6, 0x3a800000, v6")
    bf16_round_pair(5, 4, 6)
    unpack_lo(4, 5)
    unpack_hi(6, 5)
    a.i("v_add_f32 v6, 0x3727c5ac, v6")
    bf16_round_pair(6, 6, 6)
    unpack_lo(6, 6)
    a.i("v_sqrt_f32 v6, v6")
    bf16_round_pair(6, 6, 6)
    unpack_lo(6, 6)
    a.i("v_rcp_f32 v6, v6")
    for k in range(16):
        a.i("v_sub_f32 v8, v%d, v4" % (28 + 2 * k))
        a.i("v_sub_f32 v9, v%d, v4" % (29 + 2 * k))
        bf16_round_pair(8, 8, 9)
        unpack_hi(9, 8)
        unpack_lo(8, 8)
        a.i("v_mul_f32 v8, v8, v6")
        a.i("v_mul_f32 v9, v9, v6")
        bf16_round_pair(12 + k, 8, 9)
    a.i("v_lshrrev_b32 v4, 5, v0")
    a.i("s_lshl_b32 s5, s3, 1")
    a.i("v_add_u32 v4, s5, v4")
    a.i("v_mul_u32_u24 v4, 2064, v4")
    a.i("v_and_b32 v5, 31, v0")
    a.i("v_lshl_add_u32 v4, v5, 4, v4")
    for u in range(4):
        a.i("ds_write_b128 v4, %s offset:%d" % (v(12 + 4 * u, 4), XN + u * 512))
    a.i("s_waitcnt lgkmcnt(0)")

    a.label("L_bar1")
    a.i("s_barrier")
    stamp(1)
    a.i("s_cmp_eq_u32 s3, 0")
    a.br("s_cbranch_scc1 L_comm")
    a.i("s_cmp_lt_u32 s3, 4")
    a.br("s_cbranch_scc1 L_kload")
    a.i("v_and_b32 v3, 7, v0")
    a.i("v_mul_u32_u24 v3, 2064, v3")
    a.i("v_bfe_u32 v4, v0, 3, 1")
    a.i("v_lshl_add_u32 v3, v4, 6, v3")
    a.i("v_lshrrev_b32 v5, 4, v0")
    a.i("v_lshl_add_u32 v3, v5, 4, v3")
    a.i("s_lshl_b32 s4, s%d, 1" % sK0)
    a.i("s_and_b32 s4, s4, 2047")
    a.i("v_add_u32 v3, s4, v3")
    a.i("ds_read_b128 v[44:47], v3 offset:%d" % XN)
    a.i("v_lshrrev_b32 v6, 5, v0")
    a.i("s_lshl_b32 s5, s3, 1")
    a.i("s_sub_u32 s5, s5, 8")
    a.i("v_add_u32 v7, s5, v6")
    a.i("v_mul_u32_u24 v7, 2176, v7")
    a.i("v_and_b32 v8, 7, v0")
    a.i("v_mul_u32_u24 v8, 272, v8")
    a.i("v_add_u32 v7, v7, v8")
    a.i("v_bfe_u32 v8, v0, 4, 1")
    a.i("v_lshl_add_u32 v7, v8, 7, v7")
    a.i("v_add_u32 v7, %d, v7" % R1)
    a.i("v_cmp_eq_u32 vcc, v4, v6")
    a.i("v_mov_b32 v8, %d" % DUMP)
    a.i("v_cndmask_b32 v7, v8, v7, vcc")
    a.i("s_waitcnt vmcnt(0) lgkmcnt(0)")
    stamp(2)
    for q in range(4):
        A0 = KV + q * 16
        for p in range(4):
            a.i("v_perm_b32 v%d, v%d, v%d, s%d" % (A0 + p, 12 + (2 * p + 1) * 4 + q, 12 + (2 * p) * 4 + q, sSELLO))
        for p in range(4):
            a.i("v_perm_b32 v%d, v%d, v%d, s%d" % (A0 + 4 + p, 12 + (2 * p + 1) * 4 + q, 12 + (2 * p) * 4 + q, sSELHI))
        a.i("v_mfma_f32_16x16x32_bf16 %s, %s, v[44:47], 0" % (v(A0 + 8, 4), v(A0, 4)))
        a.i("v_mfma_f32_16x16x32_bf16 %s, %s, v[44:47], 0" % (v(A0 + 12, 4), v(A0 + 4, 4)))
    for q in range(4):
        A0 = KV + q * 16
        for r in range(4):
            a.i("ds_write2_b32 v7, v%d, v%d offset0:%d offset1:%d" % (A0 + 8 + r, A0 + 12 + r, 8 * r + 2 * q, 8 * r + 2 * q + 1))
    a.i("s_waitcnt lgkmcnt(0)")
    a.i("s_sub_u32 s8, s3, 4")
    a.i("s_lshr_b32 s9, s8, 2")
    a.i("s_lshl_b32 s8, s9, 2")
    a.i("s_add_u32 s8, s8, %d" % (CNT + C_P1))
    a.i("v_mov_b32 v3, s8")
    a.i("v_mov_b32 v4, 1")
    a.i("s_mov_b64 exec, 1")
    a.i("ds_add_rtn_u32 v5, v3, v4")
    a.i("s_mov_b64 exec, -1")
    a.i("s_waitcnt lgkmcnt(0)")
    a.i("v_readfirstlane_b32 s8, v5")
    a.i("s_cmp_lg_u32 s8, 3")
    a.br("s_cbranch_scc1 L_waitpub")
    prio(3)
    a.i("v_lshrrev_b32 v3, 4, v0")
    a.i("v_mul_u32_u24 v3, 272, v3")
    a.i("v_and_b32 v4, 15, v0")
    a.i("v_lshl_add_u32 v3, v4, 4, v3")
    a.i("s_mul_i32 s8, s9, %d" % (8 * 2176))
    a.i("s_add_u32 s8, s8, %d" % R1)
    a.i("v_add_u32 v3, s8, v3")
    for u in range(2):
        base = KV + u * 32
        for c in range(8):
            a.i("ds_read_b128 %s, v3 offset:%d" % (v(base + 4 * c, 4), c * 2176 + u * 4 * 272))
    pub_addr(6, 7, 4, 5)
    a.i("s_cmp_eq_u32 s9, 1")
    a.i("s_cselect_b32 s5, s5, s6")
    a.i("s_movk_i32 s10, %d" % (14336 * 2))
    a.i("s_cmp_eq_u32 s9, 0")
    a.i("s_cselect_b32 s4, s4, s5")
    a.i("s_cselect_b32 s10, 0x8000, s10")
    a.i("s_cselect_b64 vcc, -1, 0")
    a.i("s_lshl_b32 s10, s10, 1")
    a.i("v_cndmask_b32 v6, v7, v6, vcc")
    for u in range(2):
        base = KV + u * 32
        sb = 12 + u * 4
        a.i("s_waitcnt lgkmcnt(%d)" % (8 if u == 0 else 0))
        for c in (0, 2, 4, 6):
            for e in range(4):
                a.i("v_add_f32 v%d, v%d, v%d" % (base + 4 * c + e, base + 4 * c + e, base + 4 * c + 4 + e))
        for c in (0, 4):
            for e in range(4):
                a.i("v_add_f32 v%d, v%d, v%d" % (base + 4 * c + e, base + 4 * c + e, base + 4 * c + 8 + e))
        for e in range(4):
            a.i("v_add_f32 v%d, v%d, v%d" % (sb + e, base + e, base + 16 + e))
        for e in range(4):
            a.i("v_min_u32 v%d, -2, v%d" % (sb + e, sb + e))
        a.i("buffer_store_dwordx4 %s, v6, %s, s4 offen sc1" % (v(sb, 4), s(sWS, 4)))
        if u == 0:
            a.i("s_add_u32 s4, s4, s10")
    lds_inc(C_PUB, 3, 4)
    stamp(15)
    a.label("L_waitpub")
    if cfg.get("hold", 1):
        lds_spin(C_PUB, 3, 3, 4, sleep=1)
    a.label("L_kload")
    a.i("s_cmp_lg_u32 s2, %d" % ROOT)
    a.br("s_cbranch_scc1 L_kload2")
    lds_spin(C_BC, 1, 3, 4, sleep=1)
    a.label("L_kload2")
    prio(1)
    k_loads()
    prio(0)
    a.i("s_cmp_lg_u32 s%d, 1" % sDMA)
    a.br("s_cbranch_scc1 L_noearly")
    tw_dma()
    a.label("L_noearly")
    stamp(3)
    lds_spin(C_QRDY, 1, 3, 4, sleep=2)
    a.br("s_branch L_kpass")

    def root_bcast(off, val, tag):
        a.i("v_and_b32 v3, %d, v0" % AMASK)
        a.i("v_lshlrev_b32 v3, 2, v3")
        a.i("s_mov_b32 s%d, %d" % (sSPIN, SPIN_G))
        a.label(tag + "_p")
        a.i("buffer_load_dword v4, v3, %s, 0 offen offset:%d sc1" % (s(sDBG, 4), off))
        a.i("s_waitcnt vmcnt(0)")
        a.i("v_cmp_ne_u32 vcc, %d, v4" % (256 // (AMASK + 1)))
        a.br("s_cbranch_vccz %s_d" % tag)
        a.i("s_sleep 2")
        a.i("s_sub_u32 s%d, s%d, 1" % (sSPIN, sSPIN))
        a.i("s_cmp_lg_u32 s%d, 0" % sSPIN)
        a.br("s_cbranch_scc1 %s_p" % tag)
        a.label(tag + "_d")
        for k in range(4):
            a.i("v_mov_b32 v%d, %d" % (60 + k, val))
        a.i("v_lshlrev_b32 v3, 7, v0")
        a.i("s_mov_b32 s4, 0x%x" % MB)
        a.i("buffer_store_dwordx4 v[60:63], v3, %s, s4 offen sc1" % s(sWS, 4))

    def mbox_wait(minval, tag):
        a.i("v_mov_b32 v3, s%d" % sMBX)
        a.i("s_mov_b32 s%d, %d" % (sSPIN, SPIN_G))
        a.label(tag + "_p")
        a.i("buffer_load_dword v4, v3, %s, 0 offen sc1" % s(sWS, 4))
        a.i("s_waitcnt vmcnt(0)")
        a.i("v_subrev_u32 v4, %d, v4" % minval)
        a.i("v_cmp_lt_u32 vcc, %d, v4" % (2 - minval))
        a.br("s_cbranch_vccz %s_d" % tag)
        a.i("s_sleep 2")
        a.i("s_sub_u32 s%d, s%d, 1" % (sSPIN, sSPIN))
        a.i("s_cmp_lg_u32 s%d, 0" % sSPIN)
        a.br("s_cbranch_scc1 %s_p" % tag)
        a.label(tag + "_d")

    a.label("L_comm")
    a.i("s_cmp_lg_u32 s2, %d" % ROOT)
    a.br("s_cbranch_scc1 L_notroot")
    root_bcast(AOFF, 1, "L_rba")
    lds_inc(C_BC, 3, 4)
    a.br("s_branch L_poll1_done")
    a.label("L_notroot")
    mbox_wait(1, "L_mba")
    a.label("L_poll1_done")
    stamp(16)
    a.i("s_and_b32 s6, s2, %d" % AMASK)
    a.i("s_lshl_b32 s6, s6, 2")
    a.i("v_mov_b32 v3, s6")
    a.i("v_mov_b32 v4, 1")
    a.i("s_waitcnt vmcnt(1)")
    a.i("s_mov_b64 exec, 1")
    a.i("buffer_atomic_add v4, v3, %s, 0 offen offset:128 sc1" % s(sDBG, 4))
    a.i("s_mov_b64 exec, -1")
    stamp(3)
    lds_spin(C_PUB, 3, 3, 4, sleep=1)
    stamp(4)
    a.i("s_lshl_b32 s4, s%d, 14" % sB)
    a.i("s_lshl_b32 s5, s%d, 12" % sKVH)
    a.i("s_add_u32 s4, s4, s5")
    a.i("s_add_u32 s4, s4, 0x%x" % QP)
    for sp in range(1, 4):
        a.i("s_add_u32 s%d, s4, %d" % (4 + sp, sp * 8 * 16384))
    vgather([(KV + (sp * 4 + u) * 4, ["buffer_load_dwordx4 %s, v%d, %s, s%d offen offset:%d sc1" % (
        v(KV + (sp * 4 + u) * 4, 4), vOFFV, s(sWS, 4), 4 + sp, u * 1024)]) for sp in range(4) for u in range(4)], 5, 6)
    a.i("v_lshrrev_b32 v3, 5, v0")
    a.i("v_mul_u32_u24 v3, 272, v3")
    a.i("v_and_b32 v4, 31, v0")
    a.i("v_lshl_add_u32 v3, v4, 3, v3")
    for u in range(4):
        for e in range(4):
            r0 = KV + u * 4 + e
            a.i("v_add_f32 v%d, v%d, v%d" % (r0, r0, r0 + 16))
            a.i("v_add_f32 v%d, v%d, v%d" % (r0 + 32, r0 + 32, r0 + 48))
            a.i("v_add_f32 v%d, v%d, v%d" % (r0, r0, r0 + 32))
        bf16_round_pair(12 + 2 * u, KV + u * 4, KV + u * 4 + 1)
        bf16_round_pair(13 + 2 * u, KV + u * 4 + 2, KV + u * 4 + 3)
        a.i("ds_write_b64 v3, %s offset:%d" % (v(12 + 2 * u, 2), QL + u * 544))
    a.i("v_mov_b32 v8, %d" % CNT)
    a.i("v_mov_b32 v9, 1")
    a.i("s_waitcnt lgkmcnt(0)")
    a.i("ds_write_b32 v8, v9 offset:%d" % C_QRDY)
    stamp(5)
    a.i("v_and_b32 v3, 7, v0")
    a.i("v_mul_u32_u24 v3, 14336, v3")
    a.i("v_bfe_u32 v4, v0, 3, 1")
    a.i("v_lshl_add_u32 v3, v4, 7, v3")
    a.i("v_lshrrev_b32 v5, 4, v0")
    a.i("v_lshl_add_u32 v3, v5, 5, v3")
    a.i("v_cmp_le_u32 vcc, 56, v0")
    a.i("v_mov_b32 v6, 0x7ffffff0")
    a.i("v_cndmask_b32 v3, v3, v6, vcc")
    a.i("s_mul_i32 s4, s%d, 224" % sKS)
    a.i("s_add_u32 s8, s4, 0x%x" % UP)
    a.i("s_add_u32 s4, s4, 0x%x" % GP)
    for sp in range(1, 4):
        a.i("s_add_u32 s%d, s4, %d" % (4 + sp, sp * 8 * 14336))
        a.i("s_add_u32 s%d, s8, %d" % (8 + sp, sp * 8 * 14336))
    lds = []
    for sp in range(4):
        for hf in range(2):
            for m in range(2):
                d = KV + m * 32 + (sp * 2 + hf) * 4
                lds.append((d, ["buffer_load_dwordx4 %s, v3, %s, s%d offen offset:%d sc1" % (v(d, 4), s(sWS, 4), 4 + 4 * m + sp, hf * 16)]))
    vgather(lds, 6, 7)
    a.i("s_cmp_lg_u32 s2, %d" % ROOT)
    a.br("s_cbranch_scc1 L_notroot2")
    a.i("v_mov_b32 v8, v4")
    root_bcast(128, 2, "L_rbb")
    a.i("v_mov_b32 v4, v8")
    a.label("L_notroot2")
    G0, U0 = 28, 36
    for m, dst in ((0, G0), (1, U0)):
        for e in range(8):
            r0 = KV + m * 32 + e
            a.i("v_add_f32 v%d, v%d, v%d" % (r0, r0, r0 + 8))
            a.i("v_add_f32 v%d, v%d, v%d" % (r0 + 16, r0 + 16, r0 + 24))
            a.i("v_add_f32 v%d, v%d, v%d" % (dst + e, r0, r0 + 16))
    k_loads()
    a.i("s_mov_b32 s4, 0x3d372713")
    a.i("s_mov_b32 s5, 0xc0135761")
    for e in range(0, 8, 2):
        g0, g1, u0, u1 = G0 + e, G0 + e + 1, U0 + e, U0 + 1 + e
        bf16_round_pair(12, g0, g1)
        bf16_round_pair(13, u0, u1)
        unpack_lo(g0, 12)
        unpack_hi(g1, 12)
        unpack_lo(u0, 13)
        unpack_hi(u1, 13)
        for gg, tt in ((g0, 14), (g1, 15)):
            a.i("v_mul_f32 v%d, v%d, v%d" % (tt, gg, gg))
            a.i("v_mul_f32 v%d, s4, v%d" % (tt, tt))
            a.i("v_fma_f32 v%d, v%d, v%d, v%d" % (tt, tt, gg, gg))
            a.i("v_mul_f32 v%d, s5, v%d" % (tt, tt))
            a.i("v_exp_f32 v%d, v%d" % (tt, tt))
            a.i("v_add_f32 v%d, 1.0, v%d" % (tt, tt))
            a.i("v_rcp_f32 v%d, v%d" % (tt, tt))
            a.i("v_mul_f32 v%d, v%d, v%d" % (tt, tt, gg))
        bf16_round_pair(14, 14, 15)
        unpack_hi(15, 14)
        unpack_lo(14, 14)
        a.i("v_mul_f32 v14, v14, v%d" % u0)
        a.i("v_mul_f32 v15, v15, v%d" % u1)
        bf16_round_pair(16 + e // 2, 14, 15)
    a.i("v_and_b32 v3, 7, v0")
    a.i("v_lshlrev_b32 v3, 6, v3")
    a.i("v_lshl_add_u32 v3, v4, 9, v3")
    a.i("v_lshl_add_u32 v3, v5, 4, v3")
    a.i("ds_write_b128 v3, v[16:19] offset:%d" % HL)
    prio(0)

    a.label("L_kpass")
    stamp(6)
    Q, S, T, Y0 = 12, 28, 44, 60
    a.i("v_and_b32 v3, 7, v0")
    a.i("v_mul_u32_u24 v3, 272, v3")
    a.i("v_lshrrev_b32 v4, 4, v0")
    a.i("v_lshl_add_u32 v3, v4, 6, v3")
    for j in range(4):
        a.i("ds_read_b128 %s, v3 offset:%d" % (v(Q + 4 * j, 4), QL + j * 16))
    DPPA = "quad_perm:[1,0,3,2] row_mask:0xf bank_mask:0xf"
    DPPB = "quad_perm:[2,3,0,1] row_mask:0xf bank_mask:0xf"

    def dma_wait(n, mode):
        if WD_MODE != mode and WO_MODE != mode:
            a.i("s_waitcnt vmcnt(%d)" % n)
            return
        l1, l2 = a.newlabel("L_w"), a.newlabel("L_w")
        a.i("s_cmp_eq_u32 s%d, %d" % (sDMA, mode))
        a.br("s_cbranch_scc1 %s" % l1)
        a.i("s_waitcnt vmcnt(%d)" % n)
        a.label(l1)
        a.i("s_waitcnt vmcnt(%d)" % (n + 8))

    for t in range(4):
        X = KV + t * 16
        dma_wait(12 - 4 * t, 1)
        a.i("s_mov_b64 vcc, s[%d:%d]" % (sMEV, sMEV + 1))
        for pr in (0, 2):
            for e in range(4):
                a.i("v_cndmask_b32_dpp v%d, v%d, v%d, vcc %s" % (T + pr * 4 + e, X + (pr + 1) * 4 + e, X + pr * 4 + e, DPPA))
        a.i("s_mov_b64 vcc, s[%d:%d]" % (sMOD, sMOD + 1))
        for pr in (0, 2):
            for e in range(4):
                a.i("v_cndmask_b32_dpp v%d, v%d, v%d, vcc %s" % (T + (pr + 1) * 4 + e, X + pr * 4 + e, X + (pr + 1) * 4 + e, DPPA))
        a.i("s_mov_b64 vcc, s[%d:%d]" % (sMLO, sMLO + 1))
        for e in range(4):
            a.i("v_cndmask_b32_dpp v%d, v%d, v%d, vcc %s" % (X + e, T + 8 + e, T + e, DPPB))
        for e in range(4):
            a.i("v_cndmask_b32_dpp v%d, v%d, v%d, vcc %s" % (X + 4 + e, T + 12 + e, T + 4 + e, DPPB))
        a.i("s_mov_b64 vcc, s[%d:%d]" % (sMHI, sMHI + 1))
        for e in range(4):
            a.i("v_cndmask_b32_dpp v%d, v%d, v%d, vcc %s" % (X + 8 + e, T + e, T + 8 + e, DPPB))
        for e in range(4):
            a.i("v_cndmask_b32_dpp v%d, v%d, v%d, vcc %s" % (X + 12 + e, T + 4 + e, T + 12 + e, DPPB))
        if t == 0:
            a.i("s_waitcnt lgkmcnt(0)")
        for j in range(4):
            a.i("v_mfma_f32_16x16x32_bf16 %s, %s, %s, %s" % (
                v(S + 4 * t, 4), v(X + 4 * j, 4), v(Q + 4 * j, 4), "0" if j == 0 else v(S + 4 * t, 4)))

    for k in range(0, 16, 2):
        bf16_round_pair(44, S + k, S + k + 1)
        unpack_lo(S + k, 44)
        unpack_hi(S + k + 1, 44)
        a.i("v_mul_f32 v%d, s%d, v%d" % (S + k, sSCALE, S + k))
        a.i("v_mul_f32 v%d, s%d, v%d" % (S + k + 1, sSCALE, S + k + 1))
        bf16_round_pair(44, S + k, S + k + 1)
        unpack_lo(S + k, 44)
        unpack_hi(S + k + 1, 44)
    a.i("v_max3_f32 v4, v%d, v%d, v%d" % (S, S + 1, S + 2))
    for k in range(3, 15, 2):
        a.i("v_max3_f32 v4, v4, v%d, v%d" % (S + k, S + k + 1))
    a.i("v_max_f32 v4, v4, v%d" % (S + 15))
    allreduce_rows("v_max_f32", 4, 5)
    a.i("v_mul_f32 v6, s%d, v4" % sLOG2E)
    for k in range(16):
        a.i("v_fma_f32 v%d, v%d, s%d, -v6" % (S + k, S + k, sLOG2E))
    for k in range(16):
        a.i("v_exp_f32 v%d, v%d" % (S + k, S + k))
    a.i("v_add_f32 v5, v%d, v%d" % (S, S + 1))
    a.i("v_add_f32 v7, v%d, v%d" % (S + 2, S + 3))
    for k in range(4, 16, 2):
        a.i("v_add_f32 v5, v5, v%d" % (S + k))
        a.i("v_add_f32 v7, v7, v%d" % (S + k + 1))
    a.i("v_add_f32 v5, v5, v7")
    allreduce_rows("v_add_f32", 5, 7)
    a.i("v_and_b32 v3, 7, v0")
    a.i("v_lshlrev_b32 v3, 6, v3")
    a.i("s_lshl_b32 s4, s3, 2")
    a.i("v_add_u32 v7, s4, v3")
    a.i("ds_write_b32 v7, v4 offset:%d" % SM)
    a.i("ds_write_b32 v7, v5 offset:%d" % SL)
    a.i("v_lshrrev_b32 v8, 4, v0")
    a.i("v_lshl_add_u32 v9, v8, 4, v3")
    lds_inc(C_M, 4, 5)
    stamp(7)
    v_loads()
    a.i("s_cmp_lg_u32 s%d, 2" % sDMA)
    a.br("s_cbranch_scc1 L_nolate")
    tw_dma()
    a.label("L_nolate")
    stamp(8)
    lds_spin(C_M, 16, 4, 5, sleep=1)
    a.i("ds_read_b128 v[44:47], v9 offset:%d" % SM)
    a.i("ds_read_b128 v[48:51], v9 offset:%d" % SL)
    a.i("s_waitcnt lgkmcnt(0)")
    a.i("v_max3_f32 v7, v44, v45, v46")
    a.i("v_max_f32 v7, v7, v47")
    allreduce_rows("v_max_f32", 7, 8)
    a.i("v_mul_f32 v8, s%d, v7" % sLOG2E)
    a.i("v_sub_f32 v9, v6, v8")
    a.i("v_exp_f32 v9, v9")
    for k in range(16):
        a.i("v_mul_f32 v%d, v9, v%d" % (S + k, S + k))
    for p in range(8):
        bf16_round_pair(S + p, S + 2 * p, S + 2 * p + 1)
    P = S
    for k in range(4):
        a.i("v_fma_f32 v%d, v%d, s%d, -v8" % (44 + k, 44 + k, sLOG2E))
    for k in range(4):
        a.i("v_exp_f32 v%d, v%d" % (44 + k, 44 + k))
    a.i("v_mul_f32 v52, v44, v48")
    for k in range(1, 4):
        a.i("v_fmac_f32 v52, v%d, v%d" % (44 + k, 48 + k))
    allreduce_rows("v_add_f32", 52, 53)
    a.i("v_min_u32 v60, -2, v7")
    a.i("v_min_u32 v61, -2, v52")

    D = [12, 16, 20, 24, 44, 48, 52, 56]
    PT = 36

    def pv_step(u):
        for q in range(4):
            for p in range(4):
                a.i("v_perm_b32 v%d, v%d, v%d, s%d" % (PT + p, KV + (8 * u + 2 * p + 1) * 4 + q, KV + (8 * u + 2 * p) * 4 + q, sSELLO))
            for p in range(4):
                a.i("v_perm_b32 v%d, v%d, v%d, s%d" % (PT + 4 + p, KV + (8 * u + 2 * p + 1) * 4 + q, KV + (8 * u + 2 * p) * 4 + q, sSELHI))
            for h in range(2):
                i = 2 * q + h
                a.i("v_mfma_f32_16x16x32_bf16 %s, %s, %s, %s" % (
                    v(D[i], 4), v(PT + 4 * h, 4), v(P + 4 * u, 4), "0" if u == 0 else v(D[i], 4)))

    a.i("v_and_b32 v3, 15, v0")
    a.i("v_mul_u32_u24 v4, 528, v3")
    a.i("v_lshrrev_b32 v5, 4, v0")
    a.i("v_lshl_add_u32 v4, v5, 7, v4")
    a.i("s_mul_i32 s4, s3, 4224")
    a.i("s_add_u32 s4, s4, %d" % ORED)
    a.i("v_add_u32 v4, s4, v4")
    a.i("v_cmp_gt_u32 vcc, 8, v3")
    a.i("v_mov_b32 v5, %d" % DUMP)
    a.i("v_cndmask_b32 v4, v5, v4, vcc")
    dma_wait(8, 2)
    pv_step(0)
    dma_wait(0, 2)
    stamp(9)
    pv_step(1)
    for i in range(8):
        a.i("ds_write_b128 v4, %s offset:%d" % (v(D[i], 4), i * 16))
    a.i("s_cmp_lg_u32 s3, 0")
    a.br("s_cbranch_scc1 L_nombb")
    mbox_wait(2, "L_mbb")
    a.label("L_nombb")
    a.i("s_waitcnt lgkmcnt(0)")
    a.i("s_barrier")
    stamp(10)
    a.i("s_cmp_ge_u32 s3, 8")
    a.br("s_cbranch_scc1 L_dmawave")
    prio(3)
    a.i("s_cmp_ge_u32 s3, 4")
    a.br("s_cbranch_scc1 L_reducer")
    a.i("s_cmp_eq_u32 s3, 3")
    a.br("s_cbranch_scc1 L_final")
    a.i("s_cmp_eq_u32 s3, 0")
    a.br("s_cbranch_scc1 L_gather")
    a.br("s_branch L_tail")

    a.label("L_reducer")
    a.i("v_lshrrev_b32 v3, 5, v0")
    a.i("s_sub_u32 s6, s3, 4")
    a.i("s_lshl_b32 s4, s6, 1")
    a.i("v_add_u32 v3, s4, v3")
    a.i("v_mul_u32_u24 v3, 528, v3")
    a.i("v_and_b32 v4, 31, v0")
    a.i("v_lshl_add_u32 v3, v4, 4, v3")
    a.i("v_add_u32 v3, %d, v3" % ORED)
    for w2 in range(16):
        a.i("ds_read_b128 %s, v3 offset:%d" % (v(KV + 4 * w2, 4), w2 * 4224))
    a.i("s_lshl_b32 s4, s%d, 12" % sCH)
    a.i("s_lshl_b32 s5, s6, 10")
    a.i("s_add_u32 s4, s4, s5")
    a.i("s_add_u32 s4, s4, 0x%x" % OB1)
    a.i("s_waitcnt lgkmcnt(8)")
    for w2 in range(0, 8, 2):
        for e in range(4):
            a.i("v_add_f32 v%d, v%d, v%d" % (KV + 4 * w2 + e, KV + 4 * w2 + e, KV + 4 * w2 + 4 + e))
    for w2 in (0, 4):
        for e in range(4):
            a.i("v_add_f32 v%d, v%d, v%d" % (KV + 4 * w2 + e, KV + 4 * w2 + e, KV + 4 * w2 + 8 + e))
    for e in range(4):
        a.i("v_add_f32 v%d, v%d, v%d" % (KV + e, KV + e, KV + 16 + e))
    a.i("s_waitcnt lgkmcnt(0)")
    for w2 in range(8, 16, 2):
        for e in range(4):
            a.i("v_add_f32 v%d, v%d, v%d" % (KV + 4 * w2 + e, KV + 4 * w2 + e, KV + 4 * w2 + 4 + e))
    for w2 in (8, 12):
        for e in range(4):
            a.i("v_add_f32 v%d, v%d, v%d" % (KV + 4 * w2 + e, KV + 4 * w2 + e, KV + 4 * w2 + 8 + e))
    for e in range(4):
        a.i("v_add_f32 v%d, v%d, v%d" % (KV + 32 + e, KV + 32 + e, KV + 48 + e))
    for e in range(4):
        a.i("v_add_f32 v%d, v%d, v%d" % (KV + e, KV + e, KV + 32 + e))
    for e in range(4):
        a.i("v_min_u32 v%d, -2, v%d" % (KV + e, KV + e))
    a.i("buffer_store_dwordx4 %s, v%d, %s, s4 offen sc1" % (v(KV, 4), vOFFV, s(sWS, 4)))
    stamp(11)
    a.br("s_branch L_exit")

    a.label("L_dmawave")
    a.i("s_waitcnt vmcnt(0)")
    lds_inc(C_DMA, 3, 4)
    stamp(11)
    a.br("s_branch L_exit")

    a.label("L_gather")
    a.i("s_lshr_b32 s4, s%d, 1" % sKS)
    a.i("s_lshr_b32 s6, s4, 3")
    a.i("s_lshl_b32 s5, s6, 10")
    a.i("s_and_b32 s7, s4, 7")
    a.i("s_lshl_b32 s7, s7, 3")
    a.i("s_add_u32 s5, s5, s7")
    a.i("s_add_u32 s5, s5, 0x%x" % ST)
    a.i("v_lshrrev_b32 v3, 3, v0")
    a.i("v_lshlrev_b32 v3, 12, v3")
    a.i("v_and_b32 v4, 7, v0")
    a.i("v_lshl_add_u32 v3, v4, 7, v3")
    a.i("v_lshrrev_b32 v7, 4, v0")
    a.i("v_lshlrev_b32 v7, 17, v7")
    a.i("v_and_b32 v8, 15, v0")
    a.i("v_lshl_add_u32 v7, v8, 4, v7")
    a.i("s_lshl_b32 s6, s6, 15")
    a.i("s_and_b32 s7, s%d, 15" % sKS)
    a.i("s_lshl_b32 s7, s7, 8")
    a.i("s_add_u32 s6, s6, s7")
    a.i("s_add_u32 s6, s6, 0x%x" % OB1)
    a.i("s_mov_b32 s%d, %d" % (sSPIN, SPIN_G))
    a.label("L_poll_st")
    a.i("buffer_load_dwordx2 v[4:5], v3, %s, s5 offen sc1" % s(sWS, 4))
    a.i("s_waitcnt vmcnt(0)")
    a.i("v_max_u32 v6, v4, v5")
    a.i("v_cmp_eq_u32 vcc, -1, v6")
    a.br("s_cbranch_vccz L_poll_st_done")
    a.i("s_sleep 1")
    a.i("s_sub_u32 s%d, s%d, 1" % (sSPIN, sSPIN))
    a.i("s_cmp_lg_u32 s%d, 0" % sSPIN)
    a.br("s_cbranch_scc1 L_poll_st")
    a.label("L_poll_st_done")
    stamp(11)

    def gather_loads():
        for bh in range(2):
            for sp in range(8):
                a.i("s_add_u32 s7, s6, %d" % (bh * 4 * 32 * 4096 + sp * 4096))
                a.i("buffer_load_dwordx4 %s, v7, %s, s7 offen sc1" % (v(KV + (bh * 8 + sp) * 4, 4), s(sWS, 4)))

    gather_loads()
    a.i("v_mov_b32 v6, v4")
    dpp_reduce16("v_max_f32", 6, n=3)
    a.i("v_sub_f32 v6, v4, v6")
    a.i("v_mul_f32 v6, s%d, v6" % sLOG2E)
    a.i("v_exp_f32 v6, v6")
    a.i("v_mul_f32 v9, v6, v5")
    dpp_reduce16("v_add_f32", 9, n=3)
    a.i("v_rcp_f32 v9, v9")
    a.i("v_mul_f32 v6, v6, v9")
    a.i("v_lshlrev_b32 v3, 2, v0")
    a.i("ds_write_b32 v3, v6 offset:%d" % FL)
    a.i("v_lshrrev_b32 v3, 4, v0")
    a.i("v_lshlrev_b32 v3, 5, v3")
    a.i("s_waitcnt lgkmcnt(0)")
    for bh in range(2):
        for hf in range(2):
            a.i("ds_read_b128 %s, v3 offset:%d" % (v(12 + bh * 8 + hf * 4, 4), FL + bh * 128 + hf * 16))
    a.i("s_mov_b32 s%d, %d" % (sSPIN, SPIN_G))
    a.label("L_poll_o")
    a.i("s_waitcnt vmcnt(0)")
    a.i("v_max3_u32 v4, v%d, v%d, v%d" % (KV, KV + 1, KV + 2))
    a.i("v_max3_u32 v5, v%d, v%d, v%d" % (KV + 3, KV + 4, KV + 5))
    for k in range(6, 62, 4):
        a.i("v_max3_u32 v4, v4, v%d, v%d" % (KV + k, KV + k + 1))
        a.i("v_max3_u32 v5, v5, v%d, v%d" % (KV + k + 2, KV + k + 3))
    a.i("v_max3_u32 v4, v4, v%d, v%d" % (KV + 62, KV + 63))
    a.i("v_max_u32 v4, v4, v5")
    a.i("v_cmp_eq_u32 vcc, -1, v4")
    a.br("s_cbranch_vccz L_poll_o_done")
    a.i("s_sub_u32 s%d, s%d, 1" % (sSPIN, sSPIN))
    a.i("s_cmp_eq_u32 s%d, 0" % sSPIN)
    a.br("s_cbranch_scc1 L_poll_o_done")
    gather_loads()
    a.br("s_branch L_poll_o")
    a.label("L_poll_o_done")
    stamp(12)
    a.i("s_waitcnt lgkmcnt(0)")
    for bh in range(2):
        for e in range(4):
            a.i("v_mul_f32 v%d, v%d, v%d" % (28 + bh * 4 + e, 12 + bh * 8, KV + bh * 32 + e))
        for sp in range(1, 8):
            for e in range(4):
                a.i("v_fmac_f32 v%d, v%d, v%d" % (28 + bh * 4 + e, 12 + bh * 8 + sp, KV + (bh * 8 + sp) * 4 + e))
    a.i("v_bfe_u32 v3, v0, 3, 1")
    a.i("v_lshlrev_b32 v3, 9, v3")
    a.i("v_lshrrev_b32 v4, 4, v0")
    a.i("v_lshl_add_u32 v3, v4, 6, v3")
    a.i("v_and_b32 v4, 7, v0")
    a.i("v_lshl_add_u32 v3, v4, 3, v3")
    for bh in range(2):
        bf16_round_pair(36 + 2 * bh, 28 + bh * 4, 29 + bh * 4)
        bf16_round_pair(37 + 2 * bh, 30 + bh * 4, 31 + bh * 4)
        a.i("ds_write_b64 v3, %s offset:%d" % (v(36 + 2 * bh, 2), OL + bh * 256))
    a.i("v_mov_b32 v3, %d" % CNT)
    a.i("v_mov_b32 v4, 1")
    a.i("ds_write_b32 v3, v4 offset:%d" % C_ORDY)
    stamp(13)
    a.br("s_branch L_exit")

    a.label("L_tail")
    lds_spin(C_DMA, 8, 3, 4, sleep=1)
    stamp(11)
    a.i("s_sub_u32 s4, s3, 1")
    a.i("s_lshl_b32 s5, s4, 15")
    a.i("s_add_u32 s5, s5, %d" % TW)
    a.i("v_add_u32 v5, s5, v%d" % vOFFV)
    a.i("v_and_b32 v6, 7, v0")
    a.i("v_lshlrev_b32 v6, 6, v6")
    a.i("v_lshrrev_b32 v7, 4, v0")
    a.i("v_lshl_add_u32 v6, v7, 4, v6")
    a.i("ds_read_b128 v[28:31], v6 offset:%d" % HL)
    a.i("ds_read_b128 v[32:35], v6 offset:%d" % (HL + 512))
    for st in range(2):
        for j in range(8):
            a.i("ds_read_b128 %s, v5 offset:%d" % (v(KV + (st * 8 + j) * 4, 4), st * 8192 + j * 1024))
    for st in range(2):
        a.i("s_waitcnt lgkmcnt(%d)" % (8 if st == 0 else 0))
        for q in range(4):
            for p in range(4):
                a.i("v_perm_b32 v%d, v%d, v%d, s%d" % (PT + p, KV + (8 * st + 2 * p + 1) * 4 + q, KV + (8 * st + 2 * p) * 4 + q, sSELLO))
            for p in range(4):
                a.i("v_perm_b32 v%d, v%d, v%d, s%d" % (PT + 4 + p, KV + (8 * st + 2 * p + 1) * 4 + q, KV + (8 * st + 2 * p) * 4 + q, sSELHI))
            for h in range(2):
                i = 2 * q + h
                a.i("v_mfma_f32_16x16x32_bf16 %s, %s, %s, %s" % (
                    v(D[i], 4), v(28 + 4 * st, 4), v(PT + 4 * h, 4), "0" if st == 0 else v(D[i], 4)))
    for st in range(2):
        for j in range(8):
            a.i("ds_read_b128 %s, v5 offset:%d" % (v(KV + (st * 8 + j) * 4, 4), (2 + st) * 8192 + j * 1024))
    lds_spin(C_ORDY, 1, 3, 4, sleep=0)
    a.i("ds_read_b128 v[28:31], v6 offset:%d" % OL)
    a.i("ds_read_b128 v[32:35], v6 offset:%d" % (OL + 512))
    for st in range(2):
        for q in range(4):
            for p in range(4):
                a.i("v_perm_b32 v%d, v%d, v%d, s%d" % (PT + p, KV + (8 * st + 2 * p + 1) * 4 + q, KV + (8 * st + 2 * p) * 4 + q, sSELLO))
            for p in range(4):
                a.i("v_perm_b32 v%d, v%d, v%d, s%d" % (PT + 4 + p, KV + (8 * st + 2 * p + 1) * 4 + q, KV + (8 * st + 2 * p) * 4 + q, sSELHI))
            if st == 0 and q == 0:
                a.i("s_waitcnt lgkmcnt(0)")
            for h in range(2):
                i = 2 * q + h
                a.i("v_mfma_f32_16x16x32_bf16 %s, %s, %s, %s" % (
                    v(D[i], 4), v(28 + 4 * st, 4), v(PT + 4 * h, 4), v(D[i], 4)))
    a.i("s_lshl_b32 s5, s2, 13")
    a.i("s_lshl_b32 s6, s4, 12")
    a.i("s_add_u32 s5, s5, s6")
    a.i("s_add_u32 s5, s5, 0x%x" % OB2)
    a.i("s_mov_b32 exec_hi, 0")
    for i in range(8):
        for e in range(4):
            a.i("v_min_u32 v%d, -2, v%d" % (D[i] + e, D[i] + e))
        a.i("buffer_store_dwordx4 %s, v%d, %s, s5 offen offset:%d sc1" % (v(D[i], 4), vOFFV, s(sWS, 4), i * 512))
    a.i("s_mov_b64 exec, -1")
    stamp(13)
    a.br("s_branch L_exit")

    a.label("L_final")
    a.i("buffer_store_dwordx2 v[60:61], v%d, %s, 0 offen sc1" % (vST, s(sWS, 4)))
    a.i("s_lshr_b32 s4, s%d, 5" % sKS)
    a.i("s_lshl_b32 s4, s4, 7")
    a.i("s_lshl_b32 s5, s%d, 8" % sCB)
    a.i("s_add_u32 s4, s4, s5")
    a.i("s_lshr_b32 s5, s%d, 2" % sKS)
    a.i("s_and_b32 s5, s5, 7")
    a.i("s_add_u32 s4, s4, s5")
    a.i("s_and_b32 s5, s%d, 1" % sKS)
    a.i("s_lshl_b32 s5, s5, 6")
    a.i("s_add_u32 s4, s4, s5")
    a.i("s_lshr_b32 s5, s%d, 1" % sKS)
    a.i("s_and_b32 s5, s5, 1")
    a.i("s_lshl_b32 s5, s5, 12")
    a.i("s_add_u32 s4, s4, s5")
    a.i("s_lshl_b32 s4, s4, 1")
    a.i("v_lshrrev_b32 v3, 3, v0")
    a.i("v_and_b32 v4, 7, v0")
    a.i("v_lshlrev_b32 v5, 11, v3")
    a.i("v_lshl_add_u32 v5, v4, 4, v5")
    a.i("v_add_u32 v5, s4, v5")
    a.i("v_cmp_gt_u32 vcc, 32, v0")
    a.i("v_mov_b32 v6, 0x7ffffff0")
    a.i("v_cndmask_b32 v5, v6, v5, vcc")
    a.i("buffer_load_ushort v9, v5, %s, 0 offen" % s(sX, 4))
    a.i("v_lshlrev_b32 v6, 13, v3")
    a.i("v_lshl_add_u32 v6, v4, 4, v6")
    a.i("s_lshl_b32 s5, s%d, 19" % sCB)
    a.i("s_lshl_b32 s6, s%d, 7" % sKS)
    a.i("s_add_u32 s5, s5, s6")
    a.i("s_add_u32 s5, s5, 0x%x" % OB2)
    lds_spin(C_ORDY, 1, 7, 8, sleep=1)
    a.i("s_mov_b32 s%d, %d" % (sSPIN, SPIN_G))
    a.label("L_poll_f")
    for t in range(8):
        a.i("s_add_u32 s6, s5, %d" % (t * 65536))
        a.i("buffer_load_dwordx4 %s, v6, %s, s6 offen sc1" % (v(KV + 4 * t, 4), s(sWS, 4)))
    a.i("s_waitcnt vmcnt(0)")
    a.i("v_max3_u32 v7, v%d, v%d, v%d" % (KV, KV + 1, KV + 2))
    a.i("v_max3_u32 v8, v%d, v%d, v%d" % (KV + 3, KV + 4, KV + 5))
    for k in range(6, 30, 4):
        a.i("v_max3_u32 v7, v7, v%d, v%d" % (KV + k, KV + k + 1))
        a.i("v_max3_u32 v8, v8, v%d, v%d" % (KV + k + 2, KV + k + 3))
    a.i("v_max3_u32 v7, v7, v%d, v%d" % (KV + 30, KV + 31))
    a.i("v_max_u32 v7, v7, v8")
    a.i("v_cmp_eq_u32 vcc, -1, v7")
    a.br("s_cbranch_vccz L_poll_f_done")
    a.i("s_sub_u32 s%d, s%d, 1" % (sSPIN, sSPIN))
    a.i("s_cmp_lg_u32 s%d, 0" % sSPIN)
    a.br("s_cbranch_scc1 L_poll_f")
    a.label("L_poll_f_done")
    stamp(12)
    for t in range(0, 8, 2):
        for e in range(4):
            a.i("v_add_f32 v%d, v%d, v%d" % (KV + 4 * t + e, KV + 4 * t + e, KV + 4 * t + 4 + e))
    for t in (0, 4):
        for e in range(4):
            a.i("v_add_f32 v%d, v%d, v%d" % (KV + 4 * t + e, KV + 4 * t + e, KV + 4 * t + 8 + e))
    for e in range(4):
        a.i("v_add_f32 v%d, v%d, v%d" % (KV + e, KV + e, KV + 16 + e))
    for e in range(4):
        a.i("v_add_f32_dpp v%d, v%d, v%d row_ror:8 row_mask:0xf bank_mask:0xf" % (KV + e, KV + e, KV + e))
    for e in range(4):
        allreduce_rows("v_add_f32", KV + e, KV + 8 + e)
    a.i("v_cmp_eq_u32 vcc, 1, v3")
    a.i("v_cndmask_b32 v7, v%d, v%d, vcc" % (KV, KV + 1))
    a.i("v_cmp_eq_u32 vcc, 2, v3")
    a.i("v_cndmask_b32 v7, v7, v%d, vcc" % (KV + 2))
    a.i("v_cmp_eq_u32 vcc, 3, v3")
    a.i("v_cndmask_b32 v7, v7, v%d, vcc" % (KV + 3))
    a.i("v_lshlrev_b32 v9, 16, v9")
    a.i("v_add_f32 v7, v7, v9")
    bf16_round_pair(7, 7, 7)
    a.i("buffer_store_short v7, v5, %s, 0 offen" % s(sOUT, 4))
    a.i("s_cmp_lg_u32 s2, %d" % ROOT)
    a.br("s_cbranch_scc1 L_noreset")
    a.i("v_mov_b32 v3, 0")
    a.i("v_lshlrev_b32 v4, 2, v0")
    a.i("buffer_store_dword v3, v4, %s, 0 offen offset:%d sc1" % (s(sDBG, 4), AOFF))
    a.label("L_noreset")
    stamp(13)

    a.label("L_exit")
    if diag == 2:
        a.i("v_not_b32 v4, v%d" % vSTAMP)
        a.i("v_cmp_eq_u32 vcc, 0, v0")
        a.i("v_cndmask_b32 v4, v%d, v4, vcc" % vSTAMP)
        a.i("v_lshlrev_b32 v3, 2, v0")
        a.i("s_mov_b64 exec, 0xffff")
        a.i("buffer_atomic_umax v4, v3, %s, 0 offen sc1" % s(sDBG, 4))
    if diag == 1:
        a.i("s_lshl_b32 s4, s2, 4")
        a.i("s_add_u32 s4, s4, s3")
        a.i("s_lshl_b32 s4, s4, 8")
        a.i("s_add_u32 s4, s4, 0x%x" % STAMP)
        a.i("v_lshlrev_b32 v3, 2, v0")
        a.i("buffer_store_dword v%d, v3, %s, s4 offen" % (vSTAMP, s(sWS, 4)))
    a.label("L_end")
    a.i("s_endpgm")

    a.raw('.section .rodata,"a"')
    a.raw(".p2align 6")
    a.raw(".amdhsa_kernel " + NAME)
    a.raw("  .amdhsa_next_free_vgpr 128")
    a.raw("  .amdhsa_next_free_sgpr 102")
    a.raw("  .amdhsa_accum_offset 128")
    a.raw("  .amdhsa_group_segment_fixed_size 0")
    a.raw("  .amdhsa_kernarg_size 96")
    a.raw("  .amdhsa_user_sgpr_count 2")
    a.raw("  .amdhsa_user_sgpr_kernarg_segment_ptr 1")
    a.raw("  .amdhsa_system_sgpr_workgroup_id_x 1")
    a.raw(".end_amdhsa_kernel")
    return a.text()


if __name__ == "__main__":
    cfg = {}
    out = sys.argv[1]
    for kv in sys.argv[2:]:
        k, val = kv.split("=")
        cfg[k] = int(val, 0)
    open(out, "w").write(gen(cfg))
```

```python
import sys
from asmlib import Asm, v, s

NAME = "parallel_sum__gqa_block_cached__glu_gated_geglu__decode_kernel"

QP = 0x000000
GP = 0x080000
UP = 0x100000
OB1 = 0x200000
ST = 0x300000
MB = 0x380000
OB2 = 0x400000
STAMP = 0x800000
WS_SIZE = 0x1000000

DUMP = 0
QL = 512
HL = 2688
OL = 3712
SM = 4736
SL = 5248
FL = 5760
CNT = 6016
C_DMA, C_ORDY, C_PUB, C_QRDY, C_M, C_P1 = 0, 4, 8, 12, 16, 20
C_BC = 32
ROOT = 255
XN = 6144
R1 = 22656
ORED = 6144
TW = 75776
LDS_SIZE = TW + 65536

sX, sK, sV, sW1, sWT, sWS, sOUT, sDBG = 40, 44, 48, 52, 56, 60, 64, 68
sSELLO, sSELHI = 72, 73
sT = 74
sCH, sB, sKVH, sS, sCB, sKS = 78, 79, 80, 81, 82, 83
sW1OFF, sPITCH, sSPIN, sLOG2E = 84, 85, 86, 87
sMEV, sMOD, sMLO, sMHI = 88, 90, 92, 94
sK0, sCG, sSG = 96, 97, 98
sSCALE = 99
sDMA = 100
sMBX = 101

vOFFK, vOFFV = 1, 2
vST = 10
vSTAMP = 11
KV = 64


def gen(cfg):
    a = Asm()
    NT = " nt" if cfg.get("nt", 1) else ""
    NTW = " nt" if cfg.get("ntw", 1) else ""
    NTT = " nt" if cfg.get("ntt", 1) else ""
    diag = cfg.get("diag", 0)
    SPIN_G = cfg.get("spin_g", 1 << 17)
    SPIN_L = cfg.get("spin_l", 1 << 21)
    WD_MODE = cfg.get("wd", 2)
    WO_MODE = cfg.get("wo", 2)
    PF = cfg.get("pf", 1)
    PRIO = cfg.get("prio", 1)
    AMASK = 15 if diag == 2 else 31
    AOFF = 64 if diag == 2 else 0

    def prio(n):
        if PRIO:
            a.i("s_setprio %d" % n)

    def stamp(idx):
        if not diag:
            return
        a.i("s_memrealtime s[14:15]")
        a.i("s_waitcnt lgkmcnt(0)")
        a.i("v_writelane_b32 v%d, s14, %d" % (vSTAMP, idx))

    def srd(d, p, size, off_lo=None):
        if off_lo is None:
            a.i("s_mov_b32 s%d, s%d" % (d, p))
            a.i("s_and_b32 s%d, s%d, 0xffff" % (d + 1, p + 1))
        else:
            a.i("s_add_u32 s%d, s%d, s%d" % (d, p, off_lo))
            a.i("s_addc_u32 s%d, s%d, 0" % (d + 1, p + 1))
            a.i("s_and_b32 s%d, s%d, 0xffff" % (d + 1, d + 1))
        a.i("s_mov_b32 s%d, 0x%x" % (d + 2, size))
        a.i("s_mov_b32 s%d, 0x00020000" % (d + 3))

    def bf16_round_pair(dst, x0, x1):
        a.i("v_cvt_pk_bf16_f32 v%d, v%d, v%d" % (dst, x0, x1))

    def unpack_lo(dst, src):
        a.i("v_lshlrev_b32 v%d, 16, v%d" % (dst, src))

    def unpack_hi(dst, src):
        a.i("v_and_b32 v%d, 0xffff0000, v%d" % (dst, src))

    def allreduce_rows(op, x, tmp, do16=True, do32=True):
        if do16:
            a.i("v_mov_b32 v%d, v%d" % (tmp, x))
            a.i("v_permlane16_swap_b32 v%d, v%d" % (x, tmp))
            a.i("%s v%d, v%d, v%d" % (op, x, x, tmp))
        if do32:
            a.i("v_mov_b32 v%d, v%d" % (tmp, x))
            a.i("v_permlane32_swap_b32 v%d, v%d" % (x, tmp))
            a.i("%s v%d, v%d, v%d" % (op, x, x, tmp))

    def dpp_reduce16(op, x, n=4):
        pats = ["quad_perm:[1,0,3,2]", "quad_perm:[2,3,0,1]", "row_half_mirror", "row_mirror"]
        for p in pats[:n]:
            a.i("%s_dpp v%d, v%d, v%d %s row_mask:0xf bank_mask:0xf" % (op, x, x, x, p))

    def lds_spin(off, val, va, vd, sleep=1):
        l0, l1 = a.newlabel("L_sp"), a.newlabel("L_sp")
        a.i("v_mov_b32 v%d, %d" % (va, CNT))
        a.i("s_mov_b32 s%d, %d" % (sSPIN, SPIN_L))
        a.label(l0)
        a.i("ds_read_b32 v%d, v%d offset:%d" % (vd, va, off))
        a.i("s_waitcnt lgkmcnt(0)")
        a.i("v_cmp_ne_u32 vcc, %d, v%d" % (val, vd))
        a.br("s_cbranch_vccz %s" % l1)
        if sleep:
            a.i("s_sleep %d" % sleep)
        a.i("s_sub_u32 s%d, s%d, 1" % (sSPIN, sSPIN))
        a.i("s_cmp_lg_u32 s%d, 0" % sSPIN)
        a.br("s_cbranch_scc1 %s" % l0)
        a.label(l1)

    def lds_inc(off, va, vd):
        a.i("v_mov_b32 v%d, %d" % (va, CNT))
        a.i("v_mov_b32 v%d, 1" % vd)
        a.i("s_mov_b64 exec, 1")
        a.i("ds_add_u32 v%d, v%d offset:%d" % (va, vd, off))
        a.i("s_mov_b64 exec, -1")

    def vgather(loads, t0, t1, between=None):
        ltop, ldone = a.newlabel("L_vg"), a.newlabel("L_vg")
        for dst, ins in loads:
            for x in ins:
                a.i(x)
        if between:
            between()
        a.i("s_mov_b32 s%d, %d" % (sSPIN, SPIN_G))
        a.label(ltop)
        a.i("s_waitcnt vmcnt(0)")
        regs = [dst + e for dst, _ in loads for e in range(4)]
        a.i("v_max3_u32 v%d, v%d, v%d, v%d" % (t0, regs[0], regs[1], regs[2]))
        a.i("v_max3_u32 v%d, v%d, v%d, v%d" % (t1, regs[3], regs[4], regs[5]))
        k = 6
        while k + 4 <= len(regs):
            a.i("v_max3_u32 v%d, v%d, v%d, v%d" % (t0, t0, regs[k], regs[k + 1]))
            a.i("v_max3_u32 v%d, v%d, v%d, v%d" % (t1, t1, regs[k + 2], regs[k + 3]))
            k += 4
        assert len(regs) - k == 2
        a.i("v_max3_u32 v%d, v%d, v%d, v%d" % (t0, t0, regs[k], regs[k + 1]))
        a.i("v_max_u32 v%d, v%d, v%d" % (t0, t0, t1))
        a.i("v_cmp_eq_u32 vcc, -1, v%d" % t0)
        a.br("s_cbranch_vccz %s" % ldone)
        a.i("s_sub_u32 s%d, s%d, 1" % (sSPIN, sSPIN))
        a.i("s_cmp_eq_u32 s%d, 0" % sSPIN)
        a.br("s_cbranch_scc1 %s" % ldone)
        for dst, ins in loads:
            lsk = a.newlabel("L_vs")
            a.i("v_max3_u32 v%d, v%d, v%d, v%d" % (t0, dst, dst + 1, dst + 2))
            a.i("v_max_u32 v%d, v%d, v%d" % (t0, t0, dst + 3))
            a.i("v_cmp_eq_u32 vcc, -1, v%d" % t0)
            a.br("s_cbranch_vccz %s" % lsk)
            for x in ins:
                a.i(x)
            a.label(lsk)
        a.br("s_branch %s" % ltop)
        a.label(ldone)

    def pub_addr(vq, vg, t0, t1):
        a.i("v_and_b32 v%d, 15, v0" % t0)
        a.i("v_lshrrev_b32 v%d, 4, v0" % t1)
        a.i("v_lshlrev_b32 v%d, 14, v%d" % (vq, t1))
        a.i("v_lshl_add_u32 v%d, v%d, 4, v%d" % (vq, t0, vq))
        a.i("v_mul_u32_u24 v%d, 14336, v%d" % (vg, t1))
        a.i("v_lshl_add_u32 v%d, v%d, 4, v%d" % (vg, t0, vg))
        a.i("s_cmp_lt_u32 s2, 224")
        a.i("s_cselect_b32 s4, 0, 0x7ffffff0")
        a.i("v_or_b32 v%d, s4, v%d" % (vg, vg))
        a.i("s_lshl_b32 s4, s%d, 17" % sCB)
        a.i("s_lshl_b32 s5, s%d, 8" % sKS)
        a.i("s_add_u32 s4, s4, s5")
        a.i("s_add_u32 s4, s4, 0x%x" % QP)
        a.i("s_mul_i32 s5, s%d, %d" % (sSG, 8 * 14336))
        a.i("s_lshl_b32 s6, s%d, 8" % sCG)
        a.i("s_add_u32 s5, s5, s6")
        a.i("s_add_u32 s6, s5, 0x%x" % UP)
        a.i("s_add_u32 s5, s5, 0x%x" % GP)

    hdr = open("parallel_sum__gqa_block_cached__glu_gated_geglu__decode.s.ref").read().split("\n")
    for l in hdr:
        if l.startswith("; @launch"):
            break
        a.raw(l)
    a.raw("; @launch grid=(256,1,1) block=(1024,1,1) lds=%d" % LDS_SIZE)
    a.raw('.amdgcn_target "amdgcn-amd-amdhsa--gfx950"')
    a.raw(".text")
    a.raw(".globl " + NAME)
    a.raw(".p2align 8")
    a.raw(".type %s,@function" % NAME)
    a.raw(NAME + ":")

    a.i("s_cmp_ge_u32 s2, 256")
    a.i("s_cbranch_scc1 L_end")
    a.i("s_load_dwordx16 s[16:31], s[0:1], 0")
    a.i("s_load_dwordx8 s[32:39], s[0:1], 64")
    a.i("v_lshrrev_b32 v1, 6, v0")
    a.i("v_readfirstlane_b32 s3, v1")
    a.i("v_and_b32 v0, 63, v0")
    if diag:
        a.i("v_mov_b32 v%d, 0" % vSTAMP)
    a.i("s_and_b32 s4, s2, 31")
    a.i("s_lshr_b32 s%d, s2, 5" % sS)
    a.i("s_lshl_b32 s%d, s4, 3" % sCH)
    a.i("s_add_u32 s%d, s%d, s%d" % (sCH, sCH, sS))
    a.i("s_lshr_b32 s%d, s4, 2" % sB)
    a.i("s_and_b32 s%d, s4, 3" % sKVH)
    a.i("s_lshr_b32 s%d, s2, 6" % sCB)
    a.i("s_and_b32 s%d, s2, 63" % sKS)
    a.i("s_mul_i32 s%d, s2, 1171" % sSG)
    a.i("s_lshr_b32 s%d, s%d, 16" % (sSG, sSG))
    a.i("s_mul_i32 s5, s%d, 56" % sSG)
    a.i("s_sub_u32 s%d, s2, s5" % sCG)
    a.i("s_sub_u32 s8, s3, 4")
    a.i("s_lshr_b32 s9, s8, 2")
    a.i("s_and_b32 s10, s8, 3")
    a.i("s_movk_i32 s%d, 7168" % sPITCH)
    a.i("s_cmp_eq_u32 s9, 0")
    a.i("s_cselect_b32 s%d, 8192, s%d" % (sPITCH, sPITCH))
    a.i("s_cselect_b32 s11, s%d, s%d" % (sCB, sSG))
    a.i("s_cselect_b32 s12, s%d, s%d" % (sKS, sCG))
    a.i("s_lshl_b32 s%d, s11, 8" % sK0)
    a.i("s_lshl_b32 s13, s10, 6")
    a.i("s_add_u32 s%d, s%d, s13" % (sK0, sK0))
    a.i("s_mul_i32 s%d, s%d, s%d" % (sW1OFF, sK0, sPITCH))
    a.i("s_lshl_b32 s12, s12, 7")
    a.i("s_add_u32 s%d, s%d, s12" % (sW1OFF, sW1OFF))
    a.i("s_lshl_b32 s14, s%d, 18" % sCH)
    a.i("v_lshrrev_b32 v3, 4, v0")
    a.i("v_lshlrev_b32 v3, 3, v3")
    a.i("v_bfe_u32 v4, v0, 3, 1")
    a.i("v_lshl_add_u32 v3, v4, 5, v3")
    a.i("v_mul_lo_u32 v3, v3, s%d" % sPITCH)
    a.i("v_and_b32 v4, 7, v0")
    a.i("v_lshl_add_u32 v3, v4, 4, v3")
    a.i("v_lshrrev_b32 v5, 5, v0")
    a.i("v_lshlrev_b32 v5, 11, v5")
    a.i("v_and_b32 v4, 31, v0")
    a.i("v_lshl_add_u32 v5, v4, 4, v5")
    a.i("s_lshl_b32 s5, s3, 12")
    a.i("s_lshr_b32 s6, s2, 2")
    a.i("s_lshl_b32 s6, s6, 7")
    a.i("s_and_b32 s7, s2, 3")
    a.i("s_lshl_b32 s7, s7, 2")
    a.i("s_add_u32 s6, s6, s7")
    a.i("s_add_u32 s%d, s6, 0x%x" % (sMBX, MB))
    a.i("s_waitcnt lgkmcnt(0)")
    srd(sX, 16, 16384)
    srd(sWS, 38, WS_SIZE)
    a.i("s_cmp_eq_u32 s9, 1")
    a.i("s_cselect_b32 s%d, s28, s30" % sW1)
    a.i("s_cselect_b32 s%d, s29, s31" % (sW1 + 1))
    a.i("s_cmp_lt_u32 s2, 224")
    a.i("s_cselect_b32 s%d, 0x700000, 0" % (sW1 + 2))
    a.i("s_cmp_eq_u32 s9, 0")
    a.i("s_cselect_b32 s%d, s22, s%d" % (sW1, sW1))
    a.i("s_cselect_b32 s%d, s23, s%d" % (sW1 + 1, sW1 + 1))
    a.i("s_cselect_b32 s%d, 0x800000, s%d" % (sW1 + 2, sW1 + 2))
    a.i("s_and_b32 s%d, s%d, 0xffff" % (sW1 + 1, sW1 + 1))
    a.i("s_mov_b32 s%d, 0x00020000" % (sW1 + 3))
    a.i("s_cmp_lt_u32 s3, 4")
    a.br("s_cbranch_scc1 L_xload")
    a.i("s_mov_b32 s4, s%d" % sW1OFF)
    for j in range(8):
        a.i("buffer_load_dwordx4 %s, v3, %s, s4 offen%s" % (v(12 + 4 * j, 4), s(sW1, 4), NTW))
        if j < 7:
            a.i("s_add_u32 s4, s4, s%d" % sPITCH)
    a.br("s_branch L_pro2")
    a.label("L_xload")
    a.i("s_mov_b32 s13, s5")
    a.i("s_cmp_lg_u32 s3, 0")
    a.br("s_cbranch_scc1 L_xload2")
    prio(3)
    for k in range(4):
        a.i("v_mov_b32 v%d, -1" % (60 + k))
    pub_addr(6, 7, 3, 4)
    for u in range(2):
        a.i("s_add_u32 s7, s4, %d" % (u * 4 * 16384))
        a.i("buffer_store_dwordx4 v[60:63], v6, %s, s7 offen sc1" % s(sWS, 4))
        for sg in (5, 6):
            a.i("s_add_u32 s7, s%d, %d" % (sg, u * 4 * 14336))
            a.i("buffer_store_dwordx4 v[60:63], v7, %s, s7 offen sc1" % s(sWS, 4))
    a.i("v_mov_b32 v3, s%d" % sMBX)
    a.i("s_mov_b64 exec, 1")
    a.i("buffer_store_dword v60, v3, %s, 0 offen sc1" % s(sWS, 4))
    a.i("s_mov_b64 exec, -1")
    a.label("L_xload2")
    for u in range(4):
        a.i("buffer_load_dwordx4 %s, v5, %s, s13 offen offset:%d" % (v(12 + 4 * u, 4), s(sX, 4), u * 512))
    a.label("L_pro2")
    srd(sK, 18, 0x40000, off_lo=14)
    srd(sV, 20, 0x40000, off_lo=14)
    srd(sOUT, 34, 16384)
    srd(sDBG, 36, 256)
    a.i("s_mov_b32 s15, 0x700000")
    a.i("s_cmp_ge_u32 s3, 12")
    a.i("s_cselect_b32 s%d, s24, s32" % sWT)
    a.i("s_cselect_b32 s%d, s25, s33" % (sWT + 1))
    a.i("s_cselect_b32 s%d, 0x800000, s15" % (sWT + 2))
    a.i("s_cselect_b32 s%d, %d, %d" % (sDMA, WO_MODE, WD_MODE))
    a.i("s_and_b32 s%d, s%d, 0xffff" % (sWT + 1, sWT + 1))
    a.i("s_mov_b32 s%d, 0x00020000" % (sWT + 3))
    a.i("s_cmp_lt_u32 s3, 8")
    a.i("s_cselect_b32 s%d, 0, s%d" % (sDMA, sDMA))
    a.i("s_mov_b32 s%d, 0x05040100" % sSELLO)
    a.i("s_mov_b32 s%d, 0x07060302" % sSELHI)
    a.i("s_mov_b32 s%d, 0x3fb8aa3b" % sLOG2E)
    a.i("s_mov_b32 s%d, 0x3db504f3" % sSCALE)
    for r, m in ((sMEV, 0x55555555), (sMOD, 0xaaaaaaaa), (sMLO, 0x33333333), (sMHI, 0xcccccccc)):
        a.i("s_mov_b32 s%d, 0x%x" % (r, m))
        a.i("s_mov_b32 s%d, 0x%x" % (r + 1, m))
    a.i("v_lshlrev_b32 v%d, 4, v0" % vOFFV)
    a.i("v_bfe_u32 v3, v0, 2, 2")
    a.i("v_lshlrev_b32 v3, 8, v3")
    a.i("v_lshrrev_b32 v4, 4, v0")
    a.i("v_lshl_add_u32 v3, v4, 6, v3")
    a.i("v_and_b32 v4, 3, v0")
    a.i("v_lshl_add_u32 v%d, v4, 4, v3" % vOFFK)
    a.i("s_lshl_b32 s6, s%d, 7" % sCH)
    a.i("s_add_u32 s6, s6, 0x%x" % ST)
    a.i("v_lshlrev_b32 v%d, 3, v0" % vST)
    a.i("v_add_u32 v%d, s6, v%d" % (vST, vST))
    a.i("v_cmp_gt_u32 vcc, 8, v0")
    a.i("v_mov_b32 v5, 0x7ffffff0")
    a.i("v_cndmask_b32 v%d, v5, v%d, vcc" % (vST, vST))
    a.i("s_lshl_b32 s6, s3, 14")
    a.i("s_add_u32 s7, s3, s2")
    for t in range(4):
        a.i("s_add_u32 s8, s7, %d" % t)
        a.i("s_and_b32 s8, s8, 3")
        a.i("s_lshl_b32 s8, s8, 12")
        a.i("s_add_u32 s%d, s6, s8" % (sT + t))
    stamp(0)

    def k_loads():
        for t in range(4):
            for r in range(4):
                a.i("buffer_load_dwordx4 %s, v%d, %s, s%d offen offset:%d%s" % (
                    v(KV + (t * 4 + r) * 4, 4), vOFFK, s(sK, 4), sT + t, r * 1024, NT))

    def v_loads():
        for t in range(4):
            for r in range(4):
                a.i("buffer_load_dwordx4 %s, v%d, %s, s%d offen offset:%d%s" % (
                    v(KV + (t * 4 + r) * 4, 4), vOFFV, s(sV, 4), sT + t, r * 1024, NT))

    def tw_dma():
        a.i("s_sub_u32 s4, s3, 8")
        a.i("s_and_b32 s5, s4, 1")
        a.i("s_lshr_b32 s6, s4, 1")
        a.i("s_and_b32 s7, s6, 1")
        a.i("s_movk_i32 s9, 16384")
        a.i("s_cmp_ge_u32 s3, 12")
        a.i("s_cselect_b32 s8, 64, 56")
        a.i("s_cselect_b32 s9, 4096, s9")
        a.i("s_mul_i32 s8, s8, s%d" % sKS)
        a.i("s_lshl_b32 s10, s7, 5")
        a.i("s_add_u32 s8, s8, s10")
        a.i("s_lshl_b32 s8, s8, 11")
        a.i("s_lshl_b32 s10, s%d, 9" % sCB)
        a.i("s_add_u32 s8, s8, s10")
        a.i("s_lshl_b32 s10, s5, 8")
        a.i("s_add_u32 s8, s8, s10")
        a.i("s_cmp_eq_u32 s6, 1")
        a.i("s_cselect_b32 s10, 2, 3")
        a.i("v_lshrrev_b32 v3, 4, v0")
        a.i("v_min_u32 v3, s10, v3")
        a.i("v_mul_lo_u32 v3, v3, s9")
        a.i("v_and_b32 v8, 15, v0")
        a.i("v_lshl_add_u32 v3, v8, 4, v3")
        a.i("s_lshl_b32 s10, s5, 2")
        a.i("s_add_u32 s10, s10, s6")
        a.i("s_lshl_b32 s10, s10, 13")
        a.i("s_add_u32 s10, s10, %d" % TW)
        for j in range(8):
            jr_wd = j * 2048
            jr_wo = (8 * (j & 3) + (j >> 2)) * 2048
            a.i("s_mov_b32 s11, %d" % jr_wd)
            a.i("s_cmp_ge_u32 s3, 12")
            a.i("s_cselect_b32 s11, %d, s11" % jr_wo)
            a.i("s_add_u32 s11, s11, s8")
            a.i("s_add_u32 m0, s10, %d" % (j * 1024))
            a.i("buffer_load_dwordx4 v3, %s, s11 offen%s lds" % (s(sWT, 4), NTT))

    a.i("s_cmp_ge_u32 s3, 4")
    a.br("s_cbranch_scc1 L_bar1")
    a.i("s_cmp_eq_u32 s3, 0")
    a.br("s_cbranch_scc1 L_comm_clear")
    NPF = cfg.get("npf", 6)
    if PF:
        a.i("s_cmp_lg_u32 s3, 1")
        a.br("s_cbranch_scc1 L_nopf")
        a.i("s_getpc_b64 s[6:7]")
        a.label("L_pc")
        a.i("v_lshlrev_b32 v3, 6, v0")
        for k in range(NPF):
            a.i("v_min_u32 v4, L_end-L_pc, v3")
            a.i("global_load_dword v%d, v4, s[6:7]" % (60 + (k & 3)))
            if k < NPF - 1:
                a.i("v_add_u32 v3, 4096, v3")
        a.i("s_waitcnt vmcnt(%d)" % NPF)
        a.br("s_branch L_ln")
        a.label("L_nopf")
    PT = cfg.get("pt", 0)
    if PT:
        a.i("s_cmp_lg_u32 s3, 2")
        a.br("s_cbranch_scc1 L_pt3")
        a.i("v_lshlrev_b32 v3, %d, v0" % (12 if PT == 1 else 16))
        a.i("buffer_load_dword v60, v3, %s, 0 offen" % s(sV, 4))
        a.i("buffer_load_dword v61, v3, %s, 0 offen" % s(sOUT, 4))
        a.i("s_waitcnt vmcnt(2)")
        a.br("s_branch L_ln")
        a.label("L_pt3")
        a.i("s_cmp_lg_u32 s3, 3")
        a.br("s_cbranch_scc1 L_pt4")
        srd(4, 24, 0x800000)
        srd(8, 32, 0x700000)
        if PT == 1:
            a.i("v_lshrrev_b32 v3, 1, v0")
            a.i("v_lshlrev_b32 v3, 12, v3")
        else:
            a.i("v_lshrrev_b32 v3, 5, v0")
            a.i("v_lshlrev_b32 v3, 16, v3")
        a.i("s_lshl_b32 s12, s%d, 17" % sKS)
        a.i("s_lshl_b32 s13, s%d, 9" % sCB)
        a.i("s_add_u32 s12, s12, s13")
        a.i("v_add_u32 v4, s12, v3")
        a.i("buffer_load_dword v60, v4, s[4:7], 0 offen")
        a.i("s_mul_i32 s12, s%d, %d" % (sKS, 56 * 2048))
        a.i("s_add_u32 s12, s12, s13")
        a.i("v_add_u32 v4, s12, v3")
        a.i("buffer_load_dword v61, v4, s[8:11], 0 offen")
        a.i("s_waitcnt vmcnt(2)")
        a.br("s_branch L_ln")
        a.label("L_pt4")
    a.i("s_waitcnt vmcnt(0)")
    a.br("s_branch L_ln")
    a.label("L_comm_clear")
    a.i("s_lshl_b32 s6, s%d, 12" % sCH)
    a.i("s_add_u32 s6, s6, 0x%x" % OB1)
    for k in range(4):
        a.i("buffer_store_dwordx4 v[60:63], v%d, %s, s6 offen offset:%d sc1" % (vOFFV, s(sWS, 4), k * 1024))
    a.i("s_lshl_b32 s6, s2, 13")
    a.i("s_add_u32 s6, s6, 0x%x" % OB2)
    for k in range(4):
        a.i("buffer_store_dwordx4 v[60:63], v%d, %s, s6 offen offset:%d sc1" % (vOFFV, s(sWS, 4), k * 1024))
    a.i("s_add_u32 s6, s6, 4096")
    for k in range(4):
        a.i("buffer_store_dwordx4 v[60:63], v%d, %s, s6 offen offset:%d sc1" % (vOFFV, s(sWS, 4), k * 1024))
    a.i("buffer_store_dwordx2 v[60:61], v%d, %s, 0 offen sc1" % (vST, s(sWS, 4)))
    a.i("v_mov_b32 v5, %d" % CNT)
    for k in range(4):
        a.i("v_mov_b32 v%d, 0" % (6 + k))
    a.i("ds_write_b128 v5, v[6:9]")
    a.i("ds_write_b128 v5, v[6:9] offset:16")
    a.i("ds_write_b128 v5, v[6:9] offset:32")
    a.i("s_and_b32 s6, s2, %d" % AMASK)
    a.i("s_lshl_b32 s6, s6, 2")
    a.i("v_mov_b32 v3, s6")
    a.i("v_mov_b32 v4, 1")
    a.i("s_waitcnt vmcnt(13)")
    a.i("s_mov_b64 exec, 1")
    a.i("buffer_atomic_add v4, v3, %s, 0 offen offset:%d sc1" % (s(sDBG, 4), AOFF))
    a.i("s_mov_b64 exec, -1")
    stamp(14)

    a.label("L_ln")
    for k in range(16):
        unpack_lo(28 + 2 * k, 12 + k)
        unpack_hi(29 + 2 * k, 12 + k)
    a.i("v_add_f32 v4, v28, v29")
    a.i("v_add_f32 v5, v30, v31")
    for k in range(4, 32, 2):
        a.i("v_add_f32 v4, v4, v%d" % (28 + k))
        a.i("v_add_f32 v5, v5, v%d" % (29 + k))
    a.i("v_add_f32 v4, v4, v5")
    dpp_reduce16("v_add_f32", 4)
    allreduce_rows("v_add_f32", 4, 5, do32=False)
    a.i("v_mul_f32 v4, 0x3a800000, v4")
    a.i("v_mov_b32 v6, 0")
    a.i("v_mov_b32 v7, 0")
    for k in range(0, 32, 2):
        a.i("v_sub_f32 v8, v%d, v4" % (28 + k))
        a.i("v_sub_f32 v9, v%d, v4" % (29 + k))
        a.i("v_fmac_f32 v6, v8, v8")
        a.i("v_fmac_f32 v7, v9, v9")
    a.i("v_add_f32 v6, v6, v7")
    dpp_reduce16("v_add_f32", 6)
    allreduce_rows("v_add_f32", 6, 7, do32=False)
    a.i("v_mul_f32 v6, 0x3a800000, v6")
    bf16_round_pair(5, 4, 6)
    unpack_lo(4, 5)
    unpack_hi(6, 5)
    a.i("v_add_f32 v6, 0x3727c5ac, v6")
    bf16_round_pair(6, 6, 6)
    unpack_lo(6, 6)
    a.i("v_sqrt_f32 v6, v6")
    bf16_round_pair(6, 6, 6)
    unpack_lo(6, 6)
    a.i("v_rcp_f32 v6, v6")
    for k in range(16):
        a.i("v_sub_f32 v8, v%d, v4" % (28 + 2 * k))
        a.i("v_sub_f32 v9, v%d, v4" % (29 + 2 * k))
        bf16_round_pair(8, 8, 9)
        unpack_hi(9, 8)
        unpack_lo(8, 8)
        a.i("v_mul_f32 v8, v8, v6")
        a.i("v_mul_f32 v9, v9, v6")
        bf16_round_pair(12 + k, 8, 9)
    a.i("v_lshrrev_b32 v4, 5, v0")
    a.i("s_lshl_b32 s5, s3, 1")
    a.i("v_add_u32 v4, s5, v4")
    a.i("v_mul_u32_u24 v4, 2064, v4")
    a.i("v_and_b32 v5, 31, v0")
    a.i("v_lshl_add_u32 v4, v5, 4, v4")
    for u in range(4):
        a.i("ds_write_b128 v4, %s offset:%d" % (v(12 + 4 * u, 4), XN + u * 512))
    a.i("s_waitcnt lgkmcnt(0)")

    a.label("L_bar1")
    a.i("s_barrier")
    stamp(1)
    a.i("s_cmp_eq_u32 s3, 0")
    a.br("s_cbranch_scc1 L_comm")
    a.i("s_cmp_lt_u32 s3, 4")
    a.br("s_cbranch_scc1 L_kload")
    a.i("v_and_b32 v3, 7, v0")
    a.i("v_mul_u32_u24 v3, 2064, v3")
    a.i("v_bfe_u32 v4, v0, 3, 1")
    a.i("v_lshl_add_u32 v3, v4, 6, v3")
    a.i("v_lshrrev_b32 v5, 4, v0")
    a.i("v_lshl_add_u32 v3, v5, 4, v3")
    a.i("s_lshl_b32 s4, s%d, 1" % sK0)
    a.i("s_and_b32 s4, s4, 2047")
    a.i("v_add_u32 v3, s4, v3")
    a.i("ds_read_b128 v[44:47], v3 offset:%d" % XN)
    a.i("v_lshrrev_b32 v6, 5, v0")
    a.i("s_lshl_b32 s5, s3, 1")
    a.i("s_sub_u32 s5, s5, 8")
    a.i("v_add_u32 v7, s5, v6")
    a.i("v_mul_u32_u24 v7, 2176, v7")
    a.i("v_and_b32 v8, 7, v0")
    a.i("v_mul_u32_u24 v8, 272, v8")
    a.i("v_add_u32 v7, v7, v8")
    a.i("v_bfe_u32 v8, v0, 4, 1")
    a.i("v_lshl_add_u32 v7, v8, 7, v7")
    a.i("v_add_u32 v7, %d, v7" % R1)
    a.i("v_cmp_eq_u32 vcc, v4, v6")
    a.i("v_mov_b32 v8, %d" % DUMP)
    a.i("v_cndmask_b32 v7, v8, v7, vcc")
    a.i("s_waitcnt vmcnt(0) lgkmcnt(0)")
    stamp(2)
    for q in range(4):
        A0 = KV + q * 16
        for p in range(4):
            a.i("v_perm_b32 v%d, v%d, v%d, s%d" % (A0 + p, 12 + (2 * p + 1) * 4 + q, 12 + (2 * p) * 4 + q, sSELLO))
        for p in range(4):
            a.i("v_perm_b32 v%d, v%d, v%d, s%d" % (A0 + 4 + p, 12 + (2 * p + 1) * 4 + q, 12 + (2 * p) * 4 + q, sSELHI))
        a.i("v_mfma_f32_16x16x32_bf16 %s, %s, v[44:47], 0" % (v(A0 + 8, 4), v(A0, 4)))
        a.i("v_mfma_f32_16x16x32_bf16 %s, %s, v[44:47], 0" % (v(A0 + 12, 4), v(A0 + 4, 4)))
    for q in range(4):
        A0 = KV + q * 16
        for r in range(4):
            a.i("ds_write2_b32 v7, v%d, v%d offset0:%d offset1:%d" % (A0 + 8 + r, A0 + 12 + r, 8 * r + 2 * q, 8 * r + 2 * q + 1))
    a.i("s_waitcnt lgkmcnt(0)")
    a.i("s_sub_u32 s8, s3, 4")
    a.i("s_lshr_b32 s9, s8, 2")
    a.i("s_lshl_b32 s8, s9, 2")
    a.i("s_add_u32 s8, s8, %d" % (CNT + C_P1))
    a.i("v_mov_b32 v3, s8")
    a.i("v_mov_b32 v4, 1")
    a.i("s_mov_b64 exec, 1")
    a.i("ds_add_rtn_u32 v5, v3, v4")
    a.i("s_mov_b64 exec, -1")
    a.i("s_waitcnt lgkmcnt(0)")
    a.i("v_readfirstlane_b32 s8, v5")
    a.i("s_cmp_lg_u32 s8, 3")
    a.br("s_cbranch_scc1 L_waitpub")
    prio(3)
    a.i("v_lshrrev_b32 v3, 4, v0")
    a.i("v_mul_u32_u24 v3, 272, v3")
    a.i("v_and_b32 v4, 15, v0")
    a.i("v_lshl_add_u32 v3, v4, 4, v3")
    a.i("s_mul_i32 s8, s9, %d" % (8 * 2176))
    a.i("s_add_u32 s8, s8, %d" % R1)
    a.i("v_add_u32 v3, s8, v3")
    for u in range(2):
        base = KV + u * 32
        for c in range(8):
            a.i("ds_read_b128 %s, v3 offset:%d" % (v(base + 4 * c, 4), c * 2176 + u * 4 * 272))
    pub_addr(6, 7, 4, 5)
    a.i("s_cmp_eq_u32 s9, 1")
    a.i("s_cselect_b32 s5, s5, s6")
    a.i("s_movk_i32 s10, %d" % (14336 * 2))
    a.i("s_cmp_eq_u32 s9, 0")
    a.i("s_cselect_b32 s4, s4, s5")
    a.i("s_cselect_b32 s10, 0x8000, s10")
    a.i("s_cselect_b64 vcc, -1, 0")
    a.i("s_lshl_b32 s10, s10, 1")
    a.i("v_cndmask_b32 v6, v7, v6, vcc")
    for u in range(2):
        base = KV + u * 32
        sb = 12 + u * 4
        a.i("s_waitcnt lgkmcnt(%d)" % (8 if u == 0 else 0))
        for c in (0, 2, 4, 6):
            for e in range(4):
                a.i("v_add_f32 v%d, v%d, v%d" % (base + 4 * c + e, base + 4 * c + e, base + 4 * c + 4 + e))
        for c in (0, 4):
            for e in range(4):
                a.i("v_add_f32 v%d, v%d, v%d" % (base + 4 * c + e, base + 4 * c + e, base + 4 * c + 8 + e))
        for e in range(4):
            a.i("v_add_f32 v%d, v%d, v%d" % (sb + e, base + e, base + 16 + e))
        for e in range(4):
            a.i("v_min_u32 v%d, -2, v%d" % (sb + e, sb + e))
        a.i("buffer_store_dwordx4 %s, v6, %s, s4 offen sc1" % (v(sb, 4), s(sWS, 4)))
        if u == 0:
            a.i("s_add_u32 s4, s4, s10")
    lds_inc(C_PUB, 3, 4)
    stamp(15)
    a.label("L_waitpub")
    if cfg.get("hold", 1):
        lds_spin(C_PUB, 3, 3, 4, sleep=1)
    a.label("L_kload")
    a.i("s_cmp_lg_u32 s2, %d" % ROOT)
    a.br("s_cbranch_scc1 L_kload2")
    lds_spin(C_BC, 1, 3, 4, sleep=1)
    a.label("L_kload2")
    prio(1)
    k_loads()
    prio(0)
    a.i("s_cmp_lg_u32 s%d, 1" % sDMA)
    a.br("s_cbranch_scc1 L_noearly")
    tw_dma()
    a.label("L_noearly")
    stamp(3)
    lds_spin(C_QRDY, 1, 3, 4, sleep=2)
    a.br("s_branch L_kpass")

    def root_bcast(off, val, tag):
        a.i("v_and_b32 v3, %d, v0" % AMASK)
        a.i("v_lshlrev_b32 v3, 2, v3")
        a.i("s_mov_b32 s%d, %d" % (sSPIN, SPIN_G))
        a.label(tag + "_p")
        a.i("buffer_load_dword v4, v3, %s, 0 offen offset:%d sc1" % (s(sDBG, 4), off))
        a.i("s_waitcnt vmcnt(0)")
        a.i("v_cmp_ne_u32 vcc, %d, v4" % (256 // (AMASK + 1)))
        a.br("s_cbranch_vccz %s_d" % tag)
        a.i("s_sleep 2")
        a.i("s_sub_u32 s%d, s%d, 1" % (sSPIN, sSPIN))
        a.i("s_cmp_lg_u32 s%d, 0" % sSPIN)
        a.br("s_cbranch_scc1 %s_p" % tag)
        a.label(tag + "_d")
        for k in range(4):
            a.i("v_mov_b32 v%d, %d" % (60 + k, val))
        a.i("v_lshlrev_b32 v3, 7, v0")
        a.i("s_mov_b32 s4, 0x%x" % MB)
        a.i("buffer_store_dwordx4 v[60:63], v3, %s, s4 offen sc1" % s(sWS, 4))

    def mbox_wait(minval, tag):
        a.i("v_mov_b32 v3, s%d" % sMBX)
        a.i("s_mov_b32 s%d, %d" % (sSPIN, SPIN_G))
        a.label(tag + "_p")
        a.i("buffer_load_dword v4, v3, %s, 0 offen sc1" % s(sWS, 4))
        a.i("s_waitcnt vmcnt(0)")
        a.i("v_subrev_u32 v4, %d, v4" % minval)
        a.i("v_cmp_lt_u32 vcc, %d, v4" % (2 - minval))
        a.br("s_cbranch_vccz %s_d" % tag)
        a.i("s_sleep 2")
        a.i("s_sub_u32 s%d, s%d, 1" % (sSPIN, sSPIN))
        a.i("s_cmp_lg_u32 s%d, 0" % sSPIN)
        a.br("s_cbranch_scc1 %s_p" % tag)
        a.label(tag + "_d")

    a.label("L_comm")
    a.i("s_cmp_lg_u32 s2, %d" % ROOT)
    a.br("s_cbranch_scc1 L_notroot")
    root_bcast(AOFF, 1, "L_rba")
    lds_inc(C_BC, 3, 4)
    a.br("s_branch L_poll1_done")
    a.label("L_notroot")
    mbox_wait(1, "L_mba")
    a.label("L_poll1_done")
    stamp(16)
    a.i("s_and_b32 s6, s2, %d" % AMASK)
    a.i("s_lshl_b32 s6, s6, 2")
    a.i("v_mov_b32 v3, s6")
    a.i("v_mov_b32 v4, 1")
    a.i("s_waitcnt vmcnt(1)")
    a.i("s_mov_b64 exec, 1")
    a.i("buffer_atomic_add v4, v3, %s, 0 offen offset:128 sc1" % s(sDBG, 4))
    a.i("s_mov_b64 exec, -1")
    stamp(3)
    lds_spin(C_PUB, 3, 3, 4, sleep=1)
    stamp(4)
    a.i("s_lshl_b32 s4, s%d, 14" % sB)
    a.i("s_lshl_b32 s5, s%d, 12" % sKVH)
    a.i("s_add_u32 s4, s4, s5")
    a.i("s_add_u32 s4, s4, 0x%x" % QP)
    for sp in range(1, 4):
        a.i("s_add_u32 s%d, s4, %d" % (4 + sp, sp * 8 * 16384))
    vgather([(KV + (sp * 4 + u) * 4, ["buffer_load_dwordx4 %s, v%d, %s, s%d offen offset:%d sc1" % (
        v(KV + (sp * 4 + u) * 4, 4), vOFFV, s(sWS, 4), 4 + sp, u * 1024)]) for sp in range(4) for u in range(4)], 5, 6)
    a.i("v_lshrrev_b32 v3, 5, v0")
    a.i("v_mul_u32_u24 v3, 272, v3")
    a.i("v_and_b32 v4, 31, v0")
    a.i("v_lshl_add_u32 v3, v4, 3, v3")
    for u in range(4):
        for e in range(4):
            r0 = KV + u * 4 + e
            a.i("v_add_f32 v%d, v%d, v%d" % (r0, r0, r0 + 16))
            a.i("v_add_f32 v%d, v%d, v%d" % (r0 + 32, r0 + 32, r0 + 48))
            a.i("v_add_f32 v%d, v%d, v%d" % (r0, r0, r0 + 32))
        bf16_round_pair(12 + 2 * u, KV + u * 4, KV + u * 4 + 1)
        bf16_round_pair(13 + 2 * u, KV + u * 4 + 2, KV + u * 4 + 3)
        a.i("ds_write_b64 v3, %s offset:%d" % (v(12 + 2 * u, 2), QL + u * 544))
    a.i("v_mov_b32 v8, %d" % CNT)
    a.i("v_mov_b32 v9, 1")
    a.i("s_waitcnt lgkmcnt(0)")
    a.i("ds_write_b32 v8, v9 offset:%d" % C_QRDY)
    stamp(5)
    a.i("v_and_b32 v3, 7, v0")
    a.i("v_mul_u32_u24 v3, 14336, v3")
    a.i("v_bfe_u32 v4, v0, 3, 1")
    a.i("v_lshl_add_u32 v3, v4, 7, v3")
    a.i("v_lshrrev_b32 v5, 4, v0")
    a.i("v_lshl_add_u32 v3, v5, 5, v3")
    a.i("v_cmp_le_u32 vcc, 56, v0")
    a.i("v_mov_b32 v6, 0x7ffffff0")
    a.i("v_cndmask_b32 v3, v3, v6, vcc")
    a.i("s_mul_i32 s4, s%d, 224" % sKS)
    a.i("s_add_u32 s8, s4, 0x%x" % UP)
    a.i("s_add_u32 s4, s4, 0x%x" % GP)
    for sp in range(1, 4):
        a.i("s_add_u32 s%d, s4, %d" % (4 + sp, sp * 8 * 14336))
        a.i("s_add_u32 s%d, s8, %d" % (8 + sp, sp * 8 * 14336))
    lds = []
    for sp in range(4):
        for hf in range(2):
            for m in range(2):
                d = KV + m * 32 + (sp * 2 + hf) * 4
                lds.append((d, ["buffer_load_dwordx4 %s, v3, %s, s%d offen offset:%d sc1" % (v(d, 4), s(sWS, 4), 4 + 4 * m + sp, hf * 16)]))
    vgather(lds, 6, 7)
    a.i("s_cmp_lg_u32 s2, %d" % ROOT)
    a.br("s_cbranch_scc1 L_notroot2")
    a.i("v_mov_b32 v8, v4")
    root_bcast(128, 2, "L_rbb")
    a.i("v_mov_b32 v4, v8")
    a.label("L_notroot2")
    G0, U0 = 28, 36
    for m, dst in ((0, G0), (1, U0)):
        for e in range(8):
            r0 = KV + m * 32 + e
            a.i("v_add_f32 v%d, v%d, v%d" % (r0, r0, r0 + 8))
            a.i("v_add_f32 v%d, v%d, v%d" % (r0 + 16, r0 + 16, r0 + 24))
            a.i("v_add_f32 v%d, v%d, v%d" % (dst + e, r0, r0 + 16))
    k_loads()
    a.i("s_mov_b32 s4, 0x3d372713")
    a.i("s_mov_b32 s5, 0xc0135761")
    for e in range(0, 8, 2):
        g0, g1, u0, u1 = G0 + e, G0 + e + 1, U0 + e, U0 + 1 + e
        bf16_round_pair(12, g0, g1)
        bf16_round_pair(13, u0, u1)
        unpack_lo(g0, 12)
        unpack_hi(g1, 12)
        unpack_lo(u0, 13)
        unpack_hi(u1, 13)
        for gg, tt in ((g0, 14), (g1, 15)):
            a.i("v_mul_f32 v%d, v%d, v%d" % (tt, gg, gg))
            a.i("v_mul_f32 v%d, s4, v%d" % (tt, tt))
            a.i("v_fma_f32 v%d, v%d, v%d, v%d" % (tt, tt, gg, gg))
            a.i("v_mul_f32 v%d, s5, v%d" % (tt, tt))
            a.i("v_exp_f32 v%d, v%d" % (tt, tt))
            a.i("v_add_f32 v%d, 1.0, v%d" % (tt, tt))
            a.i("v_rcp_f32 v%d, v%d" % (tt, tt))
            a.i("v_mul_f32 v%d, v%d, v%d" % (tt, tt, gg))
        bf16_round_pair(14, 14, 15)
        unpack_hi(15, 14)
        unpack_lo(14, 14)
        a.i("v_mul_f32 v14, v14, v%d" % u0)
        a.i("v_mul_f32 v15, v15, v%d" % u1)
        bf16_round_pair(16 + e // 2, 14, 15)
    a.i("v_and_b32 v3, 7, v0")
    a.i("v_lshlrev_b32 v3, 6, v3")
    a.i("v_lshl_add_u32 v3, v4, 9, v3")
    a.i("v_lshl_add_u32 v3, v5, 4, v3")
    a.i("ds_write_b128 v3, v[16:19] offset:%d" % HL)
    prio(0)

    a.label("L_kpass")
    stamp(6)
    Q, S, T, Y0 = 12, 28, 44, 60
    a.i("v_and_b32 v3, 7, v0")
    a.i("v_mul_u32_u24 v3, 272, v3")
    a.i("v_lshrrev_b32 v4, 4, v0")
    a.i("v_lshl_add_u32 v3, v4, 6, v3")
    for j in range(4):
        a.i("ds_read_b128 %s, v3 offset:%d" % (v(Q + 4 * j, 4), QL + j * 16))
    DPPA = "quad_perm:[1,0,3,2] row_mask:0xf bank_mask:0xf"
    DPPB = "quad_perm:[2,3,0,1] row_mask:0xf bank_mask:0xf"

    def dma_wait(n, mode):
        if WD_MODE != mode and WO_MODE != mode:
            a.i("s_waitcnt vmcnt(%d)" % n)
            return
        l1, l2 = a.newlabel("L_w"), a.newlabel("L_w")
        a.i("s_cmp_eq_u32 s%d, %d" % (sDMA, mode))
        a.br("s_cbranch_scc1 %s" % l1)
        a.i("s_waitcnt vmcnt(%d)" % n)
        a.label(l1)
        a.i("s_waitcnt vmcnt(%d)" % (n + 8))

    for t in range(4):
        X = KV + t * 16
        dma_wait(12 - 4 * t, 1)
        a.i("s_mov_b64 vcc, s[%d:%d]" % (sMEV, sMEV + 1))
        for pr in (0, 2):
            for e in range(4):
                a.i("v_cndmask_b32_dpp v%d, v%d, v%d, vcc %s" % (T + pr * 4 + e, X + (pr + 1) * 4 + e, X + pr * 4 + e, DPPA))
        a.i("s_mov_b64 vcc, s[%d:%d]" % (sMOD, sMOD + 1))
        for pr in (0, 2):
            for e in range(4):
                a.i("v_cndmask_b32_dpp v%d, v%d, v%d, vcc %s" % (T + (pr + 1) * 4 + e, X + pr * 4 + e, X + (pr + 1) * 4 + e, DPPA))
        a.i("s_mov_b64 vcc, s[%d:%d]" % (sMLO, sMLO + 1))
        for e in range(4):
            a.i("v_cndmask_b32_dpp v%d, v%d, v%d, vcc %s" % (X + e, T + 8 + e, T + e, DPPB))
        for e in range(4):
            a.i("v_cndmask_b32_dpp v%d, v%d, v%d, vcc %s" % (X + 4 + e, T + 12 + e, T + 4 + e, DPPB))
        a.i("s_mov_b64 vcc, s[%d:%d]" % (sMHI, sMHI + 1))
        for e in range(4):
            a.i("v_cndmask_b32_dpp v%d, v%d, v%d, vcc %s" % (X + 8 + e, T + e, T + 8 + e, DPPB))
        for e in range(4):
            a.i("v_cndmask_b32_dpp v%d, v%d, v%d, vcc %s" % (X + 12 + e, T + 4 + e, T + 12 + e, DPPB))
        if t == 0:
            a.i("s_waitcnt lgkmcnt(0)")
        for j in range(4):
            a.i("v_mfma_f32_16x16x32_bf16 %s, %s, %s, %s" % (
                v(S + 4 * t, 4), v(X + 4 * j, 4), v(Q + 4 * j, 4), "0" if j == 0 else v(S + 4 * t, 4)))

    for k in range(0, 16, 2):
        bf16_round_pair(44, S + k, S + k + 1)
        unpack_lo(S + k, 44)
        unpack_hi(S + k + 1, 44)
        a.i("v_mul_f32 v%d, s%d, v%d" % (S + k, sSCALE, S + k))
        a.i("v_mul_f32 v%d, s%d, v%d" % (S + k + 1, sSCALE, S + k + 1))
        bf16_round_pair(44, S + k, S + k + 1)
        unpack_lo(S + k, 44)
        unpack_hi(S + k + 1, 44)
    a.i("v_max3_f32 v4, v%d, v%d, v%d" % (S, S + 1, S + 2))
    for k in range(3, 15, 2):
        a.i("v_max3_f32 v4, v4, v%d, v%d" % (S + k, S + k + 1))
    a.i("v_max_f32 v4, v4, v%d" % (S + 15))
    allreduce_rows("v_max_f32", 4, 5)
    a.i("v_mul_f32 v6, s%d, v4" % sLOG2E)
    for k in range(16):
        a.i("v_fma_f32 v%d, v%d, s%d, -v6" % (S + k, S + k, sLOG2E))
    for k in range(16):
        a.i("v_exp_f32 v%d, v%d" % (S + k, S + k))
    a.i("v_add_f32 v5, v%d, v%d" % (S, S + 1))
    a.i("v_add_f32 v7, v%d, v%d" % (S + 2, S + 3))
    for k in range(4, 16, 2):
        a.i("v_add_f32 v5, v5, v%d" % (S + k))
        a.i("v_add_f32 v7, v7, v%d" % (S + k + 1))
    a.i("v_add_f32 v5, v5, v7")
    allreduce_rows("v_add_f32", 5, 7)
    a.i("v_and_b32 v3, 7, v0")
    a.i("v_lshlrev_b32 v3, 6, v3")
    a.i("s_lshl_b32 s4, s3, 2")
    a.i("v_add_u32 v7, s4, v3")
    a.i("ds_write_b32 v7, v4 offset:%d" % SM)
    a.i("ds_write_b32 v7, v5 offset:%d" % SL)
    a.i("v_lshrrev_b32 v8, 4, v0")
    a.i("v_lshl_add_u32 v9, v8, 4, v3")
    lds_inc(C_M, 4, 5)
    stamp(7)
    v_loads()
    a.i("s_cmp_lg_u32 s%d, 2" % sDMA)
    a.br("s_cbranch_scc1 L_nolate")
    tw_dma()
    a.label("L_nolate")
    stamp(8)
    lds_spin(C_M, 16, 4, 5, sleep=1)
    a.i("ds_read_b128 v[44:47], v9 offset:%d" % SM)
    a.i("ds_read_b128 v[48:51], v9 offset:%d" % SL)
    a.i("s_waitcnt lgkmcnt(0)")
    a.i("v_max3_f32 v7, v44, v45, v46")
    a.i("v_max_f32 v7, v7, v47")
    allreduce_rows("v_max_f32", 7, 8)
    a.i("v_mul_f32 v8, s%d, v7" % sLOG2E)
    a.i("v_sub_f32 v9, v6, v8")
    a.i("v_exp_f32 v9, v9")
    for k in range(16):
        a.i("v_mul_f32 v%d, v9, v%d" % (S + k, S + k))
    for p in range(8):
        bf16_round_pair(S + p, S + 2 * p, S + 2 * p + 1)
    P = S
    for k in range(4):
        a.i("v_fma_f32 v%d, v%d, s%d, -v8" % (44 + k, 44 + k, sLOG2E))
    for k in range(4):
        a.i("v_exp_f32 v%d, v%d" % (44 + k, 44 + k))
    a.i("v_mul_f32 v52, v44, v48")
    for k in range(1, 4):
        a.i("v_fmac_f32 v52, v%d, v%d" % (44 + k, 48 + k))
    allreduce_rows("v_add_f32", 52, 53)
    a.i("v_min_u32 v60, -2, v7")
    a.i("v_min_u32 v61, -2, v52")

    D = [12, 16, 20, 24, 44, 48, 52, 56]
    PT = 36

    def pv_step(u):
        for q in range(4):
            for p in range(4):
                a.i("v_perm_b32 v%d, v%d, v%d, s%d" % (PT + p, KV + (8 * u + 2 * p + 1) * 4 + q, KV + (8 * u + 2 * p) * 4 + q, sSELLO))
            for p in range(4):
                a.i("v_perm_b32 v%d, v%d, v%d, s%d" % (PT + 4 + p, KV + (8 * u + 2 * p + 1) * 4 + q, KV + (8 * u + 2 * p) * 4 + q, sSELHI))
            for h in range(2):
                i = 2 * q + h
                a.i("v_mfma_f32_16x16x32_bf16 %s, %s, %s, %s" % (
                    v(D[i], 4), v(PT + 4 * h, 4), v(P + 4 * u, 4), "0" if u == 0 else v(D[i], 4)))

    a.i("v_and_b32 v3, 15, v0")
    a.i("v_mul_u32_u24 v4, 528, v3")
    a.i("v_lshrrev_b32 v5, 4, v0")
    a.i("v_lshl_add_u32 v4, v5, 7, v4")
    a.i("s_mul_i32 s4, s3, 4224")
    a.i("s_add_u32 s4, s4, %d" % ORED)
    a.i("v_add_u32 v4, s4, v4")
    a.i("v_cmp_gt_u32 vcc, 8, v3")
    a.i("v_mov_b32 v5, %d" % DUMP)
    a.i("v_cndmask_b32 v4, v5, v4, vcc")
    dma_wait(8, 2)
    pv_step(0)
    dma_wait(0, 2)
    stamp(9)
    pv_step(1)
    for i in range(8):
        a.i("ds_write_b128 v4, %s offset:%d" % (v(D[i], 4), i * 16))
    a.i("s_cmp_lg_u32 s3, 0")
    a.br("s_cbranch_scc1 L_nombb")
    mbox_wait(2, "L_mbb")
    a.label("L_nombb")
    a.i("s_waitcnt lgkmcnt(0)")
    a.i("s_barrier")
    stamp(10)
    a.i("s_cmp_ge_u32 s3, 8")
    a.br("s_cbranch_scc1 L_dmawave")
    prio(3)
    a.i("s_cmp_ge_u32 s3, 4")
    a.br("s_cbranch_scc1 L_reducer")
    a.i("s_cmp_eq_u32 s3, 3")
    a.br("s_cbranch_scc1 L_final")
    a.i("s_cmp_eq_u32 s3, 0")
    a.br("s_cbranch_scc1 L_gather")
    a.br("s_branch L_tail")

    a.label("L_reducer")
    a.i("v_lshrrev_b32 v3, 5, v0")
    a.i("s_sub_u32 s6, s3, 4")
    a.i("s_lshl_b32 s4, s6, 1")
    a.i("v_add_u32 v3, s4, v3")
    a.i("v_mul_u32_u24 v3, 528, v3")
    a.i("v_and_b32 v4, 31, v0")
    a.i("v_lshl_add_u32 v3, v4, 4, v3")
    a.i("v_add_u32 v3, %d, v3" % ORED)
    for w2 in range(16):
        a.i("ds_read_b128 %s, v3 offset:%d" % (v(KV + 4 * w2, 4), w2 * 4224))
    a.i("s_lshl_b32 s4, s%d, 12" % sCH)
    a.i("s_lshl_b32 s5, s6, 10")
    a.i("s_add_u32 s4, s4, s5")
    a.i("s_add_u32 s4, s4, 0x%x" % OB1)
    a.i("s_waitcnt lgkmcnt(8)")
    for w2 in range(0, 8, 2):
        for e in range(4):
            a.i("v_add_f32 v%d, v%d, v%d" % (KV + 4 * w2 + e, KV + 4 * w2 + e, KV + 4 * w2 + 4 + e))
    for w2 in (0, 4):
        for e in range(4):
            a.i("v_add_f32 v%d, v%d, v%d" % (KV + 4 * w2 + e, KV + 4 * w2 + e, KV + 4 * w2 + 8 + e))
    for e in range(4):
        a.i("v_add_f32 v%d, v%d, v%d" % (KV + e, KV + e, KV + 16 + e))
    a.i("s_waitcnt lgkmcnt(0)")
    for w2 in range(8, 16, 2):
        for e in range(4):
            a.i("v_add_f32 v%d, v%d, v%d" % (KV + 4 * w2 + e, KV + 4 * w2 + e, KV + 4 * w2 + 4 + e))
    for w2 in (8, 12):
        for e in range(4):
            a.i("v_add_f32 v%d, v%d, v%d" % (KV + 4 * w2 + e, KV + 4 * w2 + e, KV + 4 * w2 + 8 + e))
    for e in range(4):
        a.i("v_add_f32 v%d, v%d, v%d" % (KV + 32 + e, KV + 32 + e, KV + 48 + e))
    for e in range(4):
        a.i("v_add_f32 v%d, v%d, v%d" % (KV + e, KV + e, KV + 32 + e))
    for e in range(4):
        a.i("v_min_u32 v%d, -2, v%d" % (KV + e, KV + e))
    a.i("buffer_store_dwordx4 %s, v%d, %s, s4 offen sc1" % (v(KV, 4), vOFFV, s(sWS, 4)))
    stamp(11)
    a.br("s_branch L_exit")

    a.label("L_dmawave")
    a.i("s_waitcnt vmcnt(0)")
    lds_inc(C_DMA, 3, 4)
    stamp(11)
    a.br("s_branch L_exit")

    a.label("L_gather")
    a.i("s_lshr_b32 s4, s%d, 1" % sKS)
    a.i("s_lshr_b32 s6, s4, 3")
    a.i("s_lshl_b32 s5, s6, 10")
    a.i("s_and_b32 s7, s4, 7")
    a.i("s_lshl_b32 s7, s7, 3")
    a.i("s_add_u32 s5, s5, s7")
    a.i("s_add_u32 s5, s5, 0x%x" % ST)
    a.i("v_lshrrev_b32 v3, 3, v0")
    a.i("v_lshlrev_b32 v3, 12, v3")
    a.i("v_and_b32 v4, 7, v0")
    a.i("v_lshl_add_u32 v3, v4, 7, v3")
    a.i("v_lshrrev_b32 v7, 4, v0")
    a.i("v_lshlrev_b32 v7, 17, v7")
    a.i("v_and_b32 v8, 15, v0")
    a.i("v_lshl_add_u32 v7, v8, 4, v7")
    a.i("s_lshl_b32 s6, s6, 15")
    a.i("s_and_b32 s7, s%d, 15" % sKS)
    a.i("s_lshl_b32 s7, s7, 8")
    a.i("s_add_u32 s6, s6, s7")
    a.i("s_add_u32 s6, s6, 0x%x" % OB1)
    a.i("s_mov_b32 s%d, %d" % (sSPIN, SPIN_G))
    a.label("L_poll_st")
    a.i("buffer_load_dwordx2 v[4:5], v3, %s, s5 offen sc1" % s(sWS, 4))
    a.i("s_waitcnt vmcnt(0)")
    a.i("v_max_u32 v6, v4, v5")
    a.i("v_cmp_eq_u32 vcc, -1, v6")
    a.br("s_cbranch_vccz L_poll_st_done")
    a.i("s_sleep 1")
    a.i("s_sub_u32 s%d, s%d, 1" % (sSPIN, sSPIN))
    a.i("s_cmp_lg_u32 s%d, 0" % sSPIN)
    a.br("s_cbranch_scc1 L_poll_st")
    a.label("L_poll_st_done")
    stamp(11)

    def gather_loads():
        for bh in range(2):
            for sp in range(8):
                a.i("s_add_u32 s7, s6, %d" % (bh * 4 * 32 * 4096 + sp * 4096))
                a.i("buffer_load_dwordx4 %s, v7, %s, s7 offen sc1" % (v(KV + (bh * 8 + sp) * 4, 4), s(sWS, 4)))

    gather_loads()
    a.i("v_mov_b32 v6, v4")
    dpp_reduce16("v_max_f32", 6, n=3)
    a.i("v_sub_f32 v6, v4, v6")
    a.i("v_mul_f32 v6, s%d, v6" % sLOG2E)
    a.i("v_exp_f32 v6, v6")
    a.i("v_mul_f32 v9, v6, v5")
    dpp_reduce16("v_add_f32", 9, n=3)
    a.i("v_rcp_f32 v9, v9")
    a.i("v_mul_f32 v6, v6, v9")
    a.i("v_lshlrev_b32 v3, 2, v0")
    a.i("ds_write_b32 v3, v6 offset:%d" % FL)
    a.i("v_lshrrev_b32 v3, 4, v0")
    a.i("v_lshlrev_b32 v3, 5, v3")
    a.i("s_waitcnt lgkmcnt(0)")
    for bh in range(2):
        for hf in range(2):
            a.i("ds_read_b128 %s, v3 offset:%d" % (v(12 + bh * 8 + hf * 4, 4), FL + bh * 128 + hf * 16))
    a.i("s_mov_b32 s%d, %d" % (sSPIN, SPIN_G))
    a.label("L_poll_o")
    a.i("s_waitcnt vmcnt(0)")
    a.i("v_max3_u32 v4, v%d, v%d, v%d" % (KV, KV + 1, KV + 2))
    a.i("v_max3_u32 v5, v%d, v%d, v%d" % (KV + 3, KV + 4, KV + 5))
    for k in range(6, 62, 4):
        a.i("v_max3_u32 v4, v4, v%d, v%d" % (KV + k, KV + k + 1))
        a.i("v_max3_u32 v5, v5, v%d, v%d" % (KV + k + 2, KV + k + 3))
    a.i("v_max3_u32 v4, v4, v%d, v%d" % (KV + 62, KV + 63))
    a.i("v_max_u32 v4, v4, v5")
    a.i("v_cmp_eq_u32 vcc, -1, v4")
    a.br("s_cbranch_vccz L_poll_o_done")
    a.i("s_sub_u32 s%d, s%d, 1" % (sSPIN, sSPIN))
    a.i("s_cmp_eq_u32 s%d, 0" % sSPIN)
    a.br("s_cbranch_scc1 L_poll_o_done")
    gather_loads()
    a.br("s_branch L_poll_o")
    a.label("L_poll_o_done")
    stamp(12)
    a.i("s_waitcnt lgkmcnt(0)")
    for bh in range(2):
        for e in range(4):
            a.i("v_mul_f32 v%d, v%d, v%d" % (28 + bh * 4 + e, 12 + bh * 8, KV + bh * 32 + e))
        for sp in range(1, 8):
            for e in range(4):
                a.i("v_fmac_f32 v%d, v%d, v%d" % (28 + bh * 4 + e, 12 + bh * 8 + sp, KV + (bh * 8 + sp) * 4 + e))
    a.i("v_bfe_u32 v3, v0, 3, 1")
    a.i("v_lshlrev_b32 v3, 9, v3")
    a.i("v_lshrrev_b32 v4, 4, v0")
    a.i("v_lshl_add_u32 v3, v4, 6, v3")
    a.i("v_and_b32 v4, 7, v0")
    a.i("v_lshl_add_u32 v3, v4, 3, v3")
    for bh in range(2):
        bf16_round_pair(36 + 2 * bh, 28 + bh * 4, 29 + bh * 4)
        bf16_round_pair(37 + 2 * bh, 30 + bh * 4, 31 + bh * 4)
        a.i("ds_write_b64 v3, %s offset:%d" % (v(36 + 2 * bh, 2), OL + bh * 256))
    a.i("v_mov_b32 v3, %d" % CNT)
    a.i("v_mov_b32 v4, 1")
    a.i("ds_write_b32 v3, v4 offset:%d" % C_ORDY)
    stamp(13)
    a.br("s_branch L_exit")

    a.label("L_tail")
    lds_spin(C_DMA, 8, 3, 4, sleep=1)
    stamp(11)
    a.i("s_sub_u32 s4, s3, 1")
    a.i("s_lshl_b32 s5, s4, 15")
    a.i("s_add_u32 s5, s5, %d" % TW)
    a.i("v_add_u32 v5, s5, v%d" % vOFFV)
    a.i("v_and_b32 v6, 7, v0")
    a.i("v_lshlrev_b32 v6, 6, v6")
    a.i("v_lshrrev_b32 v7, 4, v0")
    a.i("v_lshl_add_u32 v6, v7, 4, v6")
    a.i("ds_read_b128 v[28:31], v6 offset:%d" % HL)
    a.i("ds_read_b128 v[32:35], v6 offset:%d" % (HL + 512))
    for st in range(2):
        for j in range(8):
            a.i("ds_read_b128 %s, v5 offset:%d" % (v(KV + (st * 8 + j) * 4, 4), st * 8192 + j * 1024))
    for st in range(2):
        a.i("s_waitcnt lgkmcnt(%d)" % (8 if st == 0 else 0))
        for q in range(4):
            for p in range(4):
                a.i("v_perm_b32 v%d, v%d, v%d, s%d" % (PT + p, KV + (8 * st + 2 * p + 1) * 4 + q, KV + (8 * st + 2 * p) * 4 + q, sSELLO))
            for p in range(4):
                a.i("v_perm_b32 v%d, v%d, v%d, s%d" % (PT + 4 + p, KV + (8 * st + 2 * p + 1) * 4 + q, KV + (8 * st + 2 * p) * 4 + q, sSELHI))
            for h in range(2):
                i = 2 * q + h
                a.i("v_mfma_f32_16x16x32_bf16 %s, %s, %s, %s" % (
                    v(D[i], 4), v(28 + 4 * st, 4), v(PT + 4 * h, 4), "0" if st == 0 else v(D[i], 4)))
    for st in range(2):
        for j in range(8):
            a.i("ds_read_b128 %s, v5 offset:%d" % (v(KV + (st * 8 + j) * 4, 4), (2 + st) * 8192 + j * 1024))
    lds_spin(C_ORDY, 1, 3, 4, sleep=0)
    a.i("ds_read_b128 v[28:31], v6 offset:%d" % OL)
    a.i("ds_read_b128 v[32:35], v6 offset:%d" % (OL + 512))
    for st in range(2):
        for q in range(4):
            for p in range(4):
                a.i("v_perm_b32 v%d, v%d, v%d, s%d" % (PT + p, KV + (8 * st + 2 * p + 1) * 4 + q, KV + (8 * st + 2 * p) * 4 + q, sSELLO))
            for p in range(4):
                a.i("v_perm_b32 v%d, v%d, v%d, s%d" % (PT + 4 + p, KV + (8 * st + 2 * p + 1) * 4 + q, KV + (8 * st + 2 * p) * 4 + q, sSELHI))
            if st == 0 and q == 0:
                a.i("s_waitcnt lgkmcnt(0)")
            for h in range(2):
                i = 2 * q + h
                a.i("v_mfma_f32_16x16x32_bf16 %s, %s, %s, %s" % (
                    v(D[i], 4), v(28 + 4 * st, 4), v(PT + 4 * h, 4), v(D[i], 4)))
    a.i("s_lshl_b32 s5, s2, 13")
    a.i("s_lshl_b32 s6, s4, 12")
    a.i("s_add_u32 s5, s5, s6")
    a.i("s_add_u32 s5, s5, 0x%x" % OB2)
    a.i("s_mov_b32 exec_hi, 0")
    for i in range(8):
        for e in range(4):
            a.i("v_min_u32 v%d, -2, v%d" % (D[i] + e, D[i] + e))
        a.i("buffer_store_dwordx4 %s, v%d, %s, s5 offen offset:%d sc1" % (v(D[i], 4), vOFFV, s(sWS, 4), i * 512))
    a.i("s_mov_b64 exec, -1")
    stamp(13)
    a.br("s_branch L_exit")

    a.label("L_final")
    a.i("buffer_store_dwordx2 v[60:61], v%d, %s, 0 offen sc1" % (vST, s(sWS, 4)))
    a.i("s_lshr_b32 s4, s%d, 5" % sKS)
    a.i("s_lshl_b32 s4, s4, 7")
    a.i("s_lshl_b32 s5, s%d, 8" % sCB)
    a.i("s_add_u32 s4, s4, s5")
    a.i("s_lshr_b32 s5, s%d, 2" % sKS)
    a.i("s_and_b32 s5, s5, 7")
    a.i("s_add_u32 s4, s4, s5")
    a.i("s_and_b32 s5, s%d, 1" % sKS)
    a.i("s_lshl_b32 s5, s5, 6")
    a.i("s_add_u32 s4, s4, s5")
    a.i("s_lshr_b32 s5, s%d, 1" % sKS)
    a.i("s_and_b32 s5, s5, 1")
    a.i("s_lshl_b32 s5, s5, 12")
    a.i("s_add_u32 s4, s4, s5")
    a.i("s_lshl_b32 s4, s4, 1")
    a.i("v_lshrrev_b32 v3, 3, v0")
    a.i("v_and_b32 v4, 7, v0")
    a.i("v_lshlrev_b32 v5, 11, v3")
    a.i("v_lshl_add_u32 v5, v4, 4, v5")
    a.i("v_add_u32 v5, s4, v5")
    a.i("v_cmp_gt_u32 vcc, 32, v0")
    a.i("v_mov_b32 v6, 0x7ffffff0")
    a.i("v_cndmask_b32 v5, v6, v5, vcc")
    a.i("buffer_load_ushort v9, v5, %s, 0 offen" % s(sX, 4))
    a.i("v_lshlrev_b32 v6, 13, v3")
    a.i("v_lshl_add_u32 v6, v4, 4, v6")
    a.i("s_lshl_b32 s5, s%d, 19" % sCB)
    a.i("s_lshl_b32 s6, s%d, 7" % sKS)
    a.i("s_add_u32 s5, s5, s6")
    a.i("s_add_u32 s5, s5, 0x%x" % OB2)
    lds_spin(C_ORDY, 1, 7, 8, sleep=1)
    a.i("s_mov_b32 s%d, %d" % (sSPIN, SPIN_G))
    a.label("L_poll_f")
    for t in range(8):
        a.i("s_add_u32 s6, s5, %d" % (t * 65536))
        a.i("buffer_load_dwordx4 %s, v6, %s, s6 offen sc1" % (v(KV + 4 * t, 4), s(sWS, 4)))
    a.i("s_waitcnt vmcnt(0)")
    a.i("v_max3_u32 v7, v%d, v%d, v%d" % (KV, KV + 1, KV + 2))
    a.i("v_max3_u32 v8, v%d, v%d, v%d" % (KV + 3, KV + 4, KV + 5))
    for k in range(6, 30, 4):
        a.i("v_max3_u32 v7, v7, v%d, v%d" % (KV + k, KV + k + 1))
        a.i("v_max3_u32 v8, v8, v%d, v%d" % (KV + k + 2, KV + k + 3))
    a.i("v_max3_u32 v7, v7, v%d, v%d" % (KV + 30, KV + 31))
    a.i("v_max_u32 v7, v7, v8")
    a.i("v_cmp_eq_u32 vcc, -1, v7")
    a.br("s_cbranch_vccz L_poll_f_done")
    a.i("s_sub_u32 s%d, s%d, 1" % (sSPIN, sSPIN))
    a.i("s_cmp_lg_u32 s%d, 0" % sSPIN)
    a.br("s_cbranch_scc1 L_poll_f")
    a.label("L_poll_f_done")
    stamp(12)
    for t in range(0, 8, 2):
        for e in range(4):
            a.i("v_add_f32 v%d, v%d, v%d" % (KV + 4 * t + e, KV + 4 * t + e, KV + 4 * t + 4 + e))
    for t in (0, 4):
        for e in range(4):
            a.i("v_add_f32 v%d, v%d, v%d" % (KV + 4 * t + e, KV + 4 * t + e, KV + 4 * t + 8 + e))
    for e in range(4):
        a.i("v_add_f32 v%d, v%d, v%d" % (KV + e, KV + e, KV + 16 + e))
    for e in range(4):
        a.i("v_add_f32_dpp v%d, v%d, v%d row_ror:8 row_mask:0xf bank_mask:0xf" % (KV + e, KV + e, KV + e))
    for e in range(4):
        allreduce_rows("v_add_f32", KV + e, KV + 8 + e)
    a.i("v_cmp_eq_u32 vcc, 1, v3")
    a.i("v_cndmask_b32 v7, v%d, v%d, vcc" % (KV, KV + 1))
    a.i("v_cmp_eq_u32 vcc, 2, v3")
    a.i("v_cndmask_b32 v7, v7, v%d, vcc" % (KV + 2))
    a.i("v_cmp_eq_u32 vcc, 3, v3")
    a.i("v_cndmask_b32 v7, v7, v%d, vcc" % (KV + 3))
    a.i("v_lshlrev_b32 v9, 16, v9")
    a.i("v_add_f32 v7, v7, v9")
    bf16_round_pair(7, 7, 7)
    a.i("buffer_store_short v7, v5, %s, 0 offen" % s(sOUT, 4))
    a.i("s_cmp_lg_u32 s2, %d" % ROOT)
    a.br("s_cbranch_scc1 L_noreset")
    a.i("v_mov_b32 v3, 0")
    a.i("v_lshlrev_b32 v4, 2, v0")
    a.i("buffer_store_dword v3, v4, %s, 0 offen offset:%d sc1" % (s(sDBG, 4), AOFF))
    a.label("L_noreset")
    stamp(13)

    a.label("L_exit")
    if diag == 2:
        a.i("v_not_b32 v4, v%d" % vSTAMP)
        a.i("v_cmp_eq_u32 vcc, 0, v0")
        a.i("v_cndmask_b32 v4, v%d, v4, vcc" % vSTAMP)
        a.i("v_lshlrev_b32 v3, 2, v0")
        a.i("s_mov_b64 exec, 0xffff")
        a.i("buffer_atomic_umax v4, v3, %s, 0 offen sc1" % s(sDBG, 4))
    if diag == 1:
        a.i("s_lshl_b32 s4, s2, 4")
        a.i("s_add_u32 s4, s4, s3")
        a.i("s_lshl_b32 s4, s4, 8")
        a.i("s_add_u32 s4, s4, 0x%x" % STAMP)
        a.i("v_lshlrev_b32 v3, 2, v0")
        a.i("buffer_store_dword v%d, v3, %s, s4 offen" % (vSTAMP, s(sWS, 4)))
    a.label("L_end")
    a.i("s_endpgm")

    a.raw('.section .rodata,"a"')
    a.raw(".p2align 6")
    a.raw(".amdhsa_kernel " + NAME)
    a.raw("  .amdhsa_next_free_vgpr 128")
    a.raw("  .amdhsa_next_free_sgpr 102")
    a.raw("  .amdhsa_accum_offset 128")
    a.raw("  .amdhsa_group_segment_fixed_size 0")
    a.raw("  .amdhsa_kernarg_size 96")
    a.raw("  .amdhsa_user_sgpr_count 2")
    a.raw("  .amdhsa_user_sgpr_kernarg_segment_ptr 1")
    a.raw("  .amdhsa_system_sgpr_workgroup_id_x 1")
    a.raw(".end_amdhsa_kernel")
    return a.text()


if __name__ == "__main__":
    cfg = {}
    out = sys.argv[1]
    for kv in sys.argv[2:]:
        k, val = kv.split("=")
        cfg[k] = int(val, 0)
    open(out, "w").write(gen(cfg))
```

```python
import sys
from asmlib import Asm, v, s

NAME = "parallel_sum__gqa_block_cached__glu_gated_geglu__decode_kernel"

QP = 0x000000
GP = 0x080000
UP = 0x100000
OB1 = 0x200000
ST = 0x300000
MB = 0x380000
OB2 = 0x400000
STAMP = 0x800000
WS_SIZE = 0x1000000

DUMP = 0
QL = 512
HL = 2688
OL = 3712
SM = 4736
SL = 5248
FL = 5760
CNT = 6016
C_DMA, C_ORDY, C_PUB, C_QRDY, C_M, C_P1 = 0, 4, 8, 12, 16, 20
C_BC = 32
ROOT = 255
XN = 6144
R1 = 22656
ORED = 6144
TW = 75776
LDS_SIZE = TW + 65536

sX, sK, sV, sW1, sWT, sWS, sOUT, sDBG = 40, 44, 48, 52, 56, 60, 64, 68
sSELLO, sSELHI = 72, 73
sT = 74
sCH, sB, sKVH, sS, sCB, sKS = 78, 79, 80, 81, 82, 83
sW1OFF, sPITCH, sSPIN, sLOG2E = 84, 85, 86, 87
sMEV, sMOD, sMLO, sMHI = 88, 90, 92, 94
sK0, sCG, sSG = 96, 97, 98
sSCALE = 99
sDMA = 100
sMBX = 101

vOFFK, vOFFV = 1, 2
vST = 10
vSTAMP = 11
KV = 64


def gen(cfg):
    a = Asm()
    NT = " nt" if cfg.get("nt", 1) else ""
    NTW = " nt" if cfg.get("ntw", 1) else ""
    NTT = " nt" if cfg.get("ntt", 1) else ""
    diag = cfg.get("diag", 0)
    SPIN_G = cfg.get("spin_g", 1 << 17)
    SPIN_L = cfg.get("spin_l", 1 << 21)
    WD_MODE = cfg.get("wd", 2)
    WO_MODE = cfg.get("wo", 2)
    PF = cfg.get("pf", 1)
    PRIO = cfg.get("prio", 1)
    AMASK = 15 if diag == 2 else 31
    AOFF = 64 if diag == 2 else 0

    def prio(n):
        if PRIO:
            a.i("s_setprio %d" % n)

    def stamp(idx):
        if not diag:
            return
        a.i("s_memrealtime s[14:15]")
        a.i("s_waitcnt lgkmcnt(0)")
        a.i("v_writelane_b32 v%d, s14, %d" % (vSTAMP, idx))

    def srd(d, p, size, off_lo=None):
        if off_lo is None:
            a.i("s_mov_b32 s%d, s%d" % (d, p))
            a.i("s_and_b32 s%d, s%d, 0xffff" % (d + 1, p + 1))
        else:
            a.i("s_add_u32 s%d, s%d, s%d" % (d, p, off_lo))
            a.i("s_addc_u32 s%d, s%d, 0" % (d + 1, p + 1))
            a.i("s_and_b32 s%d, s%d, 0xffff" % (d + 1, d + 1))
        a.i("s_mov_b32 s%d, 0x%x" % (d + 2, size))
        a.i("s_mov_b32 s%d, 0x00020000" % (d + 3))

    def bf16_round_pair(dst, x0, x1):
        a.i("v_cvt_pk_bf16_f32 v%d, v%d, v%d" % (dst, x0, x1))

    def unpack_lo(dst, src):
        a.i("v_lshlrev_b32 v%d, 16, v%d" % (dst, src))

    def unpack_hi(dst, src):
        a.i("v_and_b32 v%d, 0xffff0000, v%d" % (dst, src))

    def allreduce_rows(op, x, tmp, do16=True, do32=True):
        if do16:
            a.i("v_mov_b32 v%d, v%d" % (tmp, x))
            a.i("v_permlane16_swap_b32 v%d, v%d" % (x, tmp))
            a.i("%s v%d, v%d, v%d" % (op, x, x, tmp))
        if do32:
            a.i("v_mov_b32 v%d, v%d" % (tmp, x))
            a.i("v_permlane32_swap_b32 v%d, v%d" % (x, tmp))
            a.i("%s v%d, v%d, v%d" % (op, x, x, tmp))

    def dpp_reduce16(op, x, n=4):
        pats = ["quad_perm:[1,0,3,2]", "quad_perm:[2,3,0,1]", "row_half_mirror", "row_mirror"]
        for p in pats[:n]:
            a.i("%s_dpp v%d, v%d, v%d %s row_mask:0xf bank_mask:0xf" % (op, x, x, x, p))

    def lds_spin(off, val, va, vd, sleep=1):
        l0, l1 = a.newlabel("L_sp"), a.newlabel("L_sp")
        a.i("v_mov_b32 v%d, %d" % (va, CNT))
        a.i("s_mov_b32 s%d, %d" % (sSPIN, SPIN_L))
        a.label(l0)
        a.i("ds_read_b32 v%d, v%d offset:%d" % (vd, va, off))
        a.i("s_waitcnt lgkmcnt(0)")
        a.i("v_cmp_ne_u32 vcc, %d, v%d" % (val, vd))
        a.br("s_cbranch_vccz %s" % l1)
        if sleep:
            a.i("s_sleep %d" % sleep)
        a.i("s_sub_u32 s%d, s%d, 1" % (sSPIN, sSPIN))
        a.i("s_cmp_lg_u32 s%d, 0" % sSPIN)
        a.br("s_cbranch_scc1 %s" % l0)
        a.label(l1)

    def lds_inc(off, va, vd):
        a.i("v_mov_b32 v%d, %d" % (va, CNT))
        a.i("v_mov_b32 v%d, 1" % vd)
        a.i("s_mov_b64 exec, 1")
        a.i("ds_add_u32 v%d, v%d offset:%d" % (va, vd, off))
        a.i("s_mov_b64 exec, -1")

    def vgather(loads, t0, t1, between=None):
        ltop, ldone = a.newlabel("L_vg"), a.newlabel("L_vg")
        for dst, ins in loads:
            for x in ins:
                a.i(x)
        if between:
            between()
        a.i("s_mov_b32 s%d, %d" % (sSPIN, SPIN_G))
        a.label(ltop)
        a.i("s_waitcnt vmcnt(0)")
        regs = [dst + e for dst, _ in loads for e in range(4)]
        a.i("v_max3_u32 v%d, v%d, v%d, v%d" % (t0, regs[0], regs[1], regs[2]))
        a.i("v_max3_u32 v%d, v%d, v%d, v%d" % (t1, regs[3], regs[4], regs[5]))
        k = 6
        while k + 4 <= len(regs):
            a.i("v_max3_u32 v%d, v%d, v%d, v%d" % (t0, t0, regs[k], regs[k + 1]))
            a.i("v_max3_u32 v%d, v%d, v%d, v%d" % (t1, t1, regs[k + 2], regs[k + 3]))
            k += 4
        assert len(regs) - k == 2
        a.i("v_max3_u32 v%d, v%d, v%d, v%d" % (t0, t0, regs[k], regs[k + 1]))
        a.i("v_max_u32 v%d, v%d, v%d" % (t0, t0, t1))
        a.i("v_cmp_eq_u32 vcc, -1, v%d" % t0)
        a.br("s_cbranch_vccz %s" % ldone)
        a.i("s_sub_u32 s%d, s%d, 1" % (sSPIN, sSPIN))
        a.i("s_cmp_eq_u32 s%d, 0" % sSPIN)
        a.br("s_cbranch_scc1 %s" % ldone)
        for dst, ins in loads:
            lsk = a.newlabel("L_vs")
            a.i("v_max3_u32 v%d, v%d, v%d, v%d" % (t0, dst, dst + 1, dst + 2))
            a.i("v_max_u32 v%d, v%d, v%d" % (t0, t0, dst + 3))
            a.i("v_cmp_eq_u32 vcc, -1, v%d" % t0)
            a.br("s_cbranch_vccz %s" % lsk)
            for x in ins:
                a.i(x)
            a.label(lsk)
        a.br("s_branch %s" % ltop)
        a.label(ldone)

    def pub_addr(vq, vg, t0, t1):
        a.i("v_and_b32 v%d, 15, v0" % t0)
        a.i("v_lshrrev_b32 v%d, 4, v0" % t1)
        a.i("v_lshlrev_b32 v%d, 14, v%d" % (vq, t1))
        a.i("v_lshl_add_u32 v%d, v%d, 4, v%d" % (vq, t0, vq))
        a.i("v_mul_u32_u24 v%d, 14336, v%d" % (vg, t1))
        a.i("v_lshl_add_u32 v%d, v%d, 4, v%d" % (vg, t0, vg))
        a.i("s_cmp_lt_u32 s2, 224")
        a.i("s_cselect_b32 s4, 0, 0x7ffffff0")
        a.i("v_or_b32 v%d, s4, v%d" % (vg, vg))
        a.i("s_lshl_b32 s4, s%d, 17" % sCB)
        a.i("s_lshl_b32 s5, s%d, 8" % sKS)
        a.i("s_add_u32 s4, s4, s5")
        a.i("s_add_u32 s4, s4, 0x%x" % QP)
        a.i("s_mul_i32 s5, s%d, %d" % (sSG, 8 * 14336))
        a.i("s_lshl_b32 s6, s%d, 8" % sCG)
        a.i("s_add_u32 s5, s5, s6")
        a.i("s_add_u32 s6, s5, 0x%x" % UP)
        a.i("s_add_u32 s5, s5, 0x%x" % GP)

    hdr = open("parallel_sum__gqa_block_cached__glu_gated_geglu__decode.s.ref").read().split("\n")
    for l in hdr:
        if l.startswith("; @launch"):
            break
        a.raw(l)
    a.raw("; @launch grid=(256,1,1) block=(1024,1,1) lds=%d" % LDS_SIZE)
    a.raw('.amdgcn_target "amdgcn-amd-amdhsa--gfx950"')
    a.raw(".text")
    a.raw(".globl " + NAME)
    a.raw(".p2align 8")
    a.raw(".type %s,@function" % NAME)
    a.raw(NAME + ":")

    a.i("s_cmp_ge_u32 s2, 256")
    a.i("s_cbranch_scc1 L_end")
    a.i("s_load_dwordx16 s[16:31], s[0:1], 0")
    a.i("s_load_dwordx8 s[32:39], s[0:1], 64")
    a.i("v_lshrrev_b32 v1, 6, v0")
    a.i("v_readfirstlane_b32 s3, v1")
    a.i("v_and_b32 v0, 63, v0")
    if cfg.get("pad", 0):
        a.i("s_memrealtime s[14:15]")
        a.i("s_waitcnt lgkmcnt(0)")
        a.i("v_mov_b32 v%d, s14" % vSTAMP)
    if diag:
        a.i("v_mov_b32 v%d, 0" % vSTAMP)
    a.i("s_and_b32 s4, s2, 31")
    a.i("s_lshr_b32 s%d, s2, 5" % sS)
    a.i("s_lshl_b32 s%d, s4, 3" % sCH)
    a.i("s_add_u32 s%d, s%d, s%d" % (sCH, sCH, sS))
    a.i("s_lshr_b32 s%d, s4, 2" % sB)
    a.i("s_and_b32 s%d, s4, 3" % sKVH)
    a.i("s_lshr_b32 s%d, s2, 6" % sCB)
    a.i("s_and_b32 s%d, s2, 63" % sKS)
    a.i("s_mul_i32 s%d, s2, 1171" % sSG)
    a.i("s_lshr_b32 s%d, s%d, 16" % (sSG, sSG))
    a.i("s_mul_i32 s5, s%d, 56" % sSG)
    a.i("s_sub_u32 s%d, s2, s5" % sCG)
    a.i("s_sub_u32 s8, s3, 4")
    a.i("s_lshr_b32 s9, s8, 2")
    a.i("s_and_b32 s10, s8, 3")
    a.i("s_movk_i32 s%d, 7168" % sPITCH)
    a.i("s_cmp_eq_u32 s9, 0")
    a.i("s_cselect_b32 s%d, 8192, s%d" % (sPITCH, sPITCH))
    a.i("s_cselect_b32 s11, s%d, s%d" % (sCB, sSG))
    a.i("s_cselect_b32 s12, s%d, s%d" % (sKS, sCG))
    a.i("s_lshl_b32 s%d, s11, 8" % sK0)
    a.i("s_lshl_b32 s13, s10, 6")
    a.i("s_add_u32 s%d, s%d, s13" % (sK0, sK0))
    a.i("s_mul_i32 s%d, s%d, s%d" % (sW1OFF, sK0, sPITCH))
    a.i("s_lshl_b32 s12, s12, 7")
    a.i("s_add_u32 s%d, s%d, s12" % (sW1OFF, sW1OFF))
    a.i("s_lshl_b32 s14, s%d, 18" % sCH)
    a.i("v_lshrrev_b32 v3, 4, v0")
    a.i("v_lshlrev_b32 v3, 3, v3")
    a.i("v_bfe_u32 v4, v0, 3, 1")
    a.i("v_lshl_add_u32 v3, v4, 5, v3")
    a.i("v_mul_lo_u32 v3, v3, s%d" % sPITCH)
    a.i("v_and_b32 v4, 7, v0")
    a.i("v_lshl_add_u32 v3, v4, 4, v3")
    a.i("v_lshrrev_b32 v5, 5, v0")
    a.i("v_lshlrev_b32 v5, 11, v5")
    a.i("v_and_b32 v4, 31, v0")
    a.i("v_lshl_add_u32 v5, v4, 4, v5")
    a.i("s_lshl_b32 s5, s3, 12")
    a.i("s_lshr_b32 s6, s2, 2")
    a.i("s_lshl_b32 s6, s6, 7")
    a.i("s_and_b32 s7, s2, 3")
    a.i("s_lshl_b32 s7, s7, 2")
    a.i("s_add_u32 s6, s6, s7")
    a.i("s_add_u32 s%d, s6, 0x%x" % (sMBX, MB))
    a.i("s_waitcnt lgkmcnt(0)")
    srd(sX, 16, 16384)
    srd(sWS, 38, WS_SIZE)
    a.i("s_cmp_eq_u32 s9, 1")
    a.i("s_cselect_b32 s%d, s28, s30" % sW1)
    a.i("s_cselect_b32 s%d, s29, s31" % (sW1 + 1))
    a.i("s_cmp_lt_u32 s2, 224")
    a.i("s_cselect_b32 s%d, 0x700000, 0" % (sW1 + 2))
    a.i("s_cmp_eq_u32 s9, 0")
    a.i("s_cselect_b32 s%d, s22, s%d" % (sW1, sW1))
    a.i("s_cselect_b32 s%d, s23, s%d" % (sW1 + 1, sW1 + 1))
    a.i("s_cselect_b32 s%d, 0x800000, s%d" % (sW1 + 2, sW1 + 2))
    a.i("s_and_b32 s%d, s%d, 0xffff" % (sW1 + 1, sW1 + 1))
    a.i("s_mov_b32 s%d, 0x00020000" % (sW1 + 3))
    a.i("s_cmp_lt_u32 s3, 4")
    a.br("s_cbranch_scc1 L_xload")
    a.i("s_mov_b32 s4, s%d" % sW1OFF)
    for j in range(8):
        a.i("buffer_load_dwordx4 %s, v3, %s, s4 offen%s" % (v(12 + 4 * j, 4), s(sW1, 4), NTW))
        if j < 7:
            a.i("s_add_u32 s4, s4, s%d" % sPITCH)
    a.br("s_branch L_pro2")
    a.label("L_xload")
    a.i("s_mov_b32 s13, s5")
    a.i("s_cmp_lg_u32 s3, 0")
    a.br("s_cbranch_scc1 L_xload2")
    prio(3)
    for k in range(4):
        a.i("v_mov_b32 v%d, -1" % (60 + k))
    pub_addr(6, 7, 3, 4)
    for u in range(2):
        a.i("s_add_u32 s7, s4, %d" % (u * 4 * 16384))
        a.i("buffer_store_dwordx4 v[60:63], v6, %s, s7 offen sc1" % s(sWS, 4))
        for sg in (5, 6):
            a.i("s_add_u32 s7, s%d, %d" % (sg, u * 4 * 14336))
            a.i("buffer_store_dwordx4 v[60:63], v7, %s, s7 offen sc1" % s(sWS, 4))
    a.i("v_mov_b32 v3, s%d" % sMBX)
    a.i("s_mov_b64 exec, 1")
    a.i("buffer_store_dword v60, v3, %s, 0 offen sc1" % s(sWS, 4))
    a.i("s_mov_b64 exec, -1")
    a.label("L_xload2")
    for u in range(4):
        a.i("buffer_load_dwordx4 %s, v5, %s, s13 offen offset:%d" % (v(12 + 4 * u, 4), s(sX, 4), u * 512))
    a.label("L_pro2")
    srd(sK, 18, 0x40000, off_lo=14)
    srd(sV, 20, 0x40000, off_lo=14)
    srd(sOUT, 34, 16384)
    srd(sDBG, 36, 256)
    a.i("s_mov_b32 s15, 0x700000")
    a.i("s_cmp_ge_u32 s3, 12")
    a.i("s_cselect_b32 s%d, s24, s32" % sWT)
    a.i("s_cselect_b32 s%d, s25, s33" % (sWT + 1))
    a.i("s_cselect_b32 s%d, 0x800000, s15" % (sWT + 2))
    a.i("s_cselect_b32 s%d, %d, %d" % (sDMA, WO_MODE, WD_MODE))
    a.i("s_and_b32 s%d, s%d, 0xffff" % (sWT + 1, sWT + 1))
    a.i("s_mov_b32 s%d, 0x00020000" % (sWT + 3))
    a.i("s_cmp_lt_u32 s3, 8")
    a.i("s_cselect_b32 s%d, 0, s%d" % (sDMA, sDMA))
    a.i("s_mov_b32 s%d, 0x05040100" % sSELLO)
    a.i("s_mov_b32 s%d, 0x07060302" % sSELHI)
    a.i("s_mov_b32 s%d, 0x3fb8aa3b" % sLOG2E)
    a.i("s_mov_b32 s%d, 0x3db504f3" % sSCALE)
    for r, m in ((sMEV, 0x55555555), (sMOD, 0xaaaaaaaa), (sMLO, 0x33333333), (sMHI, 0xcccccccc)):
        a.i("s_mov_b32 s%d, 0x%x" % (r, m))
        a.i("s_mov_b32 s%d, 0x%x" % (r + 1, m))
    a.i("v_lshlrev_b32 v%d, 4, v0" % vOFFV)
    a.i("v_bfe_u32 v3, v0, 2, 2")
    a.i("v_lshlrev_b32 v3, 8, v3")
    a.i("v_lshrrev_b32 v4, 4, v0")
    a.i("v_lshl_add_u32 v3, v4, 6, v3")
    a.i("v_and_b32 v4, 3, v0")
    a.i("v_lshl_add_u32 v%d, v4, 4, v3" % vOFFK)
    a.i("s_lshl_b32 s6, s%d, 7" % sCH)
    a.i("s_add_u32 s6, s6, 0x%x" % ST)
    a.i("v_lshlrev_b32 v%d, 3, v0" % vST)
    a.i("v_add_u32 v%d, s6, v%d" % (vST, vST))
    a.i("v_cmp_gt_u32 vcc, 8, v0")
    a.i("v_mov_b32 v5, 0x7ffffff0")
    a.i("v_cndmask_b32 v%d, v5, v%d, vcc" % (vST, vST))
    a.i("s_lshl_b32 s6, s3, 14")
    a.i("s_add_u32 s7, s3, s2")
    for t in range(4):
        a.i("s_add_u32 s8, s7, %d" % t)
        a.i("s_and_b32 s8, s8, 3")
        a.i("s_lshl_b32 s8, s8, 12")
        a.i("s_add_u32 s%d, s6, s8" % (sT + t))
    stamp(0)

    def k_loads():
        for t in range(4):
            for r in range(4):
                a.i("buffer_load_dwordx4 %s, v%d, %s, s%d offen offset:%d%s" % (
                    v(KV + (t * 4 + r) * 4, 4), vOFFK, s(sK, 4), sT + t, r * 1024, NT))

    def v_loads():
        for t in range(4):
            for r in range(4):
                a.i("buffer_load_dwordx4 %s, v%d, %s, s%d offen offset:%d%s" % (
                    v(KV + (t * 4 + r) * 4, 4), vOFFV, s(sV, 4), sT + t, r * 1024, NT))

    def tw_dma():
        a.i("s_sub_u32 s4, s3, 8")
        a.i("s_and_b32 s5, s4, 1")
        a.i("s_lshr_b32 s6, s4, 1")
        a.i("s_and_b32 s7, s6, 1")
        a.i("s_movk_i32 s9, 16384")
        a.i("s_cmp_ge_u32 s3, 12")
        a.i("s_cselect_b32 s8, 64, 56")
        a.i("s_cselect_b32 s9, 4096, s9")
        a.i("s_mul_i32 s8, s8, s%d" % sKS)
        a.i("s_lshl_b32 s10, s7, 5")
        a.i("s_add_u32 s8, s8, s10")
        a.i("s_lshl_b32 s8, s8, 11")
        a.i("s_lshl_b32 s10, s%d, 9" % sCB)
        a.i("s_add_u32 s8, s8, s10")
        a.i("s_lshl_b32 s10, s5, 8")
        a.i("s_add_u32 s8, s8, s10")
        a.i("s_cmp_eq_u32 s6, 1")
        a.i("s_cselect_b32 s10, 2, 3")
        a.i("v_lshrrev_b32 v3, 4, v0")
        a.i("v_min_u32 v3, s10, v3")
        a.i("v_mul_lo_u32 v3, v3, s9")
        a.i("v_and_b32 v8, 15, v0")
        a.i("v_lshl_add_u32 v3, v8, 4, v3")
        a.i("s_lshl_b32 s10, s5, 2")
        a.i("s_add_u32 s10, s10, s6")
        a.i("s_lshl_b32 s10, s10, 13")
        a.i("s_add_u32 s10, s10, %d" % TW)
        for j in range(8):
            jr_wd = j * 2048
            jr_wo = (8 * (j & 3) + (j >> 2)) * 2048
            a.i("s_mov_b32 s11, %d" % jr_wd)
            a.i("s_cmp_ge_u32 s3, 12")
            a.i("s_cselect_b32 s11, %d, s11" % jr_wo)
            a.i("s_add_u32 s11, s11, s8")
            a.i("s_add_u32 m0, s10, %d" % (j * 1024))
            a.i("buffer_load_dwordx4 v3, %s, s11 offen%s lds" % (s(sWT, 4), NTT))

    a.i("s_cmp_ge_u32 s3, 4")
    a.br("s_cbranch_scc1 L_bar1")
    a.i("s_cmp_eq_u32 s3, 0")
    a.br("s_cbranch_scc1 L_comm_clear")
    NPF = cfg.get("npf", 6)
    if PF:
        a.i("s_cmp_lg_u32 s3, 1")
        a.br("s_cbranch_scc1 L_nopf")
        a.i("s_getpc_b64 s[6:7]")
        a.label("L_pc")
        a.i("v_lshlrev_b32 v3, 6, v0")
        for k in range(NPF):
            a.i("v_min_u32 v4, L_end-L_pc, v3")
            a.i("global_load_dword v%d, v4, s[6:7]" % (60 + (k & 3)))
            if k < NPF - 1:
                a.i("v_add_u32 v3, 4096, v3")
        a.i("s_waitcnt vmcnt(%d)" % NPF)
        a.br("s_branch L_ln")
        a.label("L_nopf")
    PT = cfg.get("pt", 0)
    if PT:
        a.i("s_cmp_lg_u32 s3, 2")
        a.br("s_cbranch_scc1 L_pt3")
        a.i("v_lshlrev_b32 v3, %d, v0" % (12 if PT == 1 else 16))
        a.i("buffer_load_dword v60, v3, %s, 0 offen" % s(sV, 4))
        a.i("buffer_load_dword v61, v3, %s, 0 offen" % s(sOUT, 4))
        a.i("s_waitcnt vmcnt(2)")
        a.br("s_branch L_ln")
        a.label("L_pt3")
        a.i("s_cmp_lg_u32 s3, 3")
        a.br("s_cbranch_scc1 L_pt4")
        srd(4, 24, 0x800000)
        srd(8, 32, 0x700000)
        if PT == 1:
            a.i("v_lshrrev_b32 v3, 1, v0")
            a.i("v_lshlrev_b32 v3, 12, v3")
        else:
            a.i("v_lshrrev_b32 v3, 5, v0")
            a.i("v_lshlrev_b32 v3, 16, v3")
        a.i("s_lshl_b32 s12, s%d, 17" % sKS)
        a.i("s_lshl_b32 s13, s%d, 9" % sCB)
        a.i("s_add_u32 s12, s12, s13")
        a.i("v_add_u32 v4, s12, v3")
        a.i("buffer_load_dword v60, v4, s[4:7], 0 offen")
        a.i("s_mul_i32 s12, s%d, %d" % (sKS, 56 * 2048))
        a.i("s_add_u32 s12, s12, s13")
        a.i("v_add_u32 v4, s12, v3")
        a.i("buffer_load_dword v61, v4, s[8:11], 0 offen")
        a.i("s_waitcnt vmcnt(2)")
        a.br("s_branch L_ln")
        a.label("L_pt4")
    a.i("s_waitcnt vmcnt(0)")
    a.br("s_branch L_ln")
    a.label("L_comm_clear")
    a.i("s_lshl_b32 s6, s%d, 12" % sCH)
    a.i("s_add_u32 s6, s6, 0x%x" % OB1)
    for k in range(4):
        a.i("buffer_store_dwordx4 v[60:63], v%d, %s, s6 offen offset:%d sc1" % (vOFFV, s(sWS, 4), k * 1024))
    a.i("s_lshl_b32 s6, s2, 13")
    a.i("s_add_u32 s6, s6, 0x%x" % OB2)
    for k in range(4):
        a.i("buffer_store_dwordx4 v[60:63], v%d, %s, s6 offen offset:%d sc1" % (vOFFV, s(sWS, 4), k * 1024))
    a.i("s_add_u32 s6, s6, 4096")
    for k in range(4):
        a.i("buffer_store_dwordx4 v[60:63], v%d, %s, s6 offen offset:%d sc1" % (vOFFV, s(sWS, 4), k * 1024))
    a.i("buffer_store_dwordx2 v[60:61], v%d, %s, 0 offen sc1" % (vST, s(sWS, 4)))
    a.i("v_mov_b32 v5, %d" % CNT)
    for k in range(4):
        a.i("v_mov_b32 v%d, 0" % (6 + k))
    a.i("ds_write_b128 v5, v[6:9]")
    a.i("ds_write_b128 v5, v[6:9] offset:16")
    a.i("ds_write_b128 v5, v[6:9] offset:32")
    a.i("s_and_b32 s6, s2, %d" % AMASK)
    a.i("s_lshl_b32 s6, s6, 2")
    a.i("v_mov_b32 v3, s6")
    a.i("v_mov_b32 v4, 1")
    a.i("s_waitcnt vmcnt(13)")
    a.i("s_mov_b64 exec, 1")
    a.i("buffer_atomic_add v4, v3, %s, 0 offen offset:%d sc1" % (s(sDBG, 4), AOFF))
    a.i("s_mov_b64 exec, -1")
    stamp(14)

    a.label("L_ln")
    for k in range(16):
        unpack_lo(28 + 2 * k, 12 + k)
        unpack_hi(29 + 2 * k, 12 + k)
    a.i("v_add_f32 v4, v28, v29")
    a.i("v_add_f32 v5, v30, v31")
    for k in range(4, 32, 2):
        a.i("v_add_f32 v4, v4, v%d" % (28 + k))
        a.i("v_add_f32 v5, v5, v%d" % (29 + k))
    a.i("v_add_f32 v4, v4, v5")
    dpp_reduce16("v_add_f32", 4)
    allreduce_rows("v_add_f32", 4, 5, do32=False)
    a.i("v_mul_f32 v4, 0x3a800000, v4")
    a.i("v_mov_b32 v6, 0")
    a.i("v_mov_b32 v7, 0")
    for k in range(0, 32, 2):
        a.i("v_sub_f32 v8, v%d, v4" % (28 + k))
        a.i("v_sub_f32 v9, v%d, v4" % (29 + k))
        a.i("v_fmac_f32 v6, v8, v8")
        a.i("v_fmac_f32 v7, v9, v9")
    a.i("v_add_f32 v6, v6, v7")
    dpp_reduce16("v_add_f32", 6)
    allreduce_rows("v_add_f32", 6, 7, do32=False)
    a.i("v_mul_f32 v6, 0x3a800000, v6")
    bf16_round_pair(5, 4, 6)
    unpack_lo(4, 5)
    unpack_hi(6, 5)
    a.i("v_add_f32 v6, 0x3727c5ac, v6")
    bf16_round_pair(6, 6, 6)
    unpack_lo(6, 6)
    a.i("v_sqrt_f32 v6, v6")
    bf16_round_pair(6, 6, 6)
    unpack_lo(6, 6)
    a.i("v_rcp_f32 v6, v6")
    for k in range(16):
        a.i("v_sub_f32 v8, v%d, v4" % (28 + 2 * k))
        a.i("v_sub_f32 v9, v%d, v4" % (29 + 2 * k))
        bf16_round_pair(8, 8, 9)
        unpack_hi(9, 8)
        unpack_lo(8, 8)
        a.i("v_mul_f32 v8, v8, v6")
        a.i("v_mul_f32 v9, v9, v6")
        bf16_round_pair(12 + k, 8, 9)
    a.i("v_lshrrev_b32 v4, 5, v0")
    a.i("s_lshl_b32 s5, s3, 1")
    a.i("v_add_u32 v4, s5, v4")
    a.i("v_mul_u32_u24 v4, 2064, v4")
    a.i("v_and_b32 v5, 31, v0")
    a.i("v_lshl_add_u32 v4, v5, 4, v4")
    for u in range(4):
        a.i("ds_write_b128 v4, %s offset:%d" % (v(12 + 4 * u, 4), XN + u * 512))
    a.i("s_waitcnt lgkmcnt(0)")

    a.label("L_bar1")
    a.i("s_barrier")
    stamp(1)
    a.i("s_cmp_eq_u32 s3, 0")
    a.br("s_cbranch_scc1 L_comm")
    a.i("s_cmp_lt_u32 s3, 4")
    a.br("s_cbranch_scc1 L_kload")
    a.i("v_and_b32 v3, 7, v0")
    a.i("v_mul_u32_u24 v3, 2064, v3")
    a.i("v_bfe_u32 v4, v0, 3, 1")
    a.i("v_lshl_add_u32 v3, v4, 6, v3")
    a.i("v_lshrrev_b32 v5, 4, v0")
    a.i("v_lshl_add_u32 v3, v5, 4, v3")
    a.i("s_lshl_b32 s4, s%d, 1" % sK0)
    a.i("s_and_b32 s4, s4, 2047")
    a.i("v_add_u32 v3, s4, v3")
    a.i("ds_read_b128 v[44:47], v3 offset:%d" % XN)
    a.i("v_lshrrev_b32 v6, 5, v0")
    a.i("s_lshl_b32 s5, s3, 1")
    a.i("s_sub_u32 s5, s5, 8")
    a.i("v_add_u32 v7, s5, v6")
    a.i("v_mul_u32_u24 v7, 2176, v7")
    a.i("v_and_b32 v8, 7, v0")
    a.i("v_mul_u32_u24 v8, 272, v8")
    a.i("v_add_u32 v7, v7, v8")
    a.i("v_bfe_u32 v8, v0, 4, 1")
    a.i("v_lshl_add_u32 v7, v8, 7, v7")
    a.i("v_add_u32 v7, %d, v7" % R1)
    a.i("v_cmp_eq_u32 vcc, v4, v6")
    a.i("v_mov_b32 v8, %d" % DUMP)
    a.i("v_cndmask_b32 v7, v8, v7, vcc")
    a.i("s_waitcnt vmcnt(0) lgkmcnt(0)")
    stamp(2)
    for q in range(4):
        A0 = KV + q * 16
        for p in range(4):
            a.i("v_perm_b32 v%d, v%d, v%d, s%d" % (A0 + p, 12 + (2 * p + 1) * 4 + q, 12 + (2 * p) * 4 + q, sSELLO))
        for p in range(4):
            a.i("v_perm_b32 v%d, v%d, v%d, s%d" % (A0 + 4 + p, 12 + (2 * p + 1) * 4 + q, 12 + (2 * p) * 4 + q, sSELHI))
        a.i("v_mfma_f32_16x16x32_bf16 %s, %s, v[44:47], 0" % (v(A0 + 8, 4), v(A0, 4)))
        a.i("v_mfma_f32_16x16x32_bf16 %s, %s, v[44:47], 0" % (v(A0 + 12, 4), v(A0 + 4, 4)))
    for q in range(4):
        A0 = KV + q * 16
        for r in range(4):
            a.i("ds_write2_b32 v7, v%d, v%d offset0:%d offset1:%d" % (A0 + 8 + r, A0 + 12 + r, 8 * r + 2 * q, 8 * r + 2 * q + 1))
    a.i("s_waitcnt lgkmcnt(0)")
    a.i("s_sub_u32 s8, s3, 4")
    a.i("s_lshr_b32 s9, s8, 2")
    a.i("s_lshl_b32 s8, s9, 2")
    a.i("s_add_u32 s8, s8, %d" % (CNT + C_P1))
    a.i("v_mov_b32 v3, s8")
    a.i("v_mov_b32 v4, 1")
    a.i("s_mov_b64 exec, 1")
    a.i("ds_add_rtn_u32 v5, v3, v4")
    a.i("s_mov_b64 exec, -1")
    a.i("s_waitcnt lgkmcnt(0)")
    a.i("v_readfirstlane_b32 s8, v5")
    a.i("s_cmp_lg_u32 s8, 3")
    a.br("s_cbranch_scc1 L_waitpub")
    prio(3)
    a.i("v_lshrrev_b32 v3, 4, v0")
    a.i("v_mul_u32_u24 v3, 272, v3")
    a.i("v_and_b32 v4, 15, v0")
    a.i("v_lshl_add_u32 v3, v4, 4, v3")
    a.i("s_mul_i32 s8, s9, %d" % (8 * 2176))
    a.i("s_add_u32 s8, s8, %d" % R1)
    a.i("v_add_u32 v3, s8, v3")
    for u in range(2):
        base = KV + u * 32
        for c in range(8):
            a.i("ds_read_b128 %s, v3 offset:%d" % (v(base + 4 * c, 4), c * 2176 + u * 4 * 272))
    pub_addr(6, 7, 4, 5)
    a.i("s_cmp_eq_u32 s9, 1")
    a.i("s_cselect_b32 s5, s5, s6")
    a.i("s_movk_i32 s10, %d" % (14336 * 2))
    a.i("s_cmp_eq_u32 s9, 0")
    a.i("s_cselect_b32 s4, s4, s5")
    a.i("s_cselect_b32 s10, 0x8000, s10")
    a.i("s_cselect_b64 vcc, -1, 0")
    a.i("s_lshl_b32 s10, s10, 1")
    a.i("v_cndmask_b32 v6, v7, v6, vcc")
    for u in range(2):
        base = KV + u * 32
        sb = 12 + u * 4
        a.i("s_waitcnt lgkmcnt(%d)" % (8 if u == 0 else 0))
        for c in (0, 2, 4, 6):
            for e in range(4):
                a.i("v_add_f32 v%d, v%d, v%d" % (base + 4 * c + e, base + 4 * c + e, base + 4 * c + 4 + e))
        for c in (0, 4):
            for e in range(4):
                a.i("v_add_f32 v%d, v%d, v%d" % (base + 4 * c + e, base + 4 * c + e, base + 4 * c + 8 + e))
        for e in range(4):
            a.i("v_add_f32 v%d, v%d, v%d" % (sb + e, base + e, base + 16 + e))
        for e in range(4):
            a.i("v_min_u32 v%d, -2, v%d" % (sb + e, sb + e))
        a.i("buffer_store_dwordx4 %s, v6, %s, s4 offen sc1" % (v(sb, 4), s(sWS, 4)))
        if u == 0:
            a.i("s_add_u32 s4, s4, s10")
    lds_inc(C_PUB, 3, 4)
    stamp(15)
    a.label("L_waitpub")
    if cfg.get("hold", 1):
        lds_spin(C_PUB, 3, 3, 4, sleep=1)
    a.label("L_kload")
    a.i("s_cmp_lg_u32 s2, %d" % ROOT)
    a.br("s_cbranch_scc1 L_kload2")
    lds_spin(C_BC, 1, 3, 4, sleep=1)
    a.label("L_kload2")
    prio(1)
    k_loads()
    prio(0)
    a.i("s_cmp_lg_u32 s%d, 1" % sDMA)
    a.br("s_cbranch_scc1 L_noearly")
    tw_dma()
    a.label("L_noearly")
    stamp(3)
    lds_spin(C_QRDY, 1, 3, 4, sleep=2)
    a.br("s_branch L_kpass")

    def root_bcast(off, val, tag):
        a.i("v_and_b32 v3, %d, v0" % AMASK)
        a.i("v_lshlrev_b32 v3, 2, v3")
        a.i("s_mov_b32 s%d, %d" % (sSPIN, SPIN_G))
        a.label(tag + "_p")
        a.i("buffer_load_dword v4, v3, %s, 0 offen offset:%d sc1" % (s(sDBG, 4), off))
        a.i("s_waitcnt vmcnt(0)")
        a.i("v_cmp_ne_u32 vcc, %d, v4" % (256 // (AMASK + 1)))
        a.br("s_cbranch_vccz %s_d" % tag)
        a.i("s_sleep 2")
        a.i("s_sub_u32 s%d, s%d, 1" % (sSPIN, sSPIN))
        a.i("s_cmp_lg_u32 s%d, 0" % sSPIN)
        a.br("s_cbranch_scc1 %s_p" % tag)
        a.label(tag + "_d")
        for k in range(4):
            a.i("v_mov_b32 v%d, %d" % (60 + k, val))
        a.i("v_lshlrev_b32 v3, 7, v0")
        a.i("s_mov_b32 s4, 0x%x" % MB)
        a.i("buffer_store_dwordx4 v[60:63], v3, %s, s4 offen sc1" % s(sWS, 4))

    def mbox_wait(minval, tag):
        a.i("v_mov_b32 v3, s%d" % sMBX)
        a.i("s_mov_b32 s%d, %d" % (sSPIN, SPIN_G))
        a.label(tag + "_p")
        a.i("buffer_load_dword v4, v3, %s, 0 offen sc1" % s(sWS, 4))
        a.i("s_waitcnt vmcnt(0)")
        a.i("v_subrev_u32 v4, %d, v4" % minval)
        a.i("v_cmp_lt_u32 vcc, %d, v4" % (2 - minval))
        a.br("s_cbranch_vccz %s_d" % tag)
        a.i("s_sleep 2")
        a.i("s_sub_u32 s%d, s%d, 1" % (sSPIN, sSPIN))
        a.i("s_cmp_lg_u32 s%d, 0" % sSPIN)
        a.br("s_cbranch_scc1 %s_p" % tag)
        a.label(tag + "_d")

    a.label("L_comm")
    a.i("s_cmp_lg_u32 s2, %d" % ROOT)
    a.br("s_cbranch_scc1 L_notroot")
    root_bcast(AOFF, 1, "L_rba")
    lds_inc(C_BC, 3, 4)
    a.br("s_branch L_poll1_done")
    a.label("L_notroot")
    mbox_wait(1, "L_mba")
    a.label("L_poll1_done")
    stamp(16)
    a.i("s_and_b32 s6, s2, %d" % AMASK)
    a.i("s_lshl_b32 s6, s6, 2")
    a.i("v_mov_b32 v3, s6")
    a.i("v_mov_b32 v4, 1")
    a.i("s_waitcnt vmcnt(1)")
    a.i("s_mov_b64 exec, 1")
    a.i("buffer_atomic_add v4, v3, %s, 0 offen offset:128 sc1" % s(sDBG, 4))
    a.i("s_mov_b64 exec, -1")
    stamp(3)
    lds_spin(C_PUB, 3, 3, 4, sleep=1)
    stamp(4)
    a.i("s_lshl_b32 s4, s%d, 14" % sB)
    a.i("s_lshl_b32 s5, s%d, 12" % sKVH)
    a.i("s_add_u32 s4, s4, s5")
    a.i("s_add_u32 s4, s4, 0x%x" % QP)
    for sp in range(1, 4):
        a.i("s_add_u32 s%d, s4, %d" % (4 + sp, sp * 8 * 16384))
    vgather([(KV + (sp * 4 + u) * 4, ["buffer_load_dwordx4 %s, v%d, %s, s%d offen offset:%d sc1" % (
        v(KV + (sp * 4 + u) * 4, 4), vOFFV, s(sWS, 4), 4 + sp, u * 1024)]) for sp in range(4) for u in range(4)], 5, 6)
    a.i("v_lshrrev_b32 v3, 5, v0")
    a.i("v_mul_u32_u24 v3, 272, v3")
    a.i("v_and_b32 v4, 31, v0")
    a.i("v_lshl_add_u32 v3, v4, 3, v3")
    for u in range(4):
        for e in range(4):
            r0 = KV + u * 4 + e
            a.i("v_add_f32 v%d, v%d, v%d" % (r0, r0, r0 + 16))
            a.i("v_add_f32 v%d, v%d, v%d" % (r0 + 32, r0 + 32, r0 + 48))
            a.i("v_add_f32 v%d, v%d, v%d" % (r0, r0, r0 + 32))
        bf16_round_pair(12 + 2 * u, KV + u * 4, KV + u * 4 + 1)
        bf16_round_pair(13 + 2 * u, KV + u * 4 + 2, KV + u * 4 + 3)
        a.i("ds_write_b64 v3, %s offset:%d" % (v(12 + 2 * u, 2), QL + u * 544))
    a.i("v_mov_b32 v8, %d" % CNT)
    a.i("v_mov_b32 v9, 1")
    a.i("s_waitcnt lgkmcnt(0)")
    a.i("ds_write_b32 v8, v9 offset:%d" % C_QRDY)
    stamp(5)
    a.i("v_and_b32 v3, 7, v0")
    a.i("v_mul_u32_u24 v3, 14336, v3")
    a.i("v_bfe_u32 v4, v0, 3, 1")
    a.i("v_lshl_add_u32 v3, v4, 7, v3")
    a.i("v_lshrrev_b32 v5, 4, v0")
    a.i("v_lshl_add_u32 v3, v5, 5, v3")
    a.i("v_cmp_le_u32 vcc, 56, v0")
    a.i("v_mov_b32 v6, 0x7ffffff0")
    a.i("v_cndmask_b32 v3, v3, v6, vcc")
    a.i("s_mul_i32 s4, s%d, 224" % sKS)
    a.i("s_add_u32 s8, s4, 0x%x" % UP)
    a.i("s_add_u32 s4, s4, 0x%x" % GP)
    for sp in range(1, 4):
        a.i("s_add_u32 s%d, s4, %d" % (4 + sp, sp * 8 * 14336))
        a.i("s_add_u32 s%d, s8, %d" % (8 + sp, sp * 8 * 14336))
    lds = []
    for sp in range(4):
        for hf in range(2):
            for m in range(2):
                d = KV + m * 32 + (sp * 2 + hf) * 4
                lds.append((d, ["buffer_load_dwordx4 %s, v3, %s, s%d offen offset:%d sc1" % (v(d, 4), s(sWS, 4), 4 + 4 * m + sp, hf * 16)]))
    vgather(lds, 6, 7)
    a.i("s_cmp_lg_u32 s2, %d" % ROOT)
    a.br("s_cbranch_scc1 L_notroot2")
    a.i("v_mov_b32 v8, v4")
    root_bcast(128, 2, "L_rbb")
    a.i("v_mov_b32 v4, v8")
    a.label("L_notroot2")
    G0, U0 = 28, 36
    for m, dst in ((0, G0), (1, U0)):
        for e in range(8):
            r0 = KV + m * 32 + e
            a.i("v_add_f32 v%d, v%d, v%d" % (r0, r0, r0 + 8))
            a.i("v_add_f32 v%d, v%d, v%d" % (r0 + 16, r0 + 16, r0 + 24))
            a.i("v_add_f32 v%d, v%d, v%d" % (dst + e, r0, r0 + 16))
    k_loads()
    a.i("s_mov_b32 s4, 0x3d372713")
    a.i("s_mov_b32 s5, 0xc0135761")
    for e in range(0, 8, 2):
        g0, g1, u0, u1 = G0 + e, G0 + e + 1, U0 + e, U0 + 1 + e
        bf16_round_pair(12, g0, g1)
        bf16_round_pair(13, u0, u1)
        unpack_lo(g0, 12)
        unpack_hi(g1, 12)
        unpack_lo(u0, 13)
        unpack_hi(u1, 13)
        for gg, tt in ((g0, 14), (g1, 15)):
            a.i("v_mul_f32 v%d, v%d, v%d" % (tt, gg, gg))
            a.i("v_mul_f32 v%d, s4, v%d" % (tt, tt))
            a.i("v_fma_f32 v%d, v%d, v%d, v%d" % (tt, tt, gg, gg))
            a.i("v_mul_f32 v%d, s5, v%d" % (tt, tt))
            a.i("v_exp_f32 v%d, v%d" % (tt, tt))
            a.i("v_add_f32 v%d, 1.0, v%d" % (tt, tt))
            a.i("v_rcp_f32 v%d, v%d" % (tt, tt))
            a.i("v_mul_f32 v%d, v%d, v%d" % (tt, tt, gg))
        bf16_round_pair(14, 14, 15)
        unpack_hi(15, 14)
        unpack_lo(14, 14)
        a.i("v_mul_f32 v14, v14, v%d" % u0)
        a.i("v_mul_f32 v15, v15, v%d" % u1)
        bf16_round_pair(16 + e // 2, 14, 15)
    a.i("v_and_b32 v3, 7, v0")
    a.i("v_lshlrev_b32 v3, 6, v3")
    a.i("v_lshl_add_u32 v3, v4, 9, v3")
    a.i("v_lshl_add_u32 v3, v5, 4, v3")
    a.i("ds_write_b128 v3, v[16:19] offset:%d" % HL)
    prio(0)

    a.label("L_kpass")
    stamp(6)
    Q, S, T, Y0 = 12, 28, 44, 60
    a.i("v_and_b32 v3, 7, v0")
    a.i("v_mul_u32_u24 v3, 272, v3")
    a.i("v_lshrrev_b32 v4, 4, v0")
    a.i("v_lshl_add_u32 v3, v4, 6, v3")
    for j in range(4):
        a.i("ds_read_b128 %s, v3 offset:%d" % (v(Q + 4 * j, 4), QL + j * 16))
    DPPA = "quad_perm:[1,0,3,2] row_mask:0xf bank_mask:0xf"
    DPPB = "quad_perm:[2,3,0,1] row_mask:0xf bank_mask:0xf"

    def dma_wait(n, mode):
        if WD_MODE != mode and WO_MODE != mode:
            a.i("s_waitcnt vmcnt(%d)" % n)
            return
        l1, l2 = a.newlabel("L_w"), a.newlabel("L_w")
        a.i("s_cmp_eq_u32 s%d, %d" % (sDMA, mode))
        a.br("s_cbranch_scc1 %s" % l1)
        a.i("s_waitcnt vmcnt(%d)" % n)
        a.label(l1)
        a.i("s_waitcnt vmcnt(%d)" % (n + 8))

    for t in range(4):
        X = KV + t * 16
        dma_wait(12 - 4 * t, 1)
        a.i("s_mov_b64 vcc, s[%d:%d]" % (sMEV, sMEV + 1))
        for pr in (0, 2):
            for e in range(4):
                a.i("v_cndmask_b32_dpp v%d, v%d, v%d, vcc %s" % (T + pr * 4 + e, X + (pr + 1) * 4 + e, X + pr * 4 + e, DPPA))
        a.i("s_mov_b64 vcc, s[%d:%d]" % (sMOD, sMOD + 1))
        for pr in (0, 2):
            for e in range(4):
                a.i("v_cndmask_b32_dpp v%d, v%d, v%d, vcc %s" % (T + (pr + 1) * 4 + e, X + pr * 4 + e, X + (pr + 1) * 4 + e, DPPA))
        a.i("s_mov_b64 vcc, s[%d:%d]" % (sMLO, sMLO + 1))
        for e in range(4):
            a.i("v_cndmask_b32_dpp v%d, v%d, v%d, vcc %s" % (X + e, T + 8 + e, T + e, DPPB))
        for e in range(4):
            a.i("v_cndmask_b32_dpp v%d, v%d, v%d, vcc %s" % (X + 4 + e, T + 12 + e, T + 4 + e, DPPB))
        a.i("s_mov_b64 vcc, s[%d:%d]" % (sMHI, sMHI + 1))
        for e in range(4):
            a.i("v_cndmask_b32_dpp v%d, v%d, v%d, vcc %s" % (X + 8 + e, T + e, T + 8 + e, DPPB))
        for e in range(4):
            a.i("v_cndmask_b32_dpp v%d, v%d, v%d, vcc %s" % (X + 12 + e, T + 4 + e, T + 12 + e, DPPB))
        if t == 0:
            a.i("s_waitcnt lgkmcnt(0)")
        for j in range(4):
            a.i("v_mfma_f32_16x16x32_bf16 %s, %s, %s, %s" % (
                v(S + 4 * t, 4), v(X + 4 * j, 4), v(Q + 4 * j, 4), "0" if j == 0 else v(S + 4 * t, 4)))

    for k in range(0, 16, 2):
        bf16_round_pair(44, S + k, S + k + 1)
        unpack_lo(S + k, 44)
        unpack_hi(S + k + 1, 44)
        a.i("v_mul_f32 v%d, s%d, v%d" % (S + k, sSCALE, S + k))
        a.i("v_mul_f32 v%d, s%d, v%d" % (S + k + 1, sSCALE, S + k + 1))
        bf16_round_pair(44, S + k, S + k + 1)
        unpack_lo(S + k, 44)
        unpack_hi(S + k + 1, 44)
    a.i("v_max3_f32 v4, v%d, v%d, v%d" % (S, S + 1, S + 2))
    for k in range(3, 15, 2):
        a.i("v_max3_f32 v4, v4, v%d, v%d" % (S + k, S + k + 1))
    a.i("v_max_f32 v4, v4, v%d" % (S + 15))
    allreduce_rows("v_max_f32", 4, 5)
    a.i("v_mul_f32 v6, s%d, v4" % sLOG2E)
    for k in range(16):
        a.i("v_fma_f32 v%d, v%d, s%d, -v6" % (S + k, S + k, sLOG2E))
    for k in range(16):
        a.i("v_exp_f32 v%d, v%d" % (S + k, S + k))
    a.i("v_add_f32 v5, v%d, v%d" % (S, S + 1))
    a.i("v_add_f32 v7, v%d, v%d" % (S + 2, S + 3))
    for k in range(4, 16, 2):
        a.i("v_add_f32 v5, v5, v%d" % (S + k))
        a.i("v_add_f32 v7, v7, v%d" % (S + k + 1))
    a.i("v_add_f32 v5, v5, v7")
    allreduce_rows("v_add_f32", 5, 7)
    a.i("v_and_b32 v3, 7, v0")
    a.i("v_lshlrev_b32 v3, 6, v3")
    a.i("s_lshl_b32 s4, s3, 2")
    a.i("v_add_u32 v7, s4, v3")
    a.i("ds_write_b32 v7, v4 offset:%d" % SM)
    a.i("ds_write_b32 v7, v5 offset:%d" % SL)
    a.i("v_lshrrev_b32 v8, 4, v0")
    a.i("v_lshl_add_u32 v9, v8, 4, v3")
    lds_inc(C_M, 4, 5)
    stamp(7)
    v_loads()
    a.i("s_cmp_lg_u32 s%d, 2" % sDMA)
    a.br("s_cbranch_scc1 L_nolate")
    tw_dma()
    a.label("L_nolate")
    stamp(8)
    lds_spin(C_M, 16, 4, 5, sleep=1)
    a.i("ds_read_b128 v[44:47], v9 offset:%d" % SM)
    a.i("ds_read_b128 v[48:51], v9 offset:%d" % SL)
    a.i("s_waitcnt lgkmcnt(0)")
    a.i("v_max3_f32 v7, v44, v45, v46")
    a.i("v_max_f32 v7, v7, v47")
    allreduce_rows("v_max_f32", 7, 8)
    a.i("v_mul_f32 v8, s%d, v7" % sLOG2E)
    a.i("v_sub_f32 v9, v6, v8")
    a.i("v_exp_f32 v9, v9")
    for k in range(16):
        a.i("v_mul_f32 v%d, v9, v%d" % (S + k, S + k))
    for p in range(8):
        bf16_round_pair(S + p, S + 2 * p, S + 2 * p + 1)
    P = S
    for k in range(4):
        a.i("v_fma_f32 v%d, v%d, s%d, -v8" % (44 + k, 44 + k, sLOG2E))
    for k in range(4):
        a.i("v_exp_f32 v%d, v%d" % (44 + k, 44 + k))
    a.i("v_mul_f32 v52, v44, v48")
    for k in range(1, 4):
        a.i("v_fmac_f32 v52, v%d, v%d" % (44 + k, 48 + k))
    allreduce_rows("v_add_f32", 52, 53)
    a.i("v_min_u32 v60, -2, v7")
    a.i("v_min_u32 v61, -2, v52")

    D = [12, 16, 20, 24, 44, 48, 52, 56]
    PT = 36

    def pv_step(u):
        for q in range(4):
            for p in range(4):
                a.i("v_perm_b32 v%d, v%d, v%d, s%d" % (PT + p, KV + (8 * u + 2 * p + 1) * 4 + q, KV + (8 * u + 2 * p) * 4 + q, sSELLO))
            for p in range(4):
                a.i("v_perm_b32 v%d, v%d, v%d, s%d" % (PT + 4 + p, KV + (8 * u + 2 * p + 1) * 4 + q, KV + (8 * u + 2 * p) * 4 + q, sSELHI))
            for h in range(2):
                i = 2 * q + h
                a.i("v_mfma_f32_16x16x32_bf16 %s, %s, %s, %s" % (
                    v(D[i], 4), v(PT + 4 * h, 4), v(P + 4 * u, 4), "0" if u == 0 else v(D[i], 4)))

    a.i("v_and_b32 v3, 15, v0")
    a.i("v_mul_u32_u24 v4, 528, v3")
    a.i("v_lshrrev_b32 v5, 4, v0")
    a.i("v_lshl_add_u32 v4, v5, 7, v4")
    a.i("s_mul_i32 s4, s3, 4224")
    a.i("s_add_u32 s4, s4, %d" % ORED)
    a.i("v_add_u32 v4, s4, v4")
    a.i("v_cmp_gt_u32 vcc, 8, v3")
    a.i("v_mov_b32 v5, %d" % DUMP)
    a.i("v_cndmask_b32 v4, v5, v4, vcc")
    dma_wait(8, 2)
    pv_step(0)
    dma_wait(0, 2)
    stamp(9)
    pv_step(1)
    for i in range(8):
        a.i("ds_write_b128 v4, %s offset:%d" % (v(D[i], 4), i * 16))
    a.i("s_cmp_lg_u32 s3, 0")
    a.br("s_cbranch_scc1 L_nombb")
    mbox_wait(2, "L_mbb")
    a.label("L_nombb")
    a.i("s_waitcnt lgkmcnt(0)")
    a.i("s_barrier")
    stamp(10)
    a.i("s_cmp_ge_u32 s3, 8")
    a.br("s_cbranch_scc1 L_dmawave")
    prio(3)
    a.i("s_cmp_ge_u32 s3, 4")
    a.br("s_cbranch_scc1 L_reducer")
    a.i("s_cmp_eq_u32 s3, 3")
    a.br("s_cbranch_scc1 L_final")
    a.i("s_cmp_eq_u32 s3, 0")
    a.br("s_cbranch_scc1 L_gather")
    a.br("s_branch L_tail")

    a.label("L_reducer")
    a.i("v_lshrrev_b32 v3, 5, v0")
    a.i("s_sub_u32 s6, s3, 4")
    a.i("s_lshl_b32 s4, s6, 1")
    a.i("v_add_u32 v3, s4, v3")
    a.i("v_mul_u32_u24 v3, 528, v3")
    a.i("v_and_b32 v4, 31, v0")
    a.i("v_lshl_add_u32 v3, v4, 4, v3")
    a.i("v_add_u32 v3, %d, v3" % ORED)
    for w2 in range(16):
        a.i("ds_read_b128 %s, v3 offset:%d" % (v(KV + 4 * w2, 4), w2 * 4224))
    a.i("s_lshl_b32 s4, s%d, 12" % sCH)
    a.i("s_lshl_b32 s5, s6, 10")
    a.i("s_add_u32 s4, s4, s5")
    a.i("s_add_u32 s4, s4, 0x%x" % OB1)
    a.i("s_waitcnt lgkmcnt(8)")
    for w2 in range(0, 8, 2):
        for e in range(4):
            a.i("v_add_f32 v%d, v%d, v%d" % (KV + 4 * w2 + e, KV + 4 * w2 + e, KV + 4 * w2 + 4 + e))
    for w2 in (0, 4):
        for e in range(4):
            a.i("v_add_f32 v%d, v%d, v%d" % (KV + 4 * w2 + e, KV + 4 * w2 + e, KV + 4 * w2 + 8 + e))
    for e in range(4):
        a.i("v_add_f32 v%d, v%d, v%d" % (KV + e, KV + e, KV + 16 + e))
    a.i("s_waitcnt lgkmcnt(0)")
    for w2 in range(8, 16, 2):
        for e in range(4):
            a.i("v_add_f32 v%d, v%d, v%d" % (KV + 4 * w2 + e, KV + 4 * w2 + e, KV + 4 * w2 + 4 + e))
    for w2 in (8, 12):
        for e in range(4):
            a.i("v_add_f32 v%d, v%d, v%d" % (KV + 4 * w2 + e, KV + 4 * w2 + e, KV + 4 * w2 + 8 + e))
    for e in range(4):
        a.i("v_add_f32 v%d, v%d, v%d" % (KV + 32 + e, KV + 32 + e, KV + 48 + e))
    for e in range(4):
        a.i("v_add_f32 v%d, v%d, v%d" % (KV + e, KV + e, KV + 32 + e))
    for e in range(4):
        a.i("v_min_u32 v%d, -2, v%d" % (KV + e, KV + e))
    a.i("buffer_store_dwordx4 %s, v%d, %s, s4 offen sc1" % (v(KV, 4), vOFFV, s(sWS, 4)))
    stamp(11)
    a.br("s_branch L_exit")

    a.label("L_dmawave")
    a.i("s_waitcnt vmcnt(0)")
    lds_inc(C_DMA, 3, 4)
    stamp(11)
    a.br("s_branch L_exit")

    a.label("L_gather")
    a.i("s_lshr_b32 s4, s%d, 1" % sKS)
    a.i("s_lshr_b32 s6, s4, 3")
    a.i("s_lshl_b32 s5, s6, 10")
    a.i("s_and_b32 s7, s4, 7")
    a.i("s_lshl_b32 s7, s7, 3")
    a.i("s_add_u32 s5, s5, s7")
    a.i("s_add_u32 s5, s5, 0x%x" % ST)
    a.i("v_lshrrev_b32 v3, 3, v0")
    a.i("v_lshlrev_b32 v3, 12, v3")
    a.i("v_and_b32 v4, 7, v0")
    a.i("v_lshl_add_u32 v3, v4, 7, v3")
    a.i("v_lshrrev_b32 v7, 4, v0")
    a.i("v_lshlrev_b32 v7, 17, v7")
    a.i("v_and_b32 v8, 15, v0")
    a.i("v_lshl_add_u32 v7, v8, 4, v7")
    a.i("s_lshl_b32 s6, s6, 15")
    a.i("s_and_b32 s7, s%d, 15" % sKS)
    a.i("s_lshl_b32 s7, s7, 8")
    a.i("s_add_u32 s6, s6, s7")
    a.i("s_add_u32 s6, s6, 0x%x" % OB1)
    a.i("s_mov_b32 s%d, %d" % (sSPIN, SPIN_G))
    a.label("L_poll_st")
    a.i("buffer_load_dwordx2 v[4:5], v3, %s, s5 offen sc1" % s(sWS, 4))
    a.i("s_waitcnt vmcnt(0)")
    a.i("v_max_u32 v6, v4, v5")
    a.i("v_cmp_eq_u32 vcc, -1, v6")
    a.br("s_cbranch_vccz L_poll_st_done")
    a.i("s_sleep 1")
    a.i("s_sub_u32 s%d, s%d, 1" % (sSPIN, sSPIN))
    a.i("s_cmp_lg_u32 s%d, 0" % sSPIN)
    a.br("s_cbranch_scc1 L_poll_st")
    a.label("L_poll_st_done")
    stamp(11)

    def gather_loads():
        for bh in range(2):
            for sp in range(8):
                a.i("s_add_u32 s7, s6, %d" % (bh * 4 * 32 * 4096 + sp * 4096))
                a.i("buffer_load_dwordx4 %s, v7, %s, s7 offen sc1" % (v(KV + (bh * 8 + sp) * 4, 4), s(sWS, 4)))

    gather_loads()
    a.i("v_mov_b32 v6, v4")
    dpp_reduce16("v_max_f32", 6, n=3)
    a.i("v_sub_f32 v6, v4, v6")
    a.i("v_mul_f32 v6, s%d, v6" % sLOG2E)
    a.i("v_exp_f32 v6, v6")
    a.i("v_mul_f32 v9, v6, v5")
    dpp_reduce16("v_add_f32", 9, n=3)
    a.i("v_rcp_f32 v9, v9")
    a.i("v_mul_f32 v6, v6, v9")
    a.i("v_lshlrev_b32 v3, 2, v0")
    a.i("ds_write_b32 v3, v6 offset:%d" % FL)
    a.i("v_lshrrev_b32 v3, 4, v0")
    a.i("v_lshlrev_b32 v3, 5, v3")
    a.i("s_waitcnt lgkmcnt(0)")
    for bh in range(2):
        for hf in range(2):
            a.i("ds_read_b128 %s, v3 offset:%d" % (v(12 + bh * 8 + hf * 4, 4), FL + bh * 128 + hf * 16))
    a.i("s_mov_b32 s%d, %d" % (sSPIN, SPIN_G))
    a.label("L_poll_o")
    a.i("s_waitcnt vmcnt(0)")
    a.i("v_max3_u32 v4, v%d, v%d, v%d" % (KV, KV + 1, KV + 2))
    a.i("v_max3_u32 v5, v%d, v%d, v%d" % (KV + 3, KV + 4, KV + 5))
    for k in range(6, 62, 4):
        a.i("v_max3_u32 v4, v4, v%d, v%d" % (KV + k, KV + k + 1))
        a.i("v_max3_u32 v5, v5, v%d, v%d" % (KV + k + 2, KV + k + 3))
    a.i("v_max3_u32 v4, v4, v%d, v%d" % (KV + 62, KV + 63))
    a.i("v_max_u32 v4, v4, v5")
    a.i("v_cmp_eq_u32 vcc, -1, v4")
    a.br("s_cbranch_vccz L_poll_o_done")
    a.i("s_sub_u32 s%d, s%d, 1" % (sSPIN, sSPIN))
    a.i("s_cmp_eq_u32 s%d, 0" % sSPIN)
    a.br("s_cbranch_scc1 L_poll_o_done")
    gather_loads()
    a.br("s_branch L_poll_o")
    a.label("L_poll_o_done")
    stamp(12)
    a.i("s_waitcnt lgkmcnt(0)")
    for bh in range(2):
        for e in range(4):
            a.i("v_mul_f32 v%d, v%d, v%d" % (28 + bh * 4 + e, 12 + bh * 8, KV + bh * 32 + e))
        for sp in range(1, 8):
            for e in range(4):
                a.i("v_fmac_f32 v%d, v%d, v%d" % (28 + bh * 4 + e, 12 + bh * 8 + sp, KV + (bh * 8 + sp) * 4 + e))
    a.i("v_bfe_u32 v3, v0, 3, 1")
    a.i("v_lshlrev_b32 v3, 9, v3")
    a.i("v_lshrrev_b32 v4, 4, v0")
    a.i("v_lshl_add_u32 v3, v4, 6, v3")
    a.i("v_and_b32 v4, 7, v0")
    a.i("v_lshl_add_u32 v3, v4, 3, v3")
    for bh in range(2):
        bf16_round_pair(36 + 2 * bh, 28 + bh * 4, 29 + bh * 4)
        bf16_round_pair(37 + 2 * bh, 30 + bh * 4, 31 + bh * 4)
        a.i("ds_write_b64 v3, %s offset:%d" % (v(36 + 2 * bh, 2), OL + bh * 256))
    a.i("v_mov_b32 v3, %d" % CNT)
    a.i("v_mov_b32 v4, 1")
    a.i("ds_write_b32 v3, v4 offset:%d" % C_ORDY)
    stamp(13)
    a.br("s_branch L_exit")

    a.label("L_tail")
    lds_spin(C_DMA, 8, 3, 4, sleep=1)
    stamp(11)
    a.i("s_sub_u32 s4, s3, 1")
    a.i("s_lshl_b32 s5, s4, 15")
    a.i("s_add_u32 s5, s5, %d" % TW)
    a.i("v_add_u32 v5, s5, v%d" % vOFFV)
    a.i("v_and_b32 v6, 7, v0")
    a.i("v_lshlrev_b32 v6, 6, v6")
    a.i("v_lshrrev_b32 v7, 4, v0")
    a.i("v_lshl_add_u32 v6, v7, 4, v6")
    a.i("ds_read_b128 v[28:31], v6 offset:%d" % HL)
    a.i("ds_read_b128 v[32:35], v6 offset:%d" % (HL + 512))
    for st in range(2):
        for j in range(8):
            a.i("ds_read_b128 %s, v5 offset:%d" % (v(KV + (st * 8 + j) * 4, 4), st * 8192 + j * 1024))
    for st in range(2):
        a.i("s_waitcnt lgkmcnt(%d)" % (8 if st == 0 else 0))
        for q in range(4):
            for p in range(4):
                a.i("v_perm_b32 v%d, v%d, v%d, s%d" % (PT + p, KV + (8 * st + 2 * p + 1) * 4 + q, KV + (8 * st + 2 * p) * 4 + q, sSELLO))
            for p in range(4):
                a.i("v_perm_b32 v%d, v%d, v%d, s%d" % (PT + 4 + p, KV + (8 * st + 2 * p + 1) * 4 + q, KV + (8 * st + 2 * p) * 4 + q, sSELHI))
            for h in range(2):
                i = 2 * q + h
                a.i("v_mfma_f32_16x16x32_bf16 %s, %s, %s, %s" % (
                    v(D[i], 4), v(28 + 4 * st, 4), v(PT + 4 * h, 4), "0" if st == 0 else v(D[i], 4)))
    for st in range(2):
        for j in range(8):
            a.i("ds_read_b128 %s, v5 offset:%d" % (v(KV + (st * 8 + j) * 4, 4), (2 + st) * 8192 + j * 1024))
    lds_spin(C_ORDY, 1, 3, 4, sleep=0)
    a.i("ds_read_b128 v[28:31], v6 offset:%d" % OL)
    a.i("ds_read_b128 v[32:35], v6 offset:%d" % (OL + 512))
    for st in range(2):
        for q in range(4):
            for p in range(4):
                a.i("v_perm_b32 v%d, v%d, v%d, s%d" % (PT + p, KV + (8 * st + 2 * p + 1) * 4 + q, KV + (8 * st + 2 * p) * 4 + q, sSELLO))
            for p in range(4):
                a.i("v_perm_b32 v%d, v%d, v%d, s%d" % (PT + 4 + p, KV + (8 * st + 2 * p + 1) * 4 + q, KV + (8 * st + 2 * p) * 4 + q, sSELHI))
            if st == 0 and q == 0:
                a.i("s_waitcnt lgkmcnt(0)")
            for h in range(2):
                i = 2 * q + h
                a.i("v_mfma_f32_16x16x32_bf16 %s, %s, %s, %s" % (
                    v(D[i], 4), v(28 + 4 * st, 4), v(PT + 4 * h, 4), v(D[i], 4)))
    a.i("s_lshl_b32 s5, s2, 13")
    a.i("s_lshl_b32 s6, s4, 12")
    a.i("s_add_u32 s5, s5, s6")
    a.i("s_add_u32 s5, s5, 0x%x" % OB2)
    a.i("s_mov_b32 exec_hi, 0")
    for i in range(8):
        for e in range(4):
            a.i("v_min_u32 v%d, -2, v%d" % (D[i] + e, D[i] + e))
        a.i("buffer_store_dwordx4 %s, v%d, %s, s5 offen offset:%d sc1" % (v(D[i], 4), vOFFV, s(sWS, 4), i * 512))
    a.i("s_mov_b64 exec, -1")
    stamp(13)
    a.br("s_branch L_exit")

    a.label("L_final")
    a.i("buffer_store_dwordx2 v[60:61], v%d, %s, 0 offen sc1" % (vST, s(sWS, 4)))
    a.i("s_lshr_b32 s4, s%d, 5" % sKS)
    a.i("s_lshl_b32 s4, s4, 7")
    a.i("s_lshl_b32 s5, s%d, 8" % sCB)
    a.i("s_add_u32 s4, s4, s5")
    a.i("s_lshr_b32 s5, s%d, 2" % sKS)
    a.i("s_and_b32 s5, s5, 7")
    a.i("s_add_u32 s4, s4, s5")
    a.i("s_and_b32 s5, s%d, 1" % sKS)
    a.i("s_lshl_b32 s5, s5, 6")
    a.i("s_add_u32 s4, s4, s5")
    a.i("s_lshr_b32 s5, s%d, 1" % sKS)
    a.i("s_and_b32 s5, s5, 1")
    a.i("s_lshl_b32 s5, s5, 12")
    a.i("s_add_u32 s4, s4, s5")
    a.i("s_lshl_b32 s4, s4, 1")
    a.i("v_lshrrev_b32 v3, 3, v0")
    a.i("v_and_b32 v4, 7, v0")
    a.i("v_lshlrev_b32 v5, 11, v3")
    a.i("v_lshl_add_u32 v5, v4, 4, v5")
    a.i("v_add_u32 v5, s4, v5")
    a.i("v_cmp_gt_u32 vcc, 32, v0")
    a.i("v_mov_b32 v6, 0x7ffffff0")
    a.i("v_cndmask_b32 v5, v6, v5, vcc")
    a.i("buffer_load_ushort v9, v5, %s, 0 offen" % s(sX, 4))
    a.i("v_lshlrev_b32 v6, 13, v3")
    a.i("v_lshl_add_u32 v6, v4, 4, v6")
    a.i("s_lshl_b32 s5, s%d, 19" % sCB)
    a.i("s_lshl_b32 s6, s%d, 7" % sKS)
    a.i("s_add_u32 s5, s5, s6")
    a.i("s_add_u32 s5, s5, 0x%x" % OB2)
    lds_spin(C_ORDY, 1, 7, 8, sleep=1)
    a.i("s_mov_b32 s%d, %d" % (sSPIN, SPIN_G))
    a.label("L_poll_f")
    for t in range(8):
        a.i("s_add_u32 s6, s5, %d" % (t * 65536))
        a.i("buffer_load_dwordx4 %s, v6, %s, s6 offen sc1" % (v(KV + 4 * t, 4), s(sWS, 4)))
    a.i("s_waitcnt vmcnt(0)")
    a.i("v_max3_u32 v7, v%d, v%d, v%d" % (KV, KV + 1, KV + 2))
    a.i("v_max3_u32 v8, v%d, v%d, v%d" % (KV + 3, KV + 4, KV + 5))
    for k in range(6, 30, 4):
        a.i("v_max3_u32 v7, v7, v%d, v%d" % (KV + k, KV + k + 1))
        a.i("v_max3_u32 v8, v8, v%d, v%d" % (KV + k + 2, KV + k + 3))
    a.i("v_max3_u32 v7, v7, v%d, v%d" % (KV + 30, KV + 31))
    a.i("v_max_u32 v7, v7, v8")
    a.i("v_cmp_eq_u32 vcc, -1, v7")
    a.br("s_cbranch_vccz L_poll_f_done")
    a.i("s_sub_u32 s%d, s%d, 1" % (sSPIN, sSPIN))
    a.i("s_cmp_lg_u32 s%d, 0" % sSPIN)
    a.br("s_cbranch_scc1 L_poll_f")
    a.label("L_poll_f_done")
    stamp(12)
    for t in range(0, 8, 2):
        for e in range(4):
            a.i("v_add_f32 v%d, v%d, v%d" % (KV + 4 * t + e, KV + 4 * t + e, KV + 4 * t + 4 + e))
    for t in (0, 4):
        for e in range(4):
            a.i("v_add_f32 v%d, v%d, v%d" % (KV + 4 * t + e, KV + 4 * t + e, KV + 4 * t + 8 + e))
    for e in range(4):
        a.i("v_add_f32 v%d, v%d, v%d" % (KV + e, KV + e, KV + 16 + e))
    for e in range(4):
        a.i("v_add_f32_dpp v%d, v%d, v%d row_ror:8 row_mask:0xf bank_mask:0xf" % (KV + e, KV + e, KV + e))
    for e in range(4):
        allreduce_rows("v_add_f32", KV + e, KV + 8 + e)
    a.i("v_cmp_eq_u32 vcc, 1, v3")
    a.i("v_cndmask_b32 v7, v%d, v%d, vcc" % (KV, KV + 1))
    a.i("v_cmp_eq_u32 vcc, 2, v3")
    a.i("v_cndmask_b32 v7, v7, v%d, vcc" % (KV + 2))
    a.i("v_cmp_eq_u32 vcc, 3, v3")
    a.i("v_cndmask_b32 v7, v7, v%d, vcc" % (KV + 3))
    a.i("v_lshlrev_b32 v9, 16, v9")
    a.i("v_add_f32 v7, v7, v9")
    bf16_round_pair(7, 7, 7)
    a.i("buffer_store_short v7, v5, %s, 0 offen" % s(sOUT, 4))
    a.i("s_cmp_lg_u32 s2, %d" % ROOT)
    a.br("s_cbranch_scc1 L_noreset")
    a.i("v_mov_b32 v3, 0")
    a.i("v_lshlrev_b32 v4, 2, v0")
    a.i("buffer_store_dword v3, v4, %s, 0 offen offset:%d sc1" % (s(sDBG, 4), AOFF))
    a.label("L_noreset")
    if cfg.get("pad", 0):
        if cfg.get("padwg", -1) >= 0:
            a.i("s_cmp_lg_u32 s2, %d" % cfg["padwg"])
            a.br("s_cbranch_scc1 L_exit")
        a.i("v_readfirstlane_b32 s4, v%d" % vSTAMP)
        a.label("L_pad")
        a.i("s_memrealtime s[14:15]")
        a.i("s_waitcnt lgkmcnt(0)")
        a.i("s_sub_u32 s5, s14, s4")
        a.i("s_cmp_lt_u32 s5, %d" % (cfg["pad"] * 100))
        a.br("s_cbranch_scc1 L_pad")
    stamp(13)

    a.label("L_exit")
    if diag == 2:
        a.i("v_not_b32 v4, v%d" % vSTAMP)
        a.i("v_cmp_eq_u32 vcc, 0, v0")
        a.i("v_cndmask_b32 v4, v%d, v4, vcc" % vSTAMP)
        a.i("v_lshlrev_b32 v3, 2, v0")
        a.i("s_mov_b64 exec, 0xffff")
        a.i("buffer_atomic_umax v4, v3, %s, 0 offen sc1" % s(sDBG, 4))
    if diag == 1:
        a.i("s_lshl_b32 s4, s2, 4")
        a.i("s_add_u32 s4, s4, s3")
        a.i("s_lshl_b32 s4, s4, 8")
        a.i("s_add_u32 s4, s4, 0x%x" % STAMP)
        a.i("v_lshlrev_b32 v3, 2, v0")
        a.i("buffer_store_dword v%d, v3, %s, s4 offen" % (vSTAMP, s(sWS, 4)))
    a.label("L_end")
    a.i("s_endpgm")

    a.raw('.section .rodata,"a"')
    a.raw(".p2align 6")
    a.raw(".amdhsa_kernel " + NAME)
    a.raw("  .amdhsa_next_free_vgpr 128")
    a.raw("  .amdhsa_next_free_sgpr 102")
    a.raw("  .amdhsa_accum_offset 128")
    a.raw("  .amdhsa_group_segment_fixed_size 0")
    a.raw("  .amdhsa_kernarg_size 96")
    a.raw("  .amdhsa_user_sgpr_count 2")
    a.raw("  .amdhsa_user_sgpr_kernarg_segment_ptr 1")
    a.raw("  .amdhsa_system_sgpr_workgroup_id_x 1")
    a.raw(".end_amdhsa_kernel")
    return a.text()


if __name__ == "__main__":
    cfg = {}
    out = sys.argv[1]
    for kv in sys.argv[2:]:
        k, val = kv.split("=")
        cfg[k] = int(val, 0)
    open(out, "w").write(gen(cfg))
```

```python
import sys
from asmlib import Asm, v, s

NAME = "parallel_sum__gqa_block_cached__glu_gated_geglu__decode_kernel"

QP = 0x000000
GP = 0x080000
UP = 0x100000
OB1 = 0x200000
ST = 0x300000
MB = 0x380000
OB2 = 0x400000
STAMP = 0x800000
WS_SIZE = 0x1000000

DUMP = 0
QL = 512
HL = 2688
OL = 3712
SM = 4736
SL = 5248
FL = 5760
CNT = 6016
C_DMA, C_ORDY, C_PUB, C_QRDY, C_M, C_P1 = 0, 4, 8, 12, 16, 20
C_BC = 32
ROOT = 255
XN = 6144
R1 = 22656
ORED = 6144
TW = 75776
LDS_SIZE = TW + 65536

sX, sK, sV, sW1, sWT, sWS, sOUT, sDBG = 40, 44, 48, 52, 56, 60, 64, 68
sSELLO, sSELHI = 72, 73
sT = 74
sCH, sB, sKVH, sS, sCB, sKS = 78, 79, 80, 81, 82, 83
sW1OFF, sPITCH, sSPIN, sLOG2E = 84, 85, 86, 87
sMEV, sMOD, sMLO, sMHI = 88, 90, 92, 94
sK0, sCG, sSG = 96, 97, 98
sSCALE = 99
sDMA = 100
sMBX = 101

vOFFK, vOFFV = 1, 2
vST = 10
vSTAMP = 11
KV = 64


def gen(cfg):
    a = Asm()
    NT = " nt" if cfg.get("nt", 1) else ""
    NTW = " nt" if cfg.get("ntw", 1) else ""
    NTT = " nt" if cfg.get("ntt", 1) else ""
    diag = cfg.get("diag", 0)
    SPIN_G = cfg.get("spin_g", 1 << 17)
    SPIN_L = cfg.get("spin_l", 1 << 21)
    WD_MODE = cfg.get("wd", 2)
    WO_MODE = cfg.get("wo", 2)
    PF = cfg.get("pf", 1)
    PRIO = cfg.get("prio", 1)
    AMASK = 15 if diag == 2 else 31
    AOFF = 64 if diag == 2 else 0

    def prio(n):
        if PRIO:
            a.i("s_setprio %d" % n)

    def stamp(idx):
        if not diag:
            return
        a.i("s_memrealtime s[14:15]")
        a.i("s_waitcnt lgkmcnt(0)")
        a.i("v_writelane_b32 v%d, s14, %d" % (vSTAMP, idx))

    def srd(d, p, size, off_lo=None):
        if off_lo is None:
            a.i("s_mov_b32 s%d, s%d" % (d, p))
            a.i("s_and_b32 s%d, s%d, 0xffff" % (d + 1, p + 1))
        else:
            a.i("s_add_u32 s%d, s%d, s%d" % (d, p, off_lo))
            a.i("s_addc_u32 s%d, s%d, 0" % (d + 1, p + 1))
            a.i("s_and_b32 s%d, s%d, 0xffff" % (d + 1, d + 1))
        a.i("s_mov_b32 s%d, 0x%x" % (d + 2, size))
        a.i("s_mov_b32 s%d, 0x00020000" % (d + 3))

    def bf16_round_pair(dst, x0, x1):
        a.i("v_cvt_pk_bf16_f32 v%d, v%d, v%d" % (dst, x0, x1))

    def unpack_lo(dst, src):
        a.i("v_lshlrev_b32 v%d, 16, v%d" % (dst, src))

    def unpack_hi(dst, src):
        a.i("v_and_b32 v%d, 0xffff0000, v%d" % (dst, src))

    def allreduce_rows(op, x, tmp, do16=True, do32=True):
        if do16:
            a.i("v_mov_b32 v%d, v%d" % (tmp, x))
            a.i("v_permlane16_swap_b32 v%d, v%d" % (x, tmp))
            a.i("%s v%d, v%d, v%d" % (op, x, x, tmp))
        if do32:
            a.i("v_mov_b32 v%d, v%d" % (tmp, x))
            a.i("v_permlane32_swap_b32 v%d, v%d" % (x, tmp))
            a.i("%s v%d, v%d, v%d" % (op, x, x, tmp))

    def dpp_reduce16(op, x, n=4):
        pats = ["quad_perm:[1,0,3,2]", "quad_perm:[2,3,0,1]", "row_half_mirror", "row_mirror"]
        for p in pats[:n]:
            a.i("%s_dpp v%d, v%d, v%d %s row_mask:0xf bank_mask:0xf" % (op, x, x, x, p))

    def lds_spin(off, val, va, vd, sleep=1):
        l0, l1 = a.newlabel("L_sp"), a.newlabel("L_sp")
        a.i("v_mov_b32 v%d, %d" % (va, CNT))
        a.i("s_mov_b32 s%d, %d" % (sSPIN, SPIN_L))
        a.label(l0)
        a.i("ds_read_b32 v%d, v%d offset:%d" % (vd, va, off))
        a.i("s_waitcnt lgkmcnt(0)")
        a.i("v_cmp_ne_u32 vcc, %d, v%d" % (val, vd))
        a.br("s_cbranch_vccz %s" % l1)
        if sleep:
            a.i("s_sleep %d" % sleep)
        a.i("s_sub_u32 s%d, s%d, 1" % (sSPIN, sSPIN))
        a.i("s_cmp_lg_u32 s%d, 0" % sSPIN)
        a.br("s_cbranch_scc1 %s" % l0)
        a.label(l1)

    def lds_inc(off, va, vd):
        a.i("v_mov_b32 v%d, %d" % (va, CNT))
        a.i("v_mov_b32 v%d, 1" % vd)
        a.i("s_mov_b64 exec, 1")
        a.i("ds_add_u32 v%d, v%d offset:%d" % (va, vd, off))
        a.i("s_mov_b64 exec, -1")

    def vgather(loads, t0, t1, between=None):
        ltop, ldone = a.newlabel("L_vg"), a.newlabel("L_vg")
        for dst, ins in loads:
            for x in ins:
                a.i(x)
        if between:
            between()
        a.i("s_mov_b32 s%d, %d" % (sSPIN, SPIN_G))
        a.label(ltop)
        a.i("s_waitcnt vmcnt(0)")
        regs = [dst + e for dst, _ in loads for e in range(4)]
        a.i("v_max3_u32 v%d, v%d, v%d, v%d" % (t0, regs[0], regs[1], regs[2]))
        a.i("v_max3_u32 v%d, v%d, v%d, v%d" % (t1, regs[3], regs[4], regs[5]))
        k = 6
        while k + 4 <= len(regs):
            a.i("v_max3_u32 v%d, v%d, v%d, v%d" % (t0, t0, regs[k], regs[k + 1]))
            a.i("v_max3_u32 v%d, v%d, v%d, v%d" % (t1, t1, regs[k + 2], regs[k + 3]))
            k += 4
        assert len(regs) - k == 2
        a.i("v_max3_u32 v%d, v%d, v%d, v%d" % (t0, t0, regs[k], regs[k + 1]))
        a.i("v_max_u32 v%d, v%d, v%d" % (t0, t0, t1))
        a.i("v_cmp_eq_u32 vcc, -1, v%d" % t0)
        a.br("s_cbranch_vccz %s" % ldone)
        a.i("s_sub_u32 s%d, s%d, 1" % (sSPIN, sSPIN))
        a.i("s_cmp_eq_u32 s%d, 0" % sSPIN)
        a.br("s_cbranch_scc1 %s" % ldone)
        for dst, ins in loads:
            lsk = a.newlabel("L_vs")
            a.i("v_max3_u32 v%d, v%d, v%d, v%d" % (t0, dst, dst + 1, dst + 2))
            a.i("v_max_u32 v%d, v%d, v%d" % (t0, t0, dst + 3))
            a.i("v_cmp_eq_u32 vcc, -1, v%d" % t0)
            a.br("s_cbranch_vccz %s" % lsk)
            for x in ins:
                a.i(x)
            a.label(lsk)
        a.br("s_branch %s" % ltop)
        a.label(ldone)

    def pub_addr(vq, vg, t0, t1):
        a.i("v_and_b32 v%d, 15, v0" % t0)
        a.i("v_lshrrev_b32 v%d, 4, v0" % t1)
        a.i("v_lshlrev_b32 v%d, 14, v%d" % (vq, t1))
        a.i("v_lshl_add_u32 v%d, v%d, 4, v%d" % (vq, t0, vq))
        a.i("v_mul_u32_u24 v%d, 14336, v%d" % (vg, t1))
        a.i("v_lshl_add_u32 v%d, v%d, 4, v%d" % (vg, t0, vg))
        a.i("s_cmp_lt_u32 s2, 224")
        a.i("s_cselect_b32 s4, 0, 0x7ffffff0")
        a.i("v_or_b32 v%d, s4, v%d" % (vg, vg))
        a.i("s_lshl_b32 s4, s%d, 17" % sCB)
        a.i("s_lshl_b32 s5, s%d, 8" % sKS)
        a.i("s_add_u32 s4, s4, s5")
        a.i("s_add_u32 s4, s4, 0x%x" % QP)
        a.i("s_mul_i32 s5, s%d, %d" % (sSG, 8 * 14336))
        a.i("s_lshl_b32 s6, s%d, 8" % sCG)
        a.i("s_add_u32 s5, s5, s6")
        a.i("s_add_u32 s6, s5, 0x%x" % UP)
        a.i("s_add_u32 s5, s5, 0x%x" % GP)

    hdr = open("parallel_sum__gqa_block_cached__glu_gated_geglu__decode.s.ref").read().split("\n")
    for l in hdr:
        if l.startswith("; @launch"):
            break
        a.raw(l)
    a.raw("; @launch grid=(256,1,1) block=(1024,1,1) lds=%d" % LDS_SIZE)
    a.raw('.amdgcn_target "amdgcn-amd-amdhsa--gfx950"')
    a.raw(".text")
    a.raw(".globl " + NAME)
    a.raw(".p2align 8")
    a.raw(".type %s,@function" % NAME)
    a.raw(NAME + ":")

    a.i("s_cmp_ge_u32 s2, 256")
    a.i("s_cbranch_scc1 L_end")
    a.i("s_load_dwordx16 s[16:31], s[0:1], 0")
    a.i("s_load_dwordx8 s[32:39], s[0:1], 64")
    a.i("v_lshrrev_b32 v1, 6, v0")
    a.i("v_readfirstlane_b32 s3, v1")
    a.i("v_and_b32 v0, 63, v0")
    if cfg.get("pad", 0):
        a.i("s_memrealtime s[14:15]")
        a.i("s_waitcnt lgkmcnt(0)")
        a.i("v_mov_b32 v%d, s14" % vSTAMP)
    if diag:
        a.i("v_mov_b32 v%d, 0" % vSTAMP)
    if cfg.get("cmap", 0) == 0:
        a.i("s_and_b32 s4, s2, 31")
        a.i("s_lshr_b32 s%d, s2, 5" % sS)
    elif cfg["cmap"] == 1:
        a.i("s_lshr_b32 s4, s2, 3")
        a.i("s_and_b32 s%d, s2, 7" % sS)
    else:
        a.i("s_xor_b32 s4, s2, 1")
        a.i("s_and_b32 s4, s4, 31")
        a.i("s_lshr_b32 s%d, s2, 5" % sS)
    a.i("s_lshl_b32 s%d, s4, 3" % sCH)
    a.i("s_add_u32 s%d, s%d, s%d" % (sCH, sCH, sS))
    a.i("s_lshr_b32 s%d, s4, 2" % sB)
    a.i("s_and_b32 s%d, s4, 3" % sKVH)
    a.i("s_lshr_b32 s%d, s2, 6" % sCB)
    a.i("s_and_b32 s%d, s2, 63" % sKS)
    a.i("s_mul_i32 s%d, s2, 1171" % sSG)
    a.i("s_lshr_b32 s%d, s%d, 16" % (sSG, sSG))
    a.i("s_mul_i32 s5, s%d, 56" % sSG)
    a.i("s_sub_u32 s%d, s2, s5" % sCG)
    a.i("s_sub_u32 s8, s3, 4")
    a.i("s_lshr_b32 s9, s8, 2")
    a.i("s_and_b32 s10, s8, 3")
    a.i("s_movk_i32 s%d, 7168" % sPITCH)
    a.i("s_cmp_eq_u32 s9, 0")
    a.i("s_cselect_b32 s%d, 8192, s%d" % (sPITCH, sPITCH))
    a.i("s_cselect_b32 s11, s%d, s%d" % (sCB, sSG))
    a.i("s_cselect_b32 s12, s%d, s%d" % (sKS, sCG))
    a.i("s_lshl_b32 s%d, s11, 8" % sK0)
    a.i("s_lshl_b32 s13, s10, 6")
    a.i("s_add_u32 s%d, s%d, s13" % (sK0, sK0))
    a.i("s_mul_i32 s%d, s%d, s%d" % (sW1OFF, sK0, sPITCH))
    a.i("s_lshl_b32 s12, s12, 7")
    a.i("s_add_u32 s%d, s%d, s12" % (sW1OFF, sW1OFF))
    a.i("s_lshl_b32 s14, s%d, 18" % sCH)
    a.i("v_lshrrev_b32 v3, 4, v0")
    a.i("v_lshlrev_b32 v3, 3, v3")
    a.i("v_bfe_u32 v4, v0, 3, 1")
    a.i("v_lshl_add_u32 v3, v4, 5, v3")
    a.i("v_mul_lo_u32 v3, v3, s%d" % sPITCH)
    a.i("v_and_b32 v4, 7, v0")
    a.i("v_lshl_add_u32 v3, v4, 4, v3")
    a.i("v_lshrrev_b32 v5, 5, v0")
    a.i("v_lshlrev_b32 v5, 11, v5")
    a.i("v_and_b32 v4, 31, v0")
    a.i("v_lshl_add_u32 v5, v4, 4, v5")
    a.i("s_lshl_b32 s5, s3, 12")
    a.i("s_lshr_b32 s6, s2, 2")
    a.i("s_lshl_b32 s6, s6, 7")
    a.i("s_and_b32 s7, s2, 3")
    a.i("s_lshl_b32 s7, s7, 2")
    a.i("s_add_u32 s6, s6, s7")
    a.i("s_add_u32 s%d, s6, 0x%x" % (sMBX, MB))
    a.i("s_waitcnt lgkmcnt(0)")
    srd(sX, 16, 16384)
    srd(sWS, 38, WS_SIZE)
    a.i("s_cmp_eq_u32 s9, 1")
    a.i("s_cselect_b32 s%d, s28, s30" % sW1)
    a.i("s_cselect_b32 s%d, s29, s31" % (sW1 + 1))
    a.i("s_cmp_lt_u32 s2, 224")
    a.i("s_cselect_b32 s%d, 0x700000, 0" % (sW1 + 2))
    a.i("s_cmp_eq_u32 s9, 0")
    a.i("s_cselect_b32 s%d, s22, s%d" % (sW1, sW1))
    a.i("s_cselect_b32 s%d, s23, s%d" % (sW1 + 1, sW1 + 1))
    a.i("s_cselect_b32 s%d, 0x800000, s%d" % (sW1 + 2, sW1 + 2))
    a.i("s_and_b32 s%d, s%d, 0xffff" % (sW1 + 1, sW1 + 1))
    a.i("s_mov_b32 s%d, 0x00020000" % (sW1 + 3))
    a.i("s_cmp_lt_u32 s3, 4")
    a.br("s_cbranch_scc1 L_xload")
    a.i("s_mov_b32 s4, s%d" % sW1OFF)
    for j in range(8):
        a.i("buffer_load_dwordx4 %s, v3, %s, s4 offen%s" % (v(12 + 4 * j, 4), s(sW1, 4), NTW))
        if j < 7:
            a.i("s_add_u32 s4, s4, s%d" % sPITCH)
    a.br("s_branch L_pro2")
    a.label("L_xload")
    a.i("s_mov_b32 s13, s5")
    a.i("s_cmp_lg_u32 s3, 0")
    a.br("s_cbranch_scc1 L_xload2")
    prio(3)
    for k in range(4):
        a.i("v_mov_b32 v%d, -1" % (60 + k))
    pub_addr(6, 7, 3, 4)
    for u in range(2):
        a.i("s_add_u32 s7, s4, %d" % (u * 4 * 16384))
        a.i("buffer_store_dwordx4 v[60:63], v6, %s, s7 offen sc1" % s(sWS, 4))
        for sg in (5, 6):
            a.i("s_add_u32 s7, s%d, %d" % (sg, u * 4 * 14336))
            a.i("buffer_store_dwordx4 v[60:63], v7, %s, s7 offen sc1" % s(sWS, 4))
    a.i("v_mov_b32 v3, s%d" % sMBX)
    a.i("s_mov_b64 exec, 1")
    a.i("buffer_store_dword v60, v3, %s, 0 offen sc1" % s(sWS, 4))
    a.i("s_mov_b64 exec, -1")
    a.label("L_xload2")
    for u in range(4):
        a.i("buffer_load_dwordx4 %s, v5, %s, s13 offen offset:%d" % (v(12 + 4 * u, 4), s(sX, 4), u * 512))
    a.label("L_pro2")
    srd(sK, 18, 0x40000, off_lo=14)
    srd(sV, 20, 0x40000, off_lo=14)
    srd(sOUT, 34, 16384)
    srd(sDBG, 36, 256)
    a.i("s_mov_b32 s15, 0x700000")
    a.i("s_cmp_ge_u32 s3, 12")
    a.i("s_cselect_b32 s%d, s24, s32" % sWT)
    a.i("s_cselect_b32 s%d, s25, s33" % (sWT + 1))
    a.i("s_cselect_b32 s%d, 0x800000, s15" % (sWT + 2))
    a.i("s_cselect_b32 s%d, %d, %d" % (sDMA, WO_MODE, WD_MODE))
    a.i("s_and_b32 s%d, s%d, 0xffff" % (sWT + 1, sWT + 1))
    a.i("s_mov_b32 s%d, 0x00020000" % (sWT + 3))
    a.i("s_cmp_lt_u32 s3, 8")
    a.i("s_cselect_b32 s%d, 0, s%d" % (sDMA, sDMA))
    a.i("s_mov_b32 s%d, 0x05040100" % sSELLO)
    a.i("s_mov_b32 s%d, 0x07060302" % sSELHI)
    a.i("s_mov_b32 s%d, 0x3fb8aa3b" % sLOG2E)
    a.i("s_mov_b32 s%d, 0x3db504f3" % sSCALE)
    for r, m in ((sMEV, 0x55555555), (sMOD, 0xaaaaaaaa), (sMLO, 0x33333333), (sMHI, 0xcccccccc)):
        a.i("s_mov_b32 s%d, 0x%x" % (r, m))
        a.i("s_mov_b32 s%d, 0x%x" % (r + 1, m))
    a.i("v_lshlrev_b32 v%d, 4, v0" % vOFFV)
    a.i("v_bfe_u32 v3, v0, 2, 2")
    a.i("v_lshlrev_b32 v3, 8, v3")
    a.i("v_lshrrev_b32 v4, 4, v0")
    a.i("v_lshl_add_u32 v3, v4, 6, v3")
    a.i("v_and_b32 v4, 3, v0")
    a.i("v_lshl_add_u32 v%d, v4, 4, v3" % vOFFK)
    a.i("s_lshl_b32 s6, s%d, 7" % sCH)
    a.i("s_add_u32 s6, s6, 0x%x" % ST)
    a.i("v_lshlrev_b32 v%d, 3, v0" % vST)
    a.i("v_add_u32 v%d, s6, v%d" % (vST, vST))
    a.i("v_cmp_gt_u32 vcc, 8, v0")
    a.i("v_mov_b32 v5, 0x7ffffff0")
    a.i("v_cndmask_b32 v%d, v5, v%d, vcc" % (vST, vST))
    a.i("s_lshl_b32 s6, s3, 14")
    a.i("s_add_u32 s7, s3, s2")
    for t in range(4):
        a.i("s_add_u32 s8, s7, %d" % t)
        a.i("s_and_b32 s8, s8, 3")
        a.i("s_lshl_b32 s8, s8, 12")
        a.i("s_add_u32 s%d, s6, s8" % (sT + t))
    stamp(0)
    if diag == 1:
        a.i("s_getreg_b32 s14, hwreg(HW_REG_XCC_ID)")
        a.i("v_writelane_b32 v%d, s14, 40" % vSTAMP)

    def k_loads():
        for t in range(4):
            for r in range(4):
                a.i("buffer_load_dwordx4 %s, v%d, %s, s%d offen offset:%d%s" % (
                    v(KV + (t * 4 + r) * 4, 4), vOFFK, s(sK, 4), sT + t, r * 1024, NT))

    def v_loads():
        for t in range(4):
            for r in range(4):
                a.i("buffer_load_dwordx4 %s, v%d, %s, s%d offen offset:%d%s" % (
                    v(KV + (t * 4 + r) * 4, 4), vOFFV, s(sV, 4), sT + t, r * 1024, NT))

    def tw_dma():
        a.i("s_sub_u32 s4, s3, 8")
        a.i("s_and_b32 s5, s4, 1")
        a.i("s_lshr_b32 s6, s4, 1")
        a.i("s_and_b32 s7, s6, 1")
        a.i("s_movk_i32 s9, 16384")
        a.i("s_cmp_ge_u32 s3, 12")
        a.i("s_cselect_b32 s8, 64, 56")
        a.i("s_cselect_b32 s9, 4096, s9")
        a.i("s_mul_i32 s8, s8, s%d" % sKS)
        a.i("s_lshl_b32 s10, s7, 5")
        a.i("s_add_u32 s8, s8, s10")
        a.i("s_lshl_b32 s8, s8, 11")
        a.i("s_lshl_b32 s10, s%d, 9" % sCB)
        a.i("s_add_u32 s8, s8, s10")
        a.i("s_lshl_b32 s10, s5, 8")
        a.i("s_add_u32 s8, s8, s10")
        a.i("s_cmp_eq_u32 s6, 1")
        a.i("s_cselect_b32 s10, 2, 3")
        a.i("v_lshrrev_b32 v3, 4, v0")
        a.i("v_min_u32 v3, s10, v3")
        a.i("v_mul_lo_u32 v3, v3, s9")
        a.i("v_and_b32 v8, 15, v0")
        a.i("v_lshl_add_u32 v3, v8, 4, v3")
        a.i("s_lshl_b32 s10, s5, 2")
        a.i("s_add_u32 s10, s10, s6")
        a.i("s_lshl_b32 s10, s10, 13")
        a.i("s_add_u32 s10, s10, %d" % TW)
        for j in range(8):
            jr_wd = j * 2048
            jr_wo = (8 * (j & 3) + (j >> 2)) * 2048
            a.i("s_mov_b32 s11, %d" % jr_wd)
            a.i("s_cmp_ge_u32 s3, 12")
            a.i("s_cselect_b32 s11, %d, s11" % jr_wo)
            a.i("s_add_u32 s11, s11, s8")
            a.i("s_add_u32 m0, s10, %d" % (j * 1024))
            a.i("buffer_load_dwordx4 v3, %s, s11 offen%s lds" % (s(sWT, 4), NTT))

    a.i("s_cmp_ge_u32 s3, 4")
    a.br("s_cbranch_scc1 L_bar1")
    a.i("s_cmp_eq_u32 s3, 0")
    a.br("s_cbranch_scc1 L_comm_clear")
    NPF = cfg.get("npf", 6)
    if PF:
        a.i("s_cmp_lg_u32 s3, 1")
        a.br("s_cbranch_scc1 L_nopf")
        a.i("s_getpc_b64 s[6:7]")
        a.label("L_pc")
        a.i("v_lshlrev_b32 v3, 6, v0")
        for k in range(NPF):
            a.i("v_min_u32 v4, L_end-L_pc, v3")
            a.i("global_load_dword v%d, v4, s[6:7]" % (60 + (k & 3)))
            if k < NPF - 1:
                a.i("v_add_u32 v3, 4096, v3")
        a.i("s_waitcnt vmcnt(%d)" % NPF)
        a.br("s_branch L_ln")
        a.label("L_nopf")
    PT = cfg.get("pt", 0)
    if PT:
        a.i("s_cmp_lg_u32 s3, 2")
        a.br("s_cbranch_scc1 L_pt3")
        a.i("v_lshlrev_b32 v3, %d, v0" % (12 if PT == 1 else 16))
        a.i("buffer_load_dword v60, v3, %s, 0 offen" % s(sV, 4))
        a.i("buffer_load_dword v61, v3, %s, 0 offen" % s(sOUT, 4))
        a.i("s_waitcnt vmcnt(2)")
        a.br("s_branch L_ln")
        a.label("L_pt3")
        a.i("s_cmp_lg_u32 s3, 3")
        a.br("s_cbranch_scc1 L_pt4")
        srd(4, 24, 0x800000)
        srd(8, 32, 0x700000)
        if PT == 1:
            a.i("v_lshrrev_b32 v3, 1, v0")
            a.i("v_lshlrev_b32 v3, 12, v3")
        else:
            a.i("v_lshrrev_b32 v3, 5, v0")
            a.i("v_lshlrev_b32 v3, 16, v3")
        a.i("s_lshl_b32 s12, s%d, 17" % sKS)
        a.i("s_lshl_b32 s13, s%d, 9" % sCB)
        a.i("s_add_u32 s12, s12, s13")
        a.i("v_add_u32 v4, s12, v3")
        a.i("buffer_load_dword v60, v4, s[4:7], 0 offen")
        a.i("s_mul_i32 s12, s%d, %d" % (sKS, 56 * 2048))
        a.i("s_add_u32 s12, s12, s13")
        a.i("v_add_u32 v4, s12, v3")
        a.i("buffer_load_dword v61, v4, s[8:11], 0 offen")
        a.i("s_waitcnt vmcnt(2)")
        a.br("s_branch L_ln")
        a.label("L_pt4")
    a.i("s_waitcnt vmcnt(0)")
    a.br("s_branch L_ln")
    a.label("L_comm_clear")
    a.i("s_lshl_b32 s6, s%d, 12" % sCH)
    a.i("s_add_u32 s6, s6, 0x%x" % OB1)
    for k in range(4):
        a.i("buffer_store_dwordx4 v[60:63], v%d, %s, s6 offen offset:%d sc1" % (vOFFV, s(sWS, 4), k * 1024))
    a.i("s_lshl_b32 s6, s2, 13")
    a.i("s_add_u32 s6, s6, 0x%x" % OB2)
    for k in range(4):
        a.i("buffer_store_dwordx4 v[60:63], v%d, %s, s6 offen offset:%d sc1" % (vOFFV, s(sWS, 4), k * 1024))
    a.i("s_add_u32 s6, s6, 4096")
    for k in range(4):
        a.i("buffer_store_dwordx4 v[60:63], v%d, %s, s6 offen offset:%d sc1" % (vOFFV, s(sWS, 4), k * 1024))
    a.i("buffer_store_dwordx2 v[60:61], v%d, %s, 0 offen sc1" % (vST, s(sWS, 4)))
    a.i("v_mov_b32 v5, %d" % CNT)
    for k in range(4):
        a.i("v_mov_b32 v%d, 0" % (6 + k))
    a.i("ds_write_b128 v5, v[6:9]")
    a.i("ds_write_b128 v5, v[6:9] offset:16")
    a.i("ds_write_b128 v5, v[6:9] offset:32")
    a.i("s_and_b32 s6, s2, %d" % AMASK)
    a.i("s_lshl_b32 s6, s6, 2")
    a.i("v_mov_b32 v3, s6")
    a.i("v_mov_b32 v4, 1")
    a.i("s_waitcnt vmcnt(13)")
    a.i("s_mov_b64 exec, 1")
    a.i("buffer_atomic_add v4, v3, %s, 0 offen offset:%d sc1" % (s(sDBG, 4), AOFF))
    a.i("s_mov_b64 exec, -1")
    stamp(14)

    a.label("L_ln")
    for k in range(16):
        unpack_lo(28 + 2 * k, 12 + k)
        unpack_hi(29 + 2 * k, 12 + k)
    a.i("v_add_f32 v4, v28, v29")
    a.i("v_add_f32 v5, v30, v31")
    for k in range(4, 32, 2):
        a.i("v_add_f32 v4, v4, v%d" % (28 + k))
        a.i("v_add_f32 v5, v5, v%d" % (29 + k))
    a.i("v_add_f32 v4, v4, v5")
    dpp_reduce16("v_add_f32", 4)
    allreduce_rows("v_add_f32", 4, 5, do32=False)
    a.i("v_mul_f32 v4, 0x3a800000, v4")
    a.i("v_mov_b32 v6, 0")
    a.i("v_mov_b32 v7, 0")
    for k in range(0, 32, 2):
        a.i("v_sub_f32 v8, v%d, v4" % (28 + k))
        a.i("v_sub_f32 v9, v%d, v4" % (29 + k))
        a.i("v_fmac_f32 v6, v8, v8")
        a.i("v_fmac_f32 v7, v9, v9")
    a.i("v_add_f32 v6, v6, v7")
    dpp_reduce16("v_add_f32", 6)
    allreduce_rows("v_add_f32", 6, 7, do32=False)
    a.i("v_mul_f32 v6, 0x3a800000, v6")
    bf16_round_pair(5, 4, 6)
    unpack_lo(4, 5)
    unpack_hi(6, 5)
    a.i("v_add_f32 v6, 0x3727c5ac, v6")
    bf16_round_pair(6, 6, 6)
    unpack_lo(6, 6)
    a.i("v_sqrt_f32 v6, v6")
    bf16_round_pair(6, 6, 6)
    unpack_lo(6, 6)
    a.i("v_rcp_f32 v6, v6")
    for k in range(16):
        a.i("v_sub_f32 v8, v%d, v4" % (28 + 2 * k))
        a.i("v_sub_f32 v9, v%d, v4" % (29 + 2 * k))
        bf16_round_pair(8, 8, 9)
        unpack_hi(9, 8)
        unpack_lo(8, 8)
        a.i("v_mul_f32 v8, v8, v6")
        a.i("v_mul_f32 v9, v9, v6")
        bf16_round_pair(12 + k, 8, 9)
    a.i("v_lshrrev_b32 v4, 5, v0")
    a.i("s_lshl_b32 s5, s3, 1")
    a.i("v_add_u32 v4, s5, v4")
    a.i("v_mul_u32_u24 v4, 2064, v4")
    a.i("v_and_b32 v5, 31, v0")
    a.i("v_lshl_add_u32 v4, v5, 4, v4")
    for u in range(4):
        a.i("ds_write_b128 v4, %s offset:%d" % (v(12 + 4 * u, 4), XN + u * 512))
    a.i("s_waitcnt lgkmcnt(0)")

    a.label("L_bar1")
    a.i("s_barrier")
    stamp(1)
    a.i("s_cmp_eq_u32 s3, 0")
    a.br("s_cbranch_scc1 L_comm")
    a.i("s_cmp_lt_u32 s3, 4")
    a.br("s_cbranch_scc1 L_kload")
    a.i("v_and_b32 v3, 7, v0")
    a.i("v_mul_u32_u24 v3, 2064, v3")
    a.i("v_bfe_u32 v4, v0, 3, 1")
    a.i("v_lshl_add_u32 v3, v4, 6, v3")
    a.i("v_lshrrev_b32 v5, 4, v0")
    a.i("v_lshl_add_u32 v3, v5, 4, v3")
    a.i("s_lshl_b32 s4, s%d, 1" % sK0)
    a.i("s_and_b32 s4, s4, 2047")
    a.i("v_add_u32 v3, s4, v3")
    a.i("ds_read_b128 v[44:47], v3 offset:%d" % XN)
    a.i("v_lshrrev_b32 v6, 5, v0")
    a.i("s_lshl_b32 s5, s3, 1")
    a.i("s_sub_u32 s5, s5, 8")
    a.i("v_add_u32 v7, s5, v6")
    a.i("v_mul_u32_u24 v7, 2176, v7")
    a.i("v_and_b32 v8, 7, v0")
    a.i("v_mul_u32_u24 v8, 272, v8")
    a.i("v_add_u32 v7, v7, v8")
    a.i("v_bfe_u32 v8, v0, 4, 1")
    a.i("v_lshl_add_u32 v7, v8, 7, v7")
    a.i("v_add_u32 v7, %d, v7" % R1)
    a.i("v_cmp_eq_u32 vcc, v4, v6")
    a.i("v_mov_b32 v8, %d" % DUMP)
    a.i("v_cndmask_b32 v7, v8, v7, vcc")
    a.i("s_waitcnt vmcnt(0) lgkmcnt(0)")
    stamp(2)
    for q in range(4):
        A0 = KV + q * 16
        for p in range(4):
            a.i("v_perm_b32 v%d, v%d, v%d, s%d" % (A0 + p, 12 + (2 * p + 1) * 4 + q, 12 + (2 * p) * 4 + q, sSELLO))
        for p in range(4):
            a.i("v_perm_b32 v%d, v%d, v%d, s%d" % (A0 + 4 + p, 12 + (2 * p + 1) * 4 + q, 12 + (2 * p) * 4 + q, sSELHI))
        a.i("v_mfma_f32_16x16x32_bf16 %s, %s, v[44:47], 0" % (v(A0 + 8, 4), v(A0, 4)))
        a.i("v_mfma_f32_16x16x32_bf16 %s, %s, v[44:47], 0" % (v(A0 + 12, 4), v(A0 + 4, 4)))
    for q in range(4):
        A0 = KV + q * 16
        for r in range(4):
            a.i("ds_write2_b32 v7, v%d, v%d offset0:%d offset1:%d" % (A0 + 8 + r, A0 + 12 + r, 8 * r + 2 * q, 8 * r + 2 * q + 1))
    a.i("s_waitcnt lgkmcnt(0)")
    a.i("s_sub_u32 s8, s3, 4")
    a.i("s_lshr_b32 s9, s8, 2")
    a.i("s_lshl_b32 s8, s9, 2")
    a.i("s_add_u32 s8, s8, %d" % (CNT + C_P1))
    a.i("v_mov_b32 v3, s8")
    a.i("v_mov_b32 v4, 1")
    a.i("s_mov_b64 exec, 1")
    a.i("ds_add_rtn_u32 v5, v3, v4")
    a.i("s_mov_b64 exec, -1")
    a.i("s_waitcnt lgkmcnt(0)")
    a.i("v_readfirstlane_b32 s8, v5")
    a.i("s_cmp_lg_u32 s8, 3")
    a.br("s_cbranch_scc1 L_waitpub")
    prio(3)
    a.i("v_lshrrev_b32 v3, 4, v0")
    a.i("v_mul_u32_u24 v3, 272, v3")
    a.i("v_and_b32 v4, 15, v0")
    a.i("v_lshl_add_u32 v3, v4, 4, v3")
    a.i("s_mul_i32 s8, s9, %d" % (8 * 2176))
    a.i("s_add_u32 s8, s8, %d" % R1)
    a.i("v_add_u32 v3, s8, v3")
    for u in range(2):
        base = KV + u * 32
        for c in range(8):
            a.i("ds_read_b128 %s, v3 offset:%d" % (v(base + 4 * c, 4), c * 2176 + u * 4 * 272))
    pub_addr(6, 7, 4, 5)
    a.i("s_cmp_eq_u32 s9, 1")
    a.i("s_cselect_b32 s5, s5, s6")
    a.i("s_movk_i32 s10, %d" % (14336 * 2))
    a.i("s_cmp_eq_u32 s9, 0")
    a.i("s_cselect_b32 s4, s4, s5")
    a.i("s_cselect_b32 s10, 0x8000, s10")
    a.i("s_cselect_b64 vcc, -1, 0")
    a.i("s_lshl_b32 s10, s10, 1")
    a.i("v_cndmask_b32 v6, v7, v6, vcc")
    for u in range(2):
        base = KV + u * 32
        sb = 12 + u * 4
        a.i("s_waitcnt lgkmcnt(%d)" % (8 if u == 0 else 0))
        for c in (0, 2, 4, 6):
            for e in range(4):
                a.i("v_add_f32 v%d, v%d, v%d" % (base + 4 * c + e, base + 4 * c + e, base + 4 * c + 4 + e))
        for c in (0, 4):
            for e in range(4):
                a.i("v_add_f32 v%d, v%d, v%d" % (base + 4 * c + e, base + 4 * c + e, base + 4 * c + 8 + e))
        for e in range(4):
            a.i("v_add_f32 v%d, v%d, v%d" % (sb + e, base + e, base + 16 + e))
        for e in range(4):
            a.i("v_min_u32 v%d, -2, v%d" % (sb + e, sb + e))
        a.i("buffer_store_dwordx4 %s, v6, %s, s4 offen sc1" % (v(sb, 4), s(sWS, 4)))
        if u == 0:
            a.i("s_add_u32 s4, s4, s10")
    lds_inc(C_PUB, 3, 4)
    stamp(15)
    a.label("L_waitpub")
    if cfg.get("hold", 1):
        lds_spin(C_PUB, 3, 3, 4, sleep=1)
    a.label("L_kload")
    a.i("s_cmp_lg_u32 s2, %d" % ROOT)
    a.br("s_cbranch_scc1 L_kload2")
    lds_spin(C_BC, 1, 3, 4, sleep=1)
    a.label("L_kload2")
    prio(1)
    k_loads()
    prio(0)
    a.i("s_cmp_lg_u32 s%d, 1" % sDMA)
    a.br("s_cbranch_scc1 L_noearly")
    tw_dma()
    a.label("L_noearly")
    stamp(3)
    lds_spin(C_QRDY, 1, 3, 4, sleep=2)
    a.br("s_branch L_kpass")

    def root_bcast(off, val, tag):
        a.i("v_and_b32 v3, %d, v0" % AMASK)
        a.i("v_lshlrev_b32 v3, 2, v3")
        a.i("s_mov_b32 s%d, %d" % (sSPIN, SPIN_G))
        a.label(tag + "_p")
        a.i("buffer_load_dword v4, v3, %s, 0 offen offset:%d sc1" % (s(sDBG, 4), off))
        a.i("s_waitcnt vmcnt(0)")
        a.i("v_cmp_ne_u32 vcc, %d, v4" % (256 // (AMASK + 1)))
        a.br("s_cbranch_vccz %s_d" % tag)
        a.i("s_sleep 2")
        a.i("s_sub_u32 s%d, s%d, 1" % (sSPIN, sSPIN))
        a.i("s_cmp_lg_u32 s%d, 0" % sSPIN)
        a.br("s_cbranch_scc1 %s_p" % tag)
        a.label(tag + "_d")
        for k in range(4):
            a.i("v_mov_b32 v%d, %d" % (60 + k, val))
        a.i("v_lshlrev_b32 v3, 7, v0")
        a.i("s_mov_b32 s4, 0x%x" % MB)
        a.i("buffer_store_dwordx4 v[60:63], v3, %s, s4 offen sc1" % s(sWS, 4))

    def mbox_wait(minval, tag):
        a.i("v_mov_b32 v3, s%d" % sMBX)
        a.i("s_mov_b32 s%d, %d" % (sSPIN, SPIN_G))
        a.label(tag + "_p")
        a.i("buffer_load_dword v4, v3, %s, 0 offen sc1" % s(sWS, 4))
        a.i("s_waitcnt vmcnt(0)")
        a.i("v_subrev_u32 v4, %d, v4" % minval)
        a.i("v_cmp_lt_u32 vcc, %d, v4" % (2 - minval))
        a.br("s_cbranch_vccz %s_d" % tag)
        a.i("s_sleep 2")
        a.i("s_sub_u32 s%d, s%d, 1" % (sSPIN, sSPIN))
        a.i("s_cmp_lg_u32 s%d, 0" % sSPIN)
        a.br("s_cbranch_scc1 %s_p" % tag)
        a.label(tag + "_d")

    a.label("L_comm")
    a.i("s_cmp_lg_u32 s2, %d" % ROOT)
    a.br("s_cbranch_scc1 L_notroot")
    root_bcast(AOFF, 1, "L_rba")
    lds_inc(C_BC, 3, 4)
    a.br("s_branch L_poll1_done")
    a.label("L_notroot")
    mbox_wait(1, "L_mba")
    a.label("L_poll1_done")
    stamp(16)
    a.i("s_and_b32 s6, s2, %d" % AMASK)
    a.i("s_lshl_b32 s6, s6, 2")
    a.i("v_mov_b32 v3, s6")
    a.i("v_mov_b32 v4, 1")
    a.i("s_waitcnt vmcnt(1)")
    a.i("s_mov_b64 exec, 1")
    a.i("buffer_atomic_add v4, v3, %s, 0 offen offset:128 sc1" % s(sDBG, 4))
    a.i("s_mov_b64 exec, -1")
    stamp(3)
    lds_spin(C_PUB, 3, 3, 4, sleep=1)
    stamp(4)
    a.i("s_lshl_b32 s4, s%d, 14" % sB)
    a.i("s_lshl_b32 s5, s%d, 12" % sKVH)
    a.i("s_add_u32 s4, s4, s5")
    a.i("s_add_u32 s4, s4, 0x%x" % QP)
    for sp in range(1, 4):
        a.i("s_add_u32 s%d, s4, %d" % (4 + sp, sp * 8 * 16384))
    vgather([(KV + (sp * 4 + u) * 4, ["buffer_load_dwordx4 %s, v%d, %s, s%d offen offset:%d sc1" % (
        v(KV + (sp * 4 + u) * 4, 4), vOFFV, s(sWS, 4), 4 + sp, u * 1024)]) for sp in range(4) for u in range(4)], 5, 6)
    a.i("v_lshrrev_b32 v3, 5, v0")
    a.i("v_mul_u32_u24 v3, 272, v3")
    a.i("v_and_b32 v4, 31, v0")
    a.i("v_lshl_add_u32 v3, v4, 3, v3")
    for u in range(4):
        for e in range(4):
            r0 = KV + u * 4 + e
            a.i("v_add_f32 v%d, v%d, v%d" % (r0, r0, r0 + 16))
            a.i("v_add_f32 v%d, v%d, v%d" % (r0 + 32, r0 + 32, r0 + 48))
            a.i("v_add_f32 v%d, v%d, v%d" % (r0, r0, r0 + 32))
        bf16_round_pair(12 + 2 * u, KV + u * 4, KV + u * 4 + 1)
        bf16_round_pair(13 + 2 * u, KV + u * 4 + 2, KV + u * 4 + 3)
        a.i("ds_write_b64 v3, %s offset:%d" % (v(12 + 2 * u, 2), QL + u * 544))
    a.i("v_mov_b32 v8, %d" % CNT)
    a.i("v_mov_b32 v9, 1")
    a.i("s_waitcnt lgkmcnt(0)")
    a.i("ds_write_b32 v8, v9 offset:%d" % C_QRDY)
    stamp(5)
    a.i("v_and_b32 v3, 7, v0")
    a.i("v_mul_u32_u24 v3, 14336, v3")
    a.i("v_bfe_u32 v4, v0, 3, 1")
    a.i("v_lshl_add_u32 v3, v4, 7, v3")
    a.i("v_lshrrev_b32 v5, 4, v0")
    a.i("v_lshl_add_u32 v3, v5, 5, v3")
    a.i("v_cmp_le_u32 vcc, 56, v0")
    a.i("v_mov_b32 v6, 0x7ffffff0")
    a.i("v_cndmask_b32 v3, v3, v6, vcc")
    a.i("s_mul_i32 s4, s%d, 224" % sKS)
    a.i("s_add_u32 s8, s4, 0x%x" % UP)
    a.i("s_add_u32 s4, s4, 0x%x" % GP)
    for sp in range(1, 4):
        a.i("s_add_u32 s%d, s4, %d" % (4 + sp, sp * 8 * 14336))
        a.i("s_add_u32 s%d, s8, %d" % (8 + sp, sp * 8 * 14336))
    lds = []
    for sp in range(4):
        for hf in range(2):
            for m in range(2):
                d = KV + m * 32 + (sp * 2 + hf) * 4
                lds.append((d, ["buffer_load_dwordx4 %s, v3, %s, s%d offen offset:%d sc1" % (v(d, 4), s(sWS, 4), 4 + 4 * m + sp, hf * 16)]))
    vgather(lds, 6, 7)
    a.i("s_cmp_lg_u32 s2, %d" % ROOT)
    a.br("s_cbranch_scc1 L_notroot2")
    a.i("v_mov_b32 v8, v4")
    root_bcast(128, 2, "L_rbb")
    a.i("v_mov_b32 v4, v8")
    a.label("L_notroot2")
    G0, U0 = 28, 36
    for m, dst in ((0, G0), (1, U0)):
        for e in range(8):
            r0 = KV + m * 32 + e
            a.i("v_add_f32 v%d, v%d, v%d" % (r0, r0, r0 + 8))
            a.i("v_add_f32 v%d, v%d, v%d" % (r0 + 16, r0 + 16, r0 + 24))
            a.i("v_add_f32 v%d, v%d, v%d" % (dst + e, r0, r0 + 16))
    k_loads()
    a.i("s_mov_b32 s4, 0x3d372713")
    a.i("s_mov_b32 s5, 0xc0135761")
    for e in range(0, 8, 2):
        g0, g1, u0, u1 = G0 + e, G0 + e + 1, U0 + e, U0 + 1 + e
        bf16_round_pair(12, g0, g1)
        bf16_round_pair(13, u0, u1)
        unpack_lo(g0, 12)
        unpack_hi(g1, 12)
        unpack_lo(u0, 13)
        unpack_hi(u1, 13)
        for gg, tt in ((g0, 14), (g1, 15)):
            a.i("v_mul_f32 v%d, v%d, v%d" % (tt, gg, gg))
            a.i("v_mul_f32 v%d, s4, v%d" % (tt, tt))
            a.i("v_fma_f32 v%d, v%d, v%d, v%d" % (tt, tt, gg, gg))
            a.i("v_mul_f32 v%d, s5, v%d" % (tt, tt))
            a.i("v_exp_f32 v%d, v%d" % (tt, tt))
            a.i("v_add_f32 v%d, 1.0, v%d" % (tt, tt))
            a.i("v_rcp_f32 v%d, v%d" % (tt, tt))
            a.i("v_mul_f32 v%d, v%d, v%d" % (tt, tt, gg))
        bf16_round_pair(14, 14, 15)
        unpack_hi(15, 14)
        unpack_lo(14, 14)
        a.i("v_mul_f32 v14, v14, v%d" % u0)
        a.i("v_mul_f32 v15, v15, v%d" % u1)
        bf16_round_pair(16 + e // 2, 14, 15)
    a.i("v_and_b32 v3, 7, v0")
    a.i("v_lshlrev_b32 v3, 6, v3")
    a.i("v_lshl_add_u32 v3, v4, 9, v3")
    a.i("v_lshl_add_u32 v3, v5, 4, v3")
    a.i("ds_write_b128 v3, v[16:19] offset:%d" % HL)
    prio(0)

    a.label("L_kpass")
    stamp(6)
    Q, S, T, Y0 = 12, 28, 44, 60
    a.i("v_and_b32 v3, 7, v0")
    a.i("v_mul_u32_u24 v3, 272, v3")
    a.i("v_lshrrev_b32 v4, 4, v0")
    a.i("v_lshl_add_u32 v3, v4, 6, v3")
    for j in range(4):
        a.i("ds_read_b128 %s, v3 offset:%d" % (v(Q + 4 * j, 4), QL + j * 16))
    DPPA = "quad_perm:[1,0,3,2] row_mask:0xf bank_mask:0xf"
    DPPB = "quad_perm:[2,3,0,1] row_mask:0xf bank_mask:0xf"

    def dma_wait(n, mode):
        if WD_MODE != mode and WO_MODE != mode:
            a.i("s_waitcnt vmcnt(%d)" % n)
            return
        l1, l2 = a.newlabel("L_w"), a.newlabel("L_w")
        a.i("s_cmp_eq_u32 s%d, %d" % (sDMA, mode))
        a.br("s_cbranch_scc1 %s" % l1)
        a.i("s_waitcnt vmcnt(%d)" % n)
        a.label(l1)
        a.i("s_waitcnt vmcnt(%d)" % (n + 8))

    for t in range(4):
        X = KV + t * 16
        dma_wait(12 - 4 * t, 1)
        a.i("s_mov_b64 vcc, s[%d:%d]" % (sMEV, sMEV + 1))
        for pr in (0, 2):
            for e in range(4):
                a.i("v_cndmask_b32_dpp v%d, v%d, v%d, vcc %s" % (T + pr * 4 + e, X + (pr + 1) * 4 + e, X + pr * 4 + e, DPPA))
        a.i("s_mov_b64 vcc, s[%d:%d]" % (sMOD, sMOD + 1))
        for pr in (0, 2):
            for e in range(4):
                a.i("v_cndmask_b32_dpp v%d, v%d, v%d, vcc %s" % (T + (pr + 1) * 4 + e, X + pr * 4 + e, X + (pr + 1) * 4 + e, DPPA))
        a.i("s_mov_b64 vcc, s[%d:%d]" % (sMLO, sMLO + 1))
        for e in range(4):
            a.i("v_cndmask_b32_dpp v%d, v%d, v%d, vcc %s" % (X + e, T + 8 + e, T + e, DPPB))
        for e in range(4):
            a.i("v_cndmask_b32_dpp v%d, v%d, v%d, vcc %s" % (X + 4 + e, T + 12 + e, T + 4 + e, DPPB))
        a.i("s_mov_b64 vcc, s[%d:%d]" % (sMHI, sMHI + 1))
        for e in range(4):
            a.i("v_cndmask_b32_dpp v%d, v%d, v%d, vcc %s" % (X + 8 + e, T + e, T + 8 + e, DPPB))
        for e in range(4):
            a.i("v_cndmask_b32_dpp v%d, v%d, v%d, vcc %s" % (X + 12 + e, T + 4 + e, T + 12 + e, DPPB))
        if t == 0:
            a.i("s_waitcnt lgkmcnt(0)")
        for j in range(4):
            a.i("v_mfma_f32_16x16x32_bf16 %s, %s, %s, %s" % (
                v(S + 4 * t, 4), v(X + 4 * j, 4), v(Q + 4 * j, 4), "0" if j == 0 else v(S + 4 * t, 4)))

    for k in range(0, 16, 2):
        bf16_round_pair(44, S + k, S + k + 1)
        unpack_lo(S + k, 44)
        unpack_hi(S + k + 1, 44)
        a.i("v_mul_f32 v%d, s%d, v%d" % (S + k, sSCALE, S + k))
        a.i("v_mul_f32 v%d, s%d, v%d" % (S + k + 1, sSCALE, S + k + 1))
        bf16_round_pair(44, S + k, S + k + 1)
        unpack_lo(S + k, 44)
        unpack_hi(S + k + 1, 44)
    a.i("v_max3_f32 v4, v%d, v%d, v%d" % (S, S + 1, S + 2))
    for k in range(3, 15, 2):
        a.i("v_max3_f32 v4, v4, v%d, v%d" % (S + k, S + k + 1))
    a.i("v_max_f32 v4, v4, v%d" % (S + 15))
    allreduce_rows("v_max_f32", 4, 5)
    a.i("v_mul_f32 v6, s%d, v4" % sLOG2E)
    for k in range(16):
        a.i("v_fma_f32 v%d, v%d, s%d, -v6" % (S + k, S + k, sLOG2E))
    for k in range(16):
        a.i("v_exp_f32 v%d, v%d" % (S + k, S + k))
    a.i("v_add_f32 v5, v%d, v%d" % (S, S + 1))
    a.i("v_add_f32 v7, v%d, v%d" % (S + 2, S + 3))
    for k in range(4, 16, 2):
        a.i("v_add_f32 v5, v5, v%d" % (S + k))
        a.i("v_add_f32 v7, v7, v%d" % (S + k + 1))
    a.i("v_add_f32 v5, v5, v7")
    allreduce_rows("v_add_f32", 5, 7)
    a.i("v_and_b32 v3, 7, v0")
    a.i("v_lshlrev_b32 v3, 6, v3")
    a.i("s_lshl_b32 s4, s3, 2")
    a.i("v_add_u32 v7, s4, v3")
    a.i("ds_write_b32 v7, v4 offset:%d" % SM)
    a.i("ds_write_b32 v7, v5 offset:%d" % SL)
    a.i("v_lshrrev_b32 v8, 4, v0")
    a.i("v_lshl_add_u32 v9, v8, 4, v3")
    lds_inc(C_M, 4, 5)
    stamp(7)
    v_loads()
    a.i("s_cmp_lg_u32 s%d, 2" % sDMA)
    a.br("s_cbranch_scc1 L_nolate")
    tw_dma()
    a.label("L_nolate")
    stamp(8)
    lds_spin(C_M, 16, 4, 5, sleep=1)
    a.i("ds_read_b128 v[44:47], v9 offset:%d" % SM)
    a.i("ds_read_b128 v[48:51], v9 offset:%d" % SL)
    a.i("s_waitcnt lgkmcnt(0)")
    a.i("v_max3_f32 v7, v44, v45, v46")
    a.i("v_max_f32 v7, v7, v47")
    allreduce_rows("v_max_f32", 7, 8)
    a.i("v_mul_f32 v8, s%d, v7" % sLOG2E)
    a.i("v_sub_f32 v9, v6, v8")
    a.i("v_exp_f32 v9, v9")
    for k in range(16):
        a.i("v_mul_f32 v%d, v9, v%d" % (S + k, S + k))
    for p in range(8):
        bf16_round_pair(S + p, S + 2 * p, S + 2 * p + 1)
    P = S
    for k in range(4):
        a.i("v_fma_f32 v%d, v%d, s%d, -v8" % (44 + k, 44 + k, sLOG2E))
    for k in range(4):
        a.i("v_exp_f32 v%d, v%d" % (44 + k, 44 + k))
    a.i("v_mul_f32 v52, v44, v48")
    for k in range(1, 4):
        a.i("v_fmac_f32 v52, v%d, v%d" % (44 + k, 48 + k))
    allreduce_rows("v_add_f32", 52, 53)
    a.i("v_min_u32 v60, -2, v7")
    a.i("v_min_u32 v61, -2, v52")

    D = [12, 16, 20, 24, 44, 48, 52, 56]
    PT = 36

    def pv_step(u):
        for q in range(4):
            for p in range(4):
                a.i("v_perm_b32 v%d, v%d, v%d, s%d" % (PT + p, KV + (8 * u + 2 * p + 1) * 4 + q, KV + (8 * u + 2 * p) * 4 + q, sSELLO))
            for p in range(4):
                a.i("v_perm_b32 v%d, v%d, v%d, s%d" % (PT + 4 + p, KV + (8 * u + 2 * p + 1) * 4 + q, KV + (8 * u + 2 * p) * 4 + q, sSELHI))
            for h in range(2):
                i = 2 * q + h
                a.i("v_mfma_f32_16x16x32_bf16 %s, %s, %s, %s" % (
                    v(D[i], 4), v(PT + 4 * h, 4), v(P + 4 * u, 4), "0" if u == 0 else v(D[i], 4)))

    a.i("v_and_b32 v3, 15, v0")
    a.i("v_mul_u32_u24 v4, 528, v3")
    a.i("v_lshrrev_b32 v5, 4, v0")
    a.i("v_lshl_add_u32 v4, v5, 7, v4")
    a.i("s_mul_i32 s4, s3, 4224")
    a.i("s_add_u32 s4, s4, %d" % ORED)
    a.i("v_add_u32 v4, s4, v4")
    a.i("v_cmp_gt_u32 vcc, 8, v3")
    a.i("v_mov_b32 v5, %d" % DUMP)
    a.i("v_cndmask_b32 v4, v5, v4, vcc")
    dma_wait(8, 2)
    pv_step(0)
    dma_wait(0, 2)
    stamp(9)
    pv_step(1)
    for i in range(8):
        a.i("ds_write_b128 v4, %s offset:%d" % (v(D[i], 4), i * 16))
    a.i("s_cmp_lg_u32 s3, 0")
    a.br("s_cbranch_scc1 L_nombb")
    mbox_wait(2, "L_mbb")
    a.label("L_nombb")
    a.i("s_waitcnt lgkmcnt(0)")
    a.i("s_barrier")
    stamp(10)
    a.i("s_cmp_ge_u32 s3, 8")
    a.br("s_cbranch_scc1 L_dmawave")
    prio(3)
    a.i("s_cmp_ge_u32 s3, 4")
    a.br("s_cbranch_scc1 L_reducer")
    a.i("s_cmp_eq_u32 s3, 3")
    a.br("s_cbranch_scc1 L_final")
    a.i("s_cmp_eq_u32 s3, 0")
    a.br("s_cbranch_scc1 L_gather")
    a.br("s_branch L_tail")

    a.label("L_reducer")
    a.i("v_lshrrev_b32 v3, 5, v0")
    a.i("s_sub_u32 s6, s3, 4")
    a.i("s_lshl_b32 s4, s6, 1")
    a.i("v_add_u32 v3, s4, v3")
    a.i("v_mul_u32_u24 v3, 528, v3")
    a.i("v_and_b32 v4, 31, v0")
    a.i("v_lshl_add_u32 v3, v4, 4, v3")
    a.i("v_add_u32 v3, %d, v3" % ORED)
    for w2 in range(16):
        a.i("ds_read_b128 %s, v3 offset:%d" % (v(KV + 4 * w2, 4), w2 * 4224))
    a.i("s_lshl_b32 s4, s%d, 12" % sCH)
    a.i("s_lshl_b32 s5, s6, 10")
    a.i("s_add_u32 s4, s4, s5")
    a.i("s_add_u32 s4, s4, 0x%x" % OB1)
    a.i("s_waitcnt lgkmcnt(8)")
    for w2 in range(0, 8, 2):
        for e in range(4):
            a.i("v_add_f32 v%d, v%d, v%d" % (KV + 4 * w2 + e, KV + 4 * w2 + e, KV + 4 * w2 + 4 + e))
    for w2 in (0, 4):
        for e in range(4):
            a.i("v_add_f32 v%d, v%d, v%d" % (KV + 4 * w2 + e, KV + 4 * w2 + e, KV + 4 * w2 + 8 + e))
    for e in range(4):
        a.i("v_add_f32 v%d, v%d, v%d" % (KV + e, KV + e, KV + 16 + e))
    a.i("s_waitcnt lgkmcnt(0)")
    for w2 in range(8, 16, 2):
        for e in range(4):
            a.i("v_add_f32 v%d, v%d, v%d" % (KV + 4 * w2 + e, KV + 4 * w2 + e, KV + 4 * w2 + 4 + e))
    for w2 in (8, 12):
        for e in range(4):
            a.i("v_add_f32 v%d, v%d, v%d" % (KV + 4 * w2 + e, KV + 4 * w2 + e, KV + 4 * w2 + 8 + e))
    for e in range(4):
        a.i("v_add_f32 v%d, v%d, v%d" % (KV + 32 + e, KV + 32 + e, KV + 48 + e))
    for e in range(4):
        a.i("v_add_f32 v%d, v%d, v%d" % (KV + e, KV + e, KV + 32 + e))
    for e in range(4):
        a.i("v_min_u32 v%d, -2, v%d" % (KV + e, KV + e))
    a.i("buffer_store_dwordx4 %s, v%d, %s, s4 offen sc1" % (v(KV, 4), vOFFV, s(sWS, 4)))
    stamp(11)
    a.br("s_branch L_exit")

    a.label("L_dmawave")
    a.i("s_waitcnt vmcnt(0)")
    lds_inc(C_DMA, 3, 4)
    stamp(11)
    a.br("s_branch L_exit")

    a.label("L_gather")
    a.i("s_lshr_b32 s4, s%d, 1" % sKS)
    a.i("s_lshr_b32 s6, s4, 3")
    a.i("s_lshl_b32 s5, s6, 10")
    a.i("s_and_b32 s7, s4, 7")
    a.i("s_lshl_b32 s7, s7, 3")
    a.i("s_add_u32 s5, s5, s7")
    a.i("s_add_u32 s5, s5, 0x%x" % ST)
    a.i("v_lshrrev_b32 v3, 3, v0")
    a.i("v_lshlrev_b32 v3, 12, v3")
    a.i("v_and_b32 v4, 7, v0")
    a.i("v_lshl_add_u32 v3, v4, 7, v3")
    a.i("v_lshrrev_b32 v7, 4, v0")
    a.i("v_lshlrev_b32 v7, 17, v7")
    a.i("v_and_b32 v8, 15, v0")
    a.i("v_lshl_add_u32 v7, v8, 4, v7")
    a.i("s_lshl_b32 s6, s6, 15")
    a.i("s_and_b32 s7, s%d, 15" % sKS)
    a.i("s_lshl_b32 s7, s7, 8")
    a.i("s_add_u32 s6, s6, s7")
    a.i("s_add_u32 s6, s6, 0x%x" % OB1)
    a.i("s_mov_b32 s%d, %d" % (sSPIN, SPIN_G))
    a.label("L_poll_st")
    a.i("buffer_load_dwordx2 v[4:5], v3, %s, s5 offen sc1" % s(sWS, 4))
    a.i("s_waitcnt vmcnt(0)")
    a.i("v_max_u32 v6, v4, v5")
    a.i("v_cmp_eq_u32 vcc, -1, v6")
    a.br("s_cbranch_vccz L_poll_st_done")
    a.i("s_sleep 1")
    a.i("s_sub_u32 s%d, s%d, 1" % (sSPIN, sSPIN))
    a.i("s_cmp_lg_u32 s%d, 0" % sSPIN)
    a.br("s_cbranch_scc1 L_poll_st")
    a.label("L_poll_st_done")
    stamp(11)

    def gather_loads():
        for bh in range(2):
            for sp in range(8):
                a.i("s_add_u32 s7, s6, %d" % (bh * 4 * 32 * 4096 + sp * 4096))
                a.i("buffer_load_dwordx4 %s, v7, %s, s7 offen sc1" % (v(KV + (bh * 8 + sp) * 4, 4), s(sWS, 4)))

    gather_loads()
    a.i("v_mov_b32 v6, v4")
    dpp_reduce16("v_max_f32", 6, n=3)
    a.i("v_sub_f32 v6, v4, v6")
    a.i("v_mul_f32 v6, s%d, v6" % sLOG2E)
    a.i("v_exp_f32 v6, v6")
    a.i("v_mul_f32 v9, v6, v5")
    dpp_reduce16("v_add_f32", 9, n=3)
    a.i("v_rcp_f32 v9, v9")
    a.i("v_mul_f32 v6, v6, v9")
    a.i("v_lshlrev_b32 v3, 2, v0")
    a.i("ds_write_b32 v3, v6 offset:%d" % FL)
    a.i("v_lshrrev_b32 v3, 4, v0")
    a.i("v_lshlrev_b32 v3, 5, v3")
    a.i("s_waitcnt lgkmcnt(0)")
    for bh in range(2):
        for hf in range(2):
            a.i("ds_read_b128 %s, v3 offset:%d" % (v(12 + bh * 8 + hf * 4, 4), FL + bh * 128 + hf * 16))
    a.i("s_mov_b32 s%d, %d" % (sSPIN, SPIN_G))
    a.label("L_poll_o")
    a.i("s_waitcnt vmcnt(0)")
    a.i("v_max3_u32 v4, v%d, v%d, v%d" % (KV, KV + 1, KV + 2))
    a.i("v_max3_u32 v5, v%d, v%d, v%d" % (KV + 3, KV + 4, KV + 5))
    for k in range(6, 62, 4):
        a.i("v_max3_u32 v4, v4, v%d, v%d" % (KV + k, KV + k + 1))
        a.i("v_max3_u32 v5, v5, v%d, v%d" % (KV + k + 2, KV + k + 3))
    a.i("v_max3_u32 v4, v4, v%d, v%d" % (KV + 62, KV + 63))
    a.i("v_max_u32 v4, v4, v5")
    a.i("v_cmp_eq_u32 vcc, -1, v4")
    a.br("s_cbranch_vccz L_poll_o_done")
    a.i("s_sub_u32 s%d, s%d, 1" % (sSPIN, sSPIN))
    a.i("s_cmp_eq_u32 s%d, 0" % sSPIN)
    a.br("s_cbranch_scc1 L_poll_o_done")
    gather_loads()
    a.br("s_branch L_poll_o")
    a.label("L_poll_o_done")
    stamp(12)
    a.i("s_waitcnt lgkmcnt(0)")
    for bh in range(2):
        for e in range(4):
            a.i("v_mul_f32 v%d, v%d, v%d" % (28 + bh * 4 + e, 12 + bh * 8, KV + bh * 32 + e))
        for sp in range(1, 8):
            for e in range(4):
                a.i("v_fmac_f32 v%d, v%d, v%d" % (28 + bh * 4 + e, 12 + bh * 8 + sp, KV + (bh * 8 + sp) * 4 + e))
    a.i("v_bfe_u32 v3, v0, 3, 1")
    a.i("v_lshlrev_b32 v3, 9, v3")
    a.i("v_lshrrev_b32 v4, 4, v0")
    a.i("v_lshl_add_u32 v3, v4, 6, v3")
    a.i("v_and_b32 v4, 7, v0")
    a.i("v_lshl_add_u32 v3, v4, 3, v3")
    for bh in range(2):
        bf16_round_pair(36 + 2 * bh, 28 + bh * 4, 29 + bh * 4)
        bf16_round_pair(37 + 2 * bh, 30 + bh * 4, 31 + bh * 4)
        a.i("ds_write_b64 v3, %s offset:%d" % (v(36 + 2 * bh, 2), OL + bh * 256))
    a.i("v_mov_b32 v3, %d" % CNT)
    a.i("v_mov_b32 v4, 1")
    a.i("ds_write_b32 v3, v4 offset:%d" % C_ORDY)
    stamp(13)
    a.br("s_branch L_exit")

    a.label("L_tail")
    lds_spin(C_DMA, 8, 3, 4, sleep=1)
    stamp(11)
    a.i("s_sub_u32 s4, s3, 1")
    a.i("s_lshl_b32 s5, s4, 15")
    a.i("s_add_u32 s5, s5, %d" % TW)
    a.i("v_add_u32 v5, s5, v%d" % vOFFV)
    a.i("v_and_b32 v6, 7, v0")
    a.i("v_lshlrev_b32 v6, 6, v6")
    a.i("v_lshrrev_b32 v7, 4, v0")
    a.i("v_lshl_add_u32 v6, v7, 4, v6")
    a.i("ds_read_b128 v[28:31], v6 offset:%d" % HL)
    a.i("ds_read_b128 v[32:35], v6 offset:%d" % (HL + 512))
    for st in range(2):
        for j in range(8):
            a.i("ds_read_b128 %s, v5 offset:%d" % (v(KV + (st * 8 + j) * 4, 4), st * 8192 + j * 1024))
    for st in range(2):
        a.i("s_waitcnt lgkmcnt(%d)" % (8 if st == 0 else 0))
        for q in range(4):
            for p in range(4):
                a.i("v_perm_b32 v%d, v%d, v%d, s%d" % (PT + p, KV + (8 * st + 2 * p + 1) * 4 + q, KV + (8 * st + 2 * p) * 4 + q, sSELLO))
            for p in range(4):
                a.i("v_perm_b32 v%d, v%d, v%d, s%d" % (PT + 4 + p, KV + (8 * st + 2 * p + 1) * 4 + q, KV + (8 * st + 2 * p) * 4 + q, sSELHI))
            for h in range(2):
                i = 2 * q + h
                a.i("v_mfma_f32_16x16x32_bf16 %s, %s, %s, %s" % (
                    v(D[i], 4), v(28 + 4 * st, 4), v(PT + 4 * h, 4), "0" if st == 0 else v(D[i], 4)))
    for st in range(2):
        for j in range(8):
            a.i("ds_read_b128 %s, v5 offset:%d" % (v(KV + (st * 8 + j) * 4, 4), (2 + st) * 8192 + j * 1024))
    lds_spin(C_ORDY, 1, 3, 4, sleep=0)
    a.i("ds_read_b128 v[28:31], v6 offset:%d" % OL)
    a.i("ds_read_b128 v[32:35], v6 offset:%d" % (OL + 512))
    for st in range(2):
        for q in range(4):
            for p in range(4):
                a.i("v_perm_b32 v%d, v%d, v%d, s%d" % (PT + p, KV + (8 * st + 2 * p + 1) * 4 + q, KV + (8 * st + 2 * p) * 4 + q, sSELLO))
            for p in range(4):
                a.i("v_perm_b32 v%d, v%d, v%d, s%d" % (PT + 4 + p, KV + (8 * st + 2 * p + 1) * 4 + q, KV + (8 * st + 2 * p) * 4 + q, sSELHI))
            if st == 0 and q == 0:
                a.i("s_waitcnt lgkmcnt(0)")
            for h in range(2):
                i = 2 * q + h
                a.i("v_mfma_f32_16x16x32_bf16 %s, %s, %s, %s" % (
                    v(D[i], 4), v(28 + 4 * st, 4), v(PT + 4 * h, 4), v(D[i], 4)))
    a.i("s_lshl_b32 s5, s2, 13")
    a.i("s_lshl_b32 s6, s4, 12")
    a.i("s_add_u32 s5, s5, s6")
    a.i("s_add_u32 s5, s5, 0x%x" % OB2)
    a.i("s_mov_b32 exec_hi, 0")
    for i in range(8):
        for e in range(4):
            a.i("v_min_u32 v%d, -2, v%d" % (D[i] + e, D[i] + e))
        a.i("buffer_store_dwordx4 %s, v%d, %s, s5 offen offset:%d sc1" % (v(D[i], 4), vOFFV, s(sWS, 4), i * 512))
    a.i("s_mov_b64 exec, -1")
    stamp(13)
    a.br("s_branch L_exit")

    a.label("L_final")
    a.i("buffer_store_dwordx2 v[60:61], v%d, %s, 0 offen sc1" % (vST, s(sWS, 4)))
    a.i("s_lshr_b32 s4, s%d, 5" % sKS)
    a.i("s_lshl_b32 s4, s4, 7")
    a.i("s_lshl_b32 s5, s%d, 8" % sCB)
    a.i("s_add_u32 s4, s4, s5")
    a.i("s_lshr_b32 s5, s%d, 2" % sKS)
    a.i("s_and_b32 s5, s5, 7")
    a.i("s_add_u32 s4, s4, s5")
    a.i("s_and_b32 s5, s%d, 1" % sKS)
    a.i("s_lshl_b32 s5, s5, 6")
    a.i("s_add_u32 s4, s4, s5")
    a.i("s_lshr_b32 s5, s%d, 1" % sKS)
    a.i("s_and_b32 s5, s5, 1")
    a.i("s_lshl_b32 s5, s5, 12")
    a.i("s_add_u32 s4, s4, s5")
    a.i("s_lshl_b32 s4, s4, 1")
    a.i("v_lshrrev_b32 v3, 3, v0")
    a.i("v_and_b32 v4, 7, v0")
    a.i("v_lshlrev_b32 v5, 11, v3")
    a.i("v_lshl_add_u32 v5, v4, 4, v5")
    a.i("v_add_u32 v5, s4, v5")
    a.i("v_cmp_gt_u32 vcc, 32, v0")
    a.i("v_mov_b32 v6, 0x7ffffff0")
    a.i("v_cndmask_b32 v5, v6, v5, vcc")
    a.i("buffer_load_ushort v9, v5, %s, 0 offen" % s(sX, 4))
    a.i("v_lshlrev_b32 v6, 13, v3")
    a.i("v_lshl_add_u32 v6, v4, 4, v6")
    a.i("s_lshl_b32 s5, s%d, 19" % sCB)
    a.i("s_lshl_b32 s6, s%d, 7" % sKS)
    a.i("s_add_u32 s5, s5, s6")
    a.i("s_add_u32 s5, s5, 0x%x" % OB2)
    lds_spin(C_ORDY, 1, 7, 8, sleep=1)
    a.i("s_mov_b32 s%d, %d" % (sSPIN, SPIN_G))
    a.label("L_poll_f")
    for t in range(8):
        a.i("s_add_u32 s6, s5, %d" % (t * 65536))
        a.i("buffer_load_dwordx4 %s, v6, %s, s6 offen sc1" % (v(KV + 4 * t, 4), s(sWS, 4)))
    a.i("s_waitcnt vmcnt(0)")
    a.i("v_max3_u32 v7, v%d, v%d, v%d" % (KV, KV + 1, KV + 2))
    a.i("v_max3_u32 v8, v%d, v%d, v%d" % (KV + 3, KV + 4, KV + 5))
    for k in range(6, 30, 4):
        a.i("v_max3_u32 v7, v7, v%d, v%d" % (KV + k, KV + k + 1))
        a.i("v_max3_u32 v8, v8, v%d, v%d" % (KV + k + 2, KV + k + 3))
    a.i("v_max3_u32 v7, v7, v%d, v%d" % (KV + 30, KV + 31))
    a.i("v_max_u32 v7, v7, v8")
    a.i("v_cmp_eq_u32 vcc, -1, v7")
    a.br("s_cbranch_vccz L_poll_f_done")
    a.i("s_sub_u32 s%d, s%d, 1" % (sSPIN, sSPIN))
    a.i("s_cmp_lg_u32 s%d, 0" % sSPIN)
    a.br("s_cbranch_scc1 L_poll_f")
    a.label("L_poll_f_done")
    stamp(12)
    for t in range(0, 8, 2):
        for e in range(4):
            a.i("v_add_f32 v%d, v%d, v%d" % (KV + 4 * t + e, KV + 4 * t + e, KV + 4 * t + 4 + e))
    for t in (0, 4):
        for e in range(4):
            a.i("v_add_f32 v%d, v%d, v%d" % (KV + 4 * t + e, KV + 4 * t + e, KV + 4 * t + 8 + e))
    for e in range(4):
        a.i("v_add_f32 v%d, v%d, v%d" % (KV + e, KV + e, KV + 16 + e))
    for e in range(4):
        a.i("v_add_f32_dpp v%d, v%d, v%d row_ror:8 row_mask:0xf bank_mask:0xf" % (KV + e, KV + e, KV + e))
    for e in range(4):
        allreduce_rows("v_add_f32", KV + e, KV + 8 + e)
    a.i("v_cmp_eq_u32 vcc, 1, v3")
    a.i("v_cndmask_b32 v7, v%d, v%d, vcc" % (KV, KV + 1))
    a.i("v_cmp_eq_u32 vcc, 2, v3")
    a.i("v_cndmask_b32 v7, v7, v%d, vcc" % (KV + 2))
    a.i("v_cmp_eq_u32 vcc, 3, v3")
    a.i("v_cndmask_b32 v7, v7, v%d, vcc" % (KV + 3))
    a.i("v_lshlrev_b32 v9, 16, v9")
    a.i("v_add_f32 v7, v7, v9")
    bf16_round_pair(7, 7, 7)
    a.i("buffer_store_short v7, v5, %s, 0 offen" % s(sOUT, 4))
    a.i("s_cmp_lg_u32 s2, %d" % ROOT)
    a.br("s_cbranch_scc1 L_noreset")
    a.i("v_mov_b32 v3, 0")
    a.i("v_lshlrev_b32 v4, 2, v0")
    a.i("buffer_store_dword v3, v4, %s, 0 offen offset:%d sc1" % (s(sDBG, 4), AOFF))
    a.label("L_noreset")
    if cfg.get("pad", 0):
        if cfg.get("padwg", -1) >= 0:
            a.i("s_cmp_lg_u32 s2, %d" % cfg["padwg"])
            a.br("s_cbranch_scc1 L_exit")
        a.i("v_readfirstlane_b32 s4, v%d" % vSTAMP)
        a.label("L_pad")
        a.i("s_memrealtime s[14:15]")
        a.i("s_waitcnt lgkmcnt(0)")
        a.i("s_sub_u32 s5, s14, s4")
        a.i("s_cmp_lt_u32 s5, %d" % (cfg["pad"] * 100))
        a.br("s_cbranch_scc1 L_pad")
    stamp(13)

    a.label("L_exit")
    if diag == 2:
        a.i("v_not_b32 v4, v%d" % vSTAMP)
        a.i("v_cmp_eq_u32 vcc, 0, v0")
        a.i("v_cndmask_b32 v4, v%d, v4, vcc" % vSTAMP)
        a.i("v_lshlrev_b32 v3, 2, v0")
        a.i("s_mov_b64 exec, 0xffff")
        a.i("buffer_atomic_umax v4, v3, %s, 0 offen sc1" % s(sDBG, 4))
    if diag == 1:
        a.i("s_lshl_b32 s4, s2, 4")
        a.i("s_add_u32 s4, s4, s3")
        a.i("s_lshl_b32 s4, s4, 8")
        a.i("s_add_u32 s4, s4, 0x%x" % STAMP)
        a.i("v_lshlrev_b32 v3, 2, v0")
        a.i("buffer_store_dword v%d, v3, %s, s4 offen" % (vSTAMP, s(sWS, 4)))
    a.label("L_end")
    a.i("s_endpgm")

    a.raw('.section .rodata,"a"')
    a.raw(".p2align 6")
    a.raw(".amdhsa_kernel " + NAME)
    a.raw("  .amdhsa_next_free_vgpr 128")
    a.raw("  .amdhsa_next_free_sgpr 102")
    a.raw("  .amdhsa_accum_offset 128")
    a.raw("  .amdhsa_group_segment_fixed_size 0")
    a.raw("  .amdhsa_kernarg_size 96")
    a.raw("  .amdhsa_user_sgpr_count 2")
    a.raw("  .amdhsa_user_sgpr_kernarg_segment_ptr 1")
    a.raw("  .amdhsa_system_sgpr_workgroup_id_x 1")
    a.raw(".end_amdhsa_kernel")
    return a.text()


if __name__ == "__main__":
    cfg = {}
    out = sys.argv[1]
    for kv in sys.argv[2:]:
        k, val = kv.split("=")
        cfg[k] = int(val, 0)
    open(out, "w").write(gen(cfg))
```

```python
import sys
from asmlib import Asm, v, s

NAME = "parallel_sum__gqa_block_cached__glu_gated_geglu__decode_kernel"

QP = 0x000000
GP = 0x080000
UP = 0x100000
OB1 = 0x200000
ST = 0x300000
MB = 0x380000
OB2 = 0x400000
STAMP = 0x800000
WS_SIZE = 0x1000000
GSP = 3584 * 32

DUMP = 0
QL = 512
HL = 2688
OL = 3712
SM = 4736
SL = 5248
WT = 5760
CNT = 6272
C_LN, C_RED, C_PUB, C_QRDY, C_KI, C_M, C_VI, C_PVM = 0, 4, 8, 12, 16, 20, 24, 28
C_WT, C_H, C_ORDY, C_B, C_P1 = 32, 36, 40, 44, 48
C_ST = 60
ROOTB = 254
ROOT = 255
XN = 6400
R1 = 22912
ORED = 6400
TW = 75776
LDS_SIZE = TW + 65536

sX, sK, sV, sW1, sWT, sWS, sOUT, sDBG = 40, 44, 48, 52, 56, 60, 64, 68
sSELLO, sSELHI = 72, 73
sT = 74
sCH, sB, sKVH, sS, sCB, sKS = 78, 79, 80, 81, 82, 83
sW1OFF, sPITCH, sSPIN, sLOG2E = 84, 85, 86, 87
sMAT, sPUBF = 88, 89
sK0, sCG, sSG = 96, 97, 98
sSCALE = 99
sMBX = 101

vOFFK, vOFFV = 1, 2
vSTAMP = 11
KV = 64


def gen(cfg):
    a = Asm()
    NT = " nt" if cfg.get("nt", 1) else ""
    NTW = " nt" if cfg.get("ntw", 1) else ""
    NTT = " nt" if cfg.get("ntt", 1) else ""
    diag = cfg.get("diag", 0)
    SPIN_G = cfg.get("spin_g", 1 << 17)
    SPIN_L = cfg.get("spin_l", 1 << 21)
    PF = cfg.get("pf", 2)
    PRIO = cfg.get("prio", 1)
    WDLATE = cfg.get("wdlate", 0)
    VIG = cfg.get("vig", 16)
    GD = cfg.get("gd", 2)
    FD = cfg.get("fd", 2)
    GSL = cfg.get("gsl", 2)
    FSL = cfg.get("fsl", 2)

    def prio(n):
        if PRIO:
            a.i("s_setprio %d" % n)

    def stamp(idx):
        if not diag:
            return
        a.i("s_memrealtime s[14:15]")
        a.i("s_waitcnt lgkmcnt(0)")
        a.i("v_writelane_b32 v%d, s14, %d" % (vSTAMP, idx))

    def srd(d, p, size, off_lo=None):
        if off_lo is None:
            a.i("s_mov_b32 s%d, s%d" % (d, p))
            a.i("s_and_b32 s%d, s%d, 0xffff" % (d + 1, p + 1))
        else:
            a.i("s_add_u32 s%d, s%d, s%d" % (d, p, off_lo))
            a.i("s_addc_u32 s%d, s%d, 0" % (d + 1, p + 1))
            a.i("s_and_b32 s%d, s%d, 0xffff" % (d + 1, d + 1))
        a.i("s_mov_b32 s%d, 0x%x" % (d + 2, size))
        a.i("s_mov_b32 s%d, 0x00020000" % (d + 3))

    def bf16_round_pair(dst, x0, x1):
        a.i("v_cvt_pk_bf16_f32 v%d, v%d, v%d" % (dst, x0, x1))

    def unpack_lo(dst, src):
        a.i("v_lshlrev_b32 v%d, 16, v%d" % (dst, src))

    def unpack_hi(dst, src):
        a.i("v_and_b32 v%d, 0xffff0000, v%d" % (dst, src))

    def allreduce_rows(op, x, tmp, do16=True, do32=True):
        if do16:
            a.i("v_mov_b32 v%d, v%d" % (tmp, x))
            a.i("v_permlane16_swap_b32 v%d, v%d" % (x, tmp))
            a.i("%s v%d, v%d, v%d" % (op, x, x, tmp))
        if do32:
            a.i("v_mov_b32 v%d, v%d" % (tmp, x))
            a.i("v_permlane32_swap_b32 v%d, v%d" % (x, tmp))
            a.i("%s v%d, v%d, v%d" % (op, x, x, tmp))

    def dpp_reduce16(op, x, n=4):
        pats = ["quad_perm:[1,0,3,2]", "quad_perm:[2,3,0,1]", "row_half_mirror", "row_mirror"]
        for p in pats[:n]:
            a.i("%s_dpp v%d, v%d, v%d %s row_mask:0xf bank_mask:0xf" % (op, x, x, x, p))

    def lds_spin(off, val, va, vd, sleep=1, cmp="ne", mask=None):
        l0, l1 = a.newlabel("L_sp"), a.newlabel("L_sp")
        a.i("v_mov_b32 v%d, %d" % (va, CNT))
        a.i("s_mov_b32 s%d, %d" % (sSPIN, SPIN_L))
        a.label(l0)
        a.i("ds_read_b32 v%d, v%d offset:%d" % (vd, va, off))
        a.i("s_waitcnt lgkmcnt(0)")
        if mask is not None:
            a.i("v_and_b32 v%d, 0x%x, v%d" % (vd, mask, vd))
        a.i("v_cmp_%s_u32 vcc, %s, v%d" % (cmp, val if isinstance(val, str) else "0x%x" % val, vd))
        a.br("s_cbranch_vccz %s" % l1)
        if sleep:
            a.i("s_sleep %d" % sleep)
        a.i("s_sub_u32 s%d, s%d, 1" % (sSPIN, sSPIN))
        a.i("s_cmp_lg_u32 s%d, 0" % sSPIN)
        a.br("s_cbranch_scc1 %s" % l0)
        a.label(l1)

    def lds_inc(off, va, vd, val="1"):
        a.i("v_mov_b32 v%d, %d" % (va, CNT))
        a.i("v_mov_b32 v%d, %s" % (vd, val))
        a.i("s_mov_b64 exec, 1")
        a.i("ds_add_u32 v%d, v%d offset:%d" % (va, vd, off))
        a.i("s_mov_b64 exec, -1")

    def lds_inc_rtn(off, va, vd, sd):
        if isinstance(off, str):
            a.i("v_mov_b32 v%d, %s" % (va, off))
            off = 0
        else:
            a.i("v_mov_b32 v%d, %d" % (va, CNT))
        a.i("v_mov_b32 v%d, 1" % vd)
        a.i("s_mov_b64 exec, 1")
        a.i("ds_add_rtn_u32 v%d, v%d, v%d offset:%d" % (vd, va, vd, off))
        a.i("s_mov_b64 exec, -1")
        a.i("s_waitcnt lgkmcnt(0)")
        a.i("v_readfirstlane_b32 s%d, v%d" % (sd, vd))

    def check_regs(regs, t0, t1):
        a.i("v_max3_u32 v%d, v%d, v%d, v%d" % (t0, regs[0], regs[1], regs[2]))
        a.i("v_max3_u32 v%d, v%d, v%d, v%d" % (t1, regs[3], regs[4], regs[5]))
        k = 6
        while k + 4 <= len(regs):
            a.i("v_max3_u32 v%d, v%d, v%d, v%d" % (t0, t0, regs[k], regs[k + 1]))
            a.i("v_max3_u32 v%d, v%d, v%d, v%d" % (t1, t1, regs[k + 2], regs[k + 3]))
            k += 4
        assert len(regs) - k == 2
        a.i("v_max3_u32 v%d, v%d, v%d, v%d" % (t0, t0, regs[k], regs[k + 1]))
        a.i("v_max_u32 v%d, v%d, v%d" % (t0, t0, t1))
        a.i("v_cmp_eq_u32 vcc, -1, v%d" % t0)

    def vgather(loads, t0, t1):
        ltop, ldone = a.newlabel("L_vg"), a.newlabel("L_vg")
        for dst, ins in loads:
            for x in ins:
                a.i(x)
        a.i("s_mov_b32 s%d, %d" % (sSPIN, SPIN_G))
        a.label(ltop)
        a.i("s_waitcnt vmcnt(0)")
        check_regs([dst + e for dst, _ in loads for e in range(4)], t0, t1)
        a.br("s_cbranch_vccz %s" % ldone)
        a.i("s_sub_u32 s%d, s%d, 1" % (sSPIN, sSPIN))
        a.i("s_cmp_eq_u32 s%d, 0" % sSPIN)
        a.br("s_cbranch_scc1 %s" % ldone)
        for dst, ins in loads:
            lsk = a.newlabel("L_vs")
            a.i("v_max3_u32 v%d, v%d, v%d, v%d" % (t0, dst, dst + 1, dst + 2))
            a.i("v_max_u32 v%d, v%d, v%d" % (t0, t0, dst + 3))
            a.i("v_cmp_eq_u32 vcc, -1, v%d" % t0)
            a.br("s_cbranch_vccz %s" % lsk)
            for x in ins:
                a.i(x)
            a.label(lsk)
        a.br("s_branch %s" % ltop)
        a.label(ldone)

    def pipe_poll(bases, issue, finish, slp, t0, t1, tag):
        depth = len(bases)
        a.i("s_mov_b32 s%d, %d" % (sSPIN, SPIN_G))
        for k in range(depth - 1):
            issue(bases[k])
            a.i("s_sleep %d" % slp)
        a.label(tag + "_p")
        for k in range(depth):
            issue(bases[(k + depth - 1) % depth])
            a.i("s_waitcnt vmcnt(%d)" % (8 * (depth - 1)))
            check_regs([bases[k] + e for e in range(32)], t0, t1)
            a.br("s_cbranch_vccz %s_f%d" % (tag, k))
        a.i("s_sub_u32 s%d, s%d, 1" % (sSPIN, sSPIN))
        a.i("s_cmp_lg_u32 s%d, 0" % sSPIN)
        a.br("s_cbranch_scc1 %s_p" % tag)
        a.i("s_waitcnt vmcnt(0)")
        for k in range(depth - 1, -1, -1):
            a.label("%s_f%d" % (tag, k))
            finish(bases[k])
            if k:
                a.br("s_branch %s_d" % tag)
        a.label(tag + "_d")

    def free_poll(base, issue1, slp, t0, t1, tag, thr=24):
        for e in range(32):
            a.i("v_mov_b32 v%d, -1" % (base + e))
        for k in range(8):
            issue1(k)
        a.i("s_mov_b32 s%d, %d" % (sSPIN, SPIN_G * 4))
        a.i("s_waitcnt vmcnt(0)")
        a.label(tag + "_p")
        check_regs([base + e for e in range(32)], t0, t1)
        a.br("s_cbranch_vccz %s_d" % tag)
        for k in range(8):
            lsk = a.newlabel("L_fs")
            d = base + 4 * k
            a.i("v_max3_u32 v%d, v%d, v%d, v%d" % (t0, d, d + 1, d + 2))
            a.i("v_max_u32 v%d, v%d, v%d" % (t0, t0, d + 3))
            a.i("v_cmp_eq_u32 vcc, -1, v%d" % t0)
            a.br("s_cbranch_vccz %s" % lsk)
            a.i("s_mov_b64 exec, vcc")
            issue1(k)
            a.i("s_mov_b64 exec, -1")
            a.label(lsk)
        if slp:
            a.i("s_sleep %d" % slp)
        a.i("s_waitcnt vmcnt(%d)" % thr)
        a.i("s_sub_u32 s%d, s%d, 1" % (sSPIN, sSPIN))
        a.i("s_cmp_lg_u32 s%d, 0" % sSPIN)
        a.br("s_cbranch_scc1 %s_p" % tag)
        a.label(tag + "_d")

    BYTEA = cfg.get("bytea", 0)

    def arrive(phase):
        if BYTEA:
            a.i("v_mov_b32 v4, %d" % (1 + 2 * phase))
            a.i("s_mov_b64 exec, 1")
            a.i("buffer_store_byte v4, off, %s, s2 sc1" % s(sDBG, 4))
            a.i("s_mov_b64 exec, -1")
            return
        a.i("s_and_b32 s6, s2, 15")
        a.i("s_lshl_b32 s6, s6, 2")
        a.i("s_bfe_u32 s7, s2, 0x10004")
        a.i("s_lshl_b32 s7, s7, 7")
        a.i("s_add_u32 s6, s6, s7")
        a.i("v_mov_b32 v4, 0x%x" % (1 << (8 * phase)))
        a.i("s_mov_b64 exec, 1")
        a.i("buffer_atomic_add v4, off, %s, s6 offset:64 sc1" % s(sDBG, 4))
        a.i("s_mov_b64 exec, -1")

    def root_bcast(phase, tag):
        if BYTEA:
            a.i("v_lshlrev_b32 v3, 2, v0")
            msk = val = 0x01010101 << phase
        else:
            a.i("v_and_b32 v3, 15, v0")
            a.i("v_lshlrev_b32 v3, 2, v3")
            a.i("v_bfe_u32 v4, v0, 4, 1")
            a.i("v_lshl_add_u32 v3, v4, 7, v3")
            a.i("v_add_u32 v3, 64, v3")
            msk, val = (0xff, 8) if phase == 0 else (0xffff, 0x808)
        a.i("s_mov_b32 s%d, %d" % (sSPIN, SPIN_G))
        a.i("s_mov_b32 s4, 0x%x" % val)
        if phase == 0 and cfg.get("rs0", 0):
            a.i("s_sleep %d" % cfg["rs0"])
        a.label(tag + "_p")
        a.i("buffer_load_dword v4, v3, %s, 0 offen sc1" % s(sDBG, 4))
        a.i("s_waitcnt vmcnt(0)")
        a.i("v_and_b32 v4, 0x%x, v4" % msk)
        a.i("v_cmp_ne_u32 vcc, s4, v4")
        a.br("s_cbranch_vccz %s_d" % tag)
        a.i("s_sleep %d" % (cfg.get("rsleep", 2) if phase == 0 else 8))
        a.i("s_sub_u32 s%d, s%d, 1" % (sSPIN, sSPIN))
        a.i("s_cmp_lg_u32 s%d, 0" % sSPIN)
        a.br("s_cbranch_scc1 %s_p" % tag)
        a.label(tag + "_d")
        for k in range(4):
            a.i("v_mov_b32 v%d, %d" % (56 + k, phase + 1))
        a.i("v_lshlrev_b32 v3, 7, v0")
        a.i("s_mov_b32 s4, 0x%x" % (MB + phase * 64))
        a.i("buffer_store_dwordx4 v[56:59], v3, %s, s4 offen sc1" % s(sWS, 4))

    def mbox_pipe(tag, depth=4, slp=6):
        a.i("s_mov_b32 s%d, %d" % (sSPIN, SPIN_G))
        a.i("s_mov_b64 exec, 1")
        for k in range(depth - 1):
            a.i("buffer_load_dword v%d, off, %s, s%d sc1" % (60 + k, s(sWS, 4), sMBX))
            a.i("s_sleep %d" % slp)
        a.label(tag + "_p")
        for k in range(depth):
            a.i("buffer_load_dword v%d, off, %s, s%d sc1" % (60 + (k + depth - 1) % depth, s(sWS, 4), sMBX))
            a.i("s_waitcnt vmcnt(%d)" % (depth - 1))
            a.i("v_cmp_ne_u32 vcc, 1, v%d" % (60 + k))
            a.br("s_cbranch_vccz %s_d" % tag)
            a.i("s_sleep %d" % slp)
        a.i("s_sub_u32 s%d, s%d, 1" % (sSPIN, sSPIN))
        a.i("s_cmp_lg_u32 s%d, 0" % sSPIN)
        a.br("s_cbranch_scc1 %s_p" % tag)
        a.label(tag + "_d")
        a.i("s_mov_b64 exec, -1")

    def mbox_wait_b(tag):
        a.i("s_mov_b32 s%d, %d" % (sSPIN, SPIN_G))
        a.i("s_mov_b64 exec, 1")
        a.label(tag + "_p")
        a.i("buffer_load_dword v4, off, %s, s%d offset:64 sc1" % (s(sWS, 4), sMBX))
        a.i("s_waitcnt vmcnt(0)")
        a.i("v_cmp_ne_u32 vcc, 2, v4")
        a.br("s_cbranch_vccz %s_d" % tag)
        a.i("s_sleep 4")
        a.i("s_sub_u32 s%d, s%d, 1" % (sSPIN, sSPIN))
        a.i("s_cmp_lg_u32 s%d, 0" % sSPIN)
        a.br("s_cbranch_scc1 %s_p" % tag)
        a.label(tag + "_d")
        a.i("s_mov_b64 exec, -1")

    def q_addr(vq, t0, sd):
        a.i("v_and_b32 v%d, 15, v0" % t0)
        a.i("v_lshrrev_b32 v%d, 4, v0" % vq)
        a.i("v_lshlrev_b32 v%d, 14, v%d" % (vq, vq))
        a.i("v_lshl_add_u32 v%d, v%d, 4, v%d" % (vq, t0, vq))
        a.i("s_lshl_b32 s%d, s%d, 9" % (sd, sCB))
        a.i("s_add_u32 s%d, s%d, s%d" % (sd, sd, sKS))
        a.i("s_lshl_b32 s%d, s%d, 8" % (sd, sd))
        if QP:
            a.i("s_add_u32 s%d, s%d, 0x%x" % (sd, sd, QP))

    hdr = open("parallel_sum__gqa_block_cached__glu_gated_geglu__decode.s.ref").read().split("\n")
    for l in hdr:
        if l.startswith("; @launch"):
            break
        a.raw(l)
    a.raw("; @launch grid=(256,1,1) block=(1024,1,1) lds=%d" % LDS_SIZE)
    a.raw('.amdgcn_target "amdgcn-amd-amdhsa--gfx950"')
    a.raw(".text")
    a.raw(".globl " + NAME)
    a.raw(".p2align 8")
    a.raw(".type %s,@function" % NAME)
    a.raw(NAME + ":")

    a.i("s_cmp_ge_u32 s2, 256")
    a.i("s_cbranch_scc1 L_end")
    a.i("s_load_dwordx16 s[16:31], s[0:1], 0")
    a.i("s_load_dwordx8 s[32:39], s[0:1], 64")
    a.i("v_lshrrev_b32 v1, 6, v0")
    a.i("v_readfirstlane_b32 s3, v1")
    a.i("v_and_b32 v0, 63, v0")
    if diag:
        a.i("v_mov_b32 v%d, 0" % vSTAMP)
    a.i("s_and_b32 s4, s2, 31")
    a.i("s_lshr_b32 s%d, s2, 5" % sS)
    a.i("s_lshl_b32 s%d, s4, 3" % sCH)
    a.i("s_add_u32 s%d, s%d, s%d" % (sCH, sCH, sS))
    a.i("s_lshr_b32 s%d, s4, 2" % sB)
    a.i("s_and_b32 s%d, s4, 3" % sKVH)
    a.i("s_lshr_b32 s%d, s2, 6" % sCB)
    a.i("s_and_b32 s%d, s2, 63" % sKS)
    a.i("s_mul_i32 s%d, s2, 1171" % sSG)
    a.i("s_lshr_b32 s%d, s%d, 16" % (sSG, sSG))
    a.i("s_mul_i32 s5, s%d, 56" % sSG)
    a.i("s_sub_u32 s%d, s2, s5" % sCG)
    a.i("s_sub_u32 s8, s3, 4")
    a.i("s_lshr_b32 s%d, s8, 2" % sMAT)
    a.i("s_and_b32 s10, s8, 3")
    a.i("s_movk_i32 s%d, 7168" % sPITCH)
    a.i("s_cmp_eq_u32 s%d, 0" % sMAT)
    a.i("s_cselect_b32 s%d, 8192, s%d" % (sPITCH, sPITCH))
    a.i("s_cselect_b32 s11, s%d, s%d" % (sCB, sSG))
    a.i("s_cselect_b32 s12, s%d, s%d" % (sKS, sCG))
    a.i("s_lshl_b32 s%d, s11, 8" % sK0)
    a.i("s_lshl_b32 s13, s10, 6")
    a.i("s_add_u32 s%d, s%d, s13" % (sK0, sK0))
    a.i("s_mul_i32 s%d, s%d, s%d" % (sW1OFF, sK0, sPITCH))
    a.i("s_lshl_b32 s12, s12, 7")
    a.i("s_add_u32 s%d, s%d, s12" % (sW1OFF, sW1OFF))
    a.i("s_lshl_b32 s12, s%d, 18" % sCH)
    a.i("v_lshrrev_b32 v3, 4, v0")
    a.i("v_lshlrev_b32 v3, 3, v3")
    a.i("v_bfe_u32 v4, v0, 3, 1")
    a.i("v_lshl_add_u32 v3, v4, 5, v3")
    a.i("v_mul_lo_u32 v3, v3, s%d" % sPITCH)
    a.i("v_and_b32 v4, 7, v0")
    a.i("v_lshl_add_u32 v3, v4, 4, v3")
    a.i("v_lshrrev_b32 v5, 5, v0")
    a.i("v_lshlrev_b32 v5, 11, v5")
    a.i("v_and_b32 v4, 31, v0")
    a.i("v_lshl_add_u32 v5, v4, 4, v5")
    a.i("s_lshl_b32 s13, s3, 12")
    a.i("s_lshr_b32 s6, s2, 2")
    a.i("s_lshl_b32 s6, s6, 7")
    a.i("s_and_b32 s7, s2, 3")
    a.i("s_lshl_b32 s7, s7, 2")
    a.i("s_add_u32 s6, s6, s7")
    a.i("s_add_u32 s%d, s6, 0x%x" % (sMBX, MB))
    a.i("v_lshlrev_b32 v%d, 4, v0" % vOFFV)
    for k in range(4):
        a.i("v_mov_b32 v%d, -1" % (60 + k))
    a.i("v_lshlrev_b32 v6, 2, v0")
    q_addr(56, 7, 4)
    a.i("s_lshl_b32 s6, s%d, 7" % sCH)
    a.i("s_add_u32 s6, s6, 0x%x" % ST)
    a.i("v_add_u32 v57, s6, v6")
    a.i("v_writelane_b32 v57, s%d, 16" % sMBX)
    a.i("s_add_u32 s6, s%d, 64" % sMBX)
    a.i("v_writelane_b32 v57, s6, 17")
    a.i("s_cmp_lg_u32 s3, 0")
    a.br("s_cbranch_scc1 L_noinit")
    a.i("v_mov_b32 v7, 0")
    a.i("s_mov_b64 exec, 0xffff")
    a.i("ds_write_b32 v6, v7 offset:%d" % CNT)
    a.i("s_mov_b64 exec, -1")
    a.label("L_noinit")
    a.i("s_waitcnt lgkmcnt(0)")
    srd(sX, 16, 16384)
    srd(sWS, 38, WS_SIZE)
    a.i("s_cmp_lt_u32 s3, 4")
    a.br("s_cbranch_scc1 L_xload")
    a.i("s_cmp_eq_u32 s%d, 1" % sMAT)
    a.i("s_cselect_b32 s%d, s28, s30" % sW1)
    a.i("s_cselect_b32 s%d, s29, s31" % (sW1 + 1))
    a.i("s_mov_b32 s%d, 0x700000" % (sW1 + 2))
    a.i("s_cmp_eq_u32 s%d, 0" % sMAT)
    a.i("s_cselect_b32 s%d, s22, s%d" % (sW1, sW1))
    a.i("s_cselect_b32 s%d, s23, s%d" % (sW1 + 1, sW1 + 1))
    a.i("s_cselect_b32 s%d, 0x800000, s%d" % (sW1 + 2, sW1 + 2))
    a.i("s_and_b32 s%d, s%d, 0xffff" % (sW1 + 1, sW1 + 1))
    a.i("s_mov_b32 s%d, 0x00020000" % (sW1 + 3))
    a.i("s_cmp_lt_u32 s3, 8")
    a.br("s_cbranch_scc1 L_w1go")
    a.i("s_barrier")
    a.i("s_cmp_ge_u32 s2, 224")
    a.br("s_cbranch_scc1 L_pro3")
    a.label("L_w1go")
    a.i("s_mov_b32 s4, s%d" % sW1OFF)
    for j in range(8):
        a.i("buffer_load_dwordx4 %s, v3, %s, s4 offen%s" % (v(12 + 4 * j, 4), s(sW1, 4), NTW))
        if j < 7:
            a.i("s_add_u32 s4, s4, s%d" % sPITCH)
    a.i("s_cmp_lt_u32 s3, 8")
    a.br("s_cbranch_scc1 L_pro2")
    lds_inc(C_PUB, 6, 7, val="0x10000")
    a.br("s_branch L_pro3")
    a.label("L_xload")
    for u in range(4):
        a.i("buffer_load_dwordx4 %s, v5, %s, s13 offen offset:%d" % (v(12 + 4 * u, 4), s(sX, 4), u * 512))
    a.i("s_cmp_lg_u32 s3, 0")
    a.br("s_cbranch_scc1 L_pro2")
    a.i("buffer_store_dwordx4 v[60:63], v56, %s, s4 offen sc1" % s(sWS, 4))
    a.i("s_add_u32 s4, s4, 65536")
    a.i("buffer_store_dwordx4 v[60:63], v56, %s, s4 offen sc1" % s(sWS, 4))
    a.i("s_mov_b64 exec, 0x3ffff")
    a.i("buffer_store_dword v60, v57, %s, 0 offen sc1" % s(sWS, 4))
    a.i("s_mov_b64 exec, -1")
    a.label("L_pro2")
    prio(3)
    a.i("s_barrier")
    a.label("L_pro3")
    srd(sK, 18, 0x40000, off_lo=12)
    srd(sV, 20, 0x40000, off_lo=12)
    srd(sOUT, 34, 16384)
    srd(sDBG, 36, 256)
    a.i("s_mov_b32 s%d, 0x05040100" % sSELLO)
    a.i("s_mov_b32 s%d, 0x07060302" % sSELHI)
    a.i("s_mov_b32 s%d, 0x3fb8aa3b" % sLOG2E)
    a.i("s_mov_b32 s%d, 0x3db504f3" % sSCALE)
    a.i("v_and_b32 v6, 3, v0")
    a.i("v_lshlrev_b32 v6, 10, v6")
    a.i("v_bfe_u32 v4, v0, 2, 1")
    a.i("v_lshl_add_u32 v6, v4, 8, v6")
    a.i("v_bfe_u32 v4, v0, 3, 1")
    a.i("v_lshl_add_u32 v6, v4, 6, v6")
    a.i("v_lshrrev_b32 v4, 4, v0")
    a.i("v_lshl_add_u32 v%d, v4, 4, v6" % vOFFK)
    a.i("s_lshl_b32 s6, s3, 14")
    a.i("s_add_u32 s7, s3, s2")
    for t in range(4):
        a.i("s_add_u32 s8, s7, %d" % t)
        a.i("s_and_b32 s8, s8, 3")
        a.i("s_lshl_b32 s8, s8, 12")
        a.i("s_add_u32 s%d, s6, s8" % (sT + t))
    stamp(0)
    if diag == 1:
        a.i("s_getreg_b32 s14, hwreg(HW_REG_XCC_ID)")
        a.i("v_writelane_b32 v%d, s14, 40" % vSTAMP)

    def k_loads():
        for t in range(4):
            for par in range(2):
                for j in range(2):
                    a.i("buffer_load_dwordx4 %s, v%d, %s, s%d offen offset:%d%s" % (
                        v(KV + (t * 4 + par * 2 + j) * 4, 4), vOFFK, s(sK, 4), sT + t, par * 512 + j * 128, NT))

    def v_loads():
        for t in range(4):
            for r in range(4):
                a.i("buffer_load_dwordx4 %s, v%d, %s, s%d offen offset:%d%s" % (
                    v(KV + (t * 4 + r) * 4, 4), vOFFV, s(sV, 4), sT + t, r * 1024, NT))

    def tw_dma(wo):
        srd(sWT, 24 if wo else 32, 0x800000 if wo else 0x700000)
        a.i("v_lshrrev_b32 v4, 3, v0")
        if wo:
            a.i("v_and_b32 v3, 3, v4")
            a.i("v_lshlrev_b32 v3, 14, v3")
            a.i("v_lshrrev_b32 v5, 5, v0")
            a.i("v_lshl_add_u32 v3, v5, 11, v3")
        else:
            a.i("v_lshlrev_b32 v3, 11, v4")
        a.i("v_and_b32 v4, 2, v4")
        a.i("v_and_b32 v5, 7, v0")
        a.i("v_xor_b32 v5, v4, v5")
        a.i("v_lshl_add_u32 v3, v5, 4, v3")
        a.i("v_xor_b32 v4, 64, v3")
        a.i("s_mul_i32 s8, s%d, %d" % (sKS, (64 if wo else 56) * 2048))
        a.i("s_lshl_b32 s9, s%d, 9" % sCB)
        a.i("s_add_u32 s8, s8, s9")
        a.i("s_sub_u32 s9, s3, 4")
        a.i("s_lshl_b32 s10, s9, 14")
        a.i("s_lshl_b32 s9, s9, 7")
        a.i("s_add_u32 s8, s8, s9")
        a.i("s_add_u32 s10, s10, %d" % (TW + (8192 if wo else 0)))
        for n in range(8 if wo else 7):
            ro = (32 * (n >> 2) + 2 * (n & 3)) if wo else 8 * n
            a.i("s_add_u32 s11, s8, %d" % (ro * 2048))
            a.i("s_add_u32 m0, s10, %d" % (n * 1024))
            a.i("buffer_load_dwordx4 v%d, %s, s11 offen%s lds" % (3 + (n & 1), s(sWT, 4), NTT))

    a.i("s_cmp_ge_u32 s3, 4")
    a.br("s_cbranch_scc1 L_p1")
    a.i("s_cmp_eq_u32 s3, 0")
    a.br("s_cbranch_scc1 L_ln0")
    a.i("s_waitcnt vmcnt(0)")
    a.label("L_ln0")
    a.i("s_waitcnt vmcnt(3)")
    for k in range(16):
        unpack_lo(28 + 2 * k, 12 + k)
        unpack_hi(29 + 2 * k, 12 + k)
    a.i("v_add_f32 v4, v28, v29")
    a.i("v_add_f32 v5, v30, v31")
    for k in range(4, 32, 2):
        a.i("v_add_f32 v4, v4, v%d" % (28 + k))
        a.i("v_add_f32 v5, v5, v%d" % (29 + k))
    a.i("v_add_f32 v4, v4, v5")
    dpp_reduce16("v_add_f32", 4)
    allreduce_rows("v_add_f32", 4, 5, do32=False)
    a.i("v_mul_f32 v4, 0x3a800000, v4")
    a.i("v_mov_b32 v6, 0")
    a.i("v_mov_b32 v7, 0")
    for k in range(0, 32, 2):
        a.i("v_sub_f32 v8, v%d, v4" % (28 + k))
        a.i("v_sub_f32 v9, v%d, v4" % (29 + k))
        a.i("v_fmac_f32 v6, v8, v8")
        a.i("v_fmac_f32 v7, v9, v9")
    a.i("v_add_f32 v6, v6, v7")
    dpp_reduce16("v_add_f32", 6)
    allreduce_rows("v_add_f32", 6, 7, do32=False)
    a.i("v_mul_f32 v6, 0x3a800000, v6")
    bf16_round_pair(5, 4, 6)
    unpack_lo(4, 5)
    unpack_hi(6, 5)
    a.i("v_add_f32 v6, 0x3727c5ac, v6")
    bf16_round_pair(6, 6, 6)
    unpack_lo(6, 6)
    a.i("v_sqrt_f32 v6, v6")
    bf16_round_pair(6, 6, 6)
    unpack_lo(6, 6)
    a.i("v_rcp_f32 v6, v6")
    for k in range(16):
        a.i("v_sub_f32 v8, v%d, v4" % (28 + 2 * k))
        a.i("v_sub_f32 v9, v%d, v4" % (29 + 2 * k))
        bf16_round_pair(8, 8, 9)
        unpack_hi(9, 8)
        unpack_lo(8, 8)
        a.i("v_mul_f32 v8, v8, v6")
        a.i("v_mul_f32 v9, v9, v6")
        bf16_round_pair(12 + k, 8, 9)
    a.i("v_lshrrev_b32 v4, 5, v0")
    a.i("s_lshl_b32 s5, s3, 1")
    a.i("v_add_u32 v4, s5, v4")
    a.i("v_mul_u32_u24 v4, 2064, v4")
    a.i("v_and_b32 v5, 31, v0")
    a.i("v_lshl_add_u32 v4, v5, 4, v4")
    for u in range(4):
        a.i("ds_write_b128 v4, %s offset:%d" % (v(12 + 4 * u, 4), XN + u * 512))
    a.i("s_waitcnt vmcnt(0)")
    lds_inc(C_LN, 3, 4)
    stamp(1)
    a.i("s_cmp_lg_u32 s3, 0")
    a.br("s_cbranch_scc1 L_clrb")
    arrive(0)
    stamp(14)
    a.i("s_cmp_lg_u32 s2, %d" % ROOT)
    a.br("s_cbranch_scc1 L_arrb")
    root_bcast(0, "L_rba")
    lds_inc(C_PUB, 3, 4, val="0x200")
    stamp(16)
    a.br("s_branch L_arrb")
    a.label("L_clrb")
    prio(0)
    a.i("s_lshl_b32 s7, s%d, 12" % sCH)
    a.i("s_add_u32 s7, s7, 0x%x" % OB1)
    a.i("s_lshl_b32 s8, s2, 13")
    a.i("s_lshl_b32 s9, s3, 12")
    a.i("s_add_u32 s8, s8, s9")
    a.i("s_add_u32 s8, s8, 0x%x" % (OB2 - 8192))
    a.i("s_cmp_eq_u32 s3, 1")
    a.i("s_cselect_b32 s7, s7, s8")
    for k in range(4):
        a.i("buffer_store_dwordx4 v[60:63], v%d, %s, s7 offen offset:%d sc1" % (vOFFV, s(sWS, 4), k * 1024))
    a.br("s_branch L_arrb")

    a.label("L_p1")
    a.i("s_cmp_lt_u32 s3, 8")
    a.br("s_cbranch_scc1 L_p1go")
    a.i("s_cmp_lt_u32 s2, 224")
    a.br("s_cbranch_scc1 L_p1go")
    NPF = cfg.get("npf", 5)
    if PF:
        a.i("s_cmp_lg_u32 s3, 9")
        a.br("s_cbranch_scc1 L_kload")
        a.i("s_getpc_b64 s[6:7]")
        a.label("L_pc")
        a.i("v_lshlrev_b32 v6, 6, v0")
        for k in range(NPF):
            a.i("v_min_u32 v4, L_end-L_pc, v6")
            a.i("global_load_dword v%d, v4, s[6:7]" % (60 + (k & 3)))
            if k < NPF - 1:
                a.i("v_add_u32 v6, 4096, v6")
    a.br("s_branch L_kload")
    a.label("L_p1go")
    a.i("v_and_b32 v3, 7, v0")
    a.i("v_mul_u32_u24 v3, 2064, v3")
    a.i("v_bfe_u32 v4, v0, 3, 1")
    a.i("v_lshl_add_u32 v3, v4, 6, v3")
    a.i("v_lshrrev_b32 v5, 4, v0")
    a.i("v_lshl_add_u32 v3, v5, 4, v3")
    a.i("s_lshl_b32 s4, s%d, 1" % sK0)
    a.i("v_add_u32 v3, s4, v3")
    a.i("v_lshrrev_b32 v6, 5, v0")
    a.i("s_lshl_b32 s5, s3, 1")
    a.i("s_sub_u32 s5, s5, 8")
    a.i("v_add_u32 v7, s5, v6")
    a.i("v_mul_u32_u24 v7, 2176, v7")
    a.i("v_and_b32 v8, 7, v0")
    a.i("v_mul_u32_u24 v8, 272, v8")
    a.i("v_add_u32 v7, v7, v8")
    a.i("v_bfe_u32 v8, v0, 4, 1")
    a.i("s_cmp_lt_u32 s3, 8")
    a.i("s_cselect_b32 s5, 7, 4")
    a.i("v_lshlrev_b32 v8, s5, v8")
    a.i("v_add_u32 v7, v7, v8")
    a.i("v_add_u32 v7, %d, v7" % R1)
    a.i("v_cmp_eq_u32 vcc, v4, v6")
    a.i("v_mov_b32 v8, %d" % DUMP)
    a.i("v_cndmask_b32 v7, v8, v7, vcc")
    lds_spin(C_LN, 4, 8, 9, sleep=1)
    a.i("ds_read_b128 v[44:47], v3 offset:%d" % XN)
    stamp(1)
    a.i("s_waitcnt vmcnt(0) lgkmcnt(0)")
    stamp(2)
    for q in range(4):
        A0 = KV + q * 16
        for p in range(4):
            a.i("v_perm_b32 v%d, v%d, v%d, s%d" % (A0 + p, 12 + (2 * p + 1) * 4 + q, 12 + (2 * p) * 4 + q, sSELLO))
        for p in range(4):
            a.i("v_perm_b32 v%d, v%d, v%d, s%d" % (A0 + 4 + p, 12 + (2 * p + 1) * 4 + q, 12 + (2 * p) * 4 + q, sSELHI))
    a.i("s_cmp_ge_u32 s3, 8")
    a.br("s_cbranch_scc1 L_p1gu")
    for q in range(4):
        A0 = KV + q * 16
        a.i("v_mfma_f32_16x16x32_bf16 %s, %s, v[44:47], 0" % (v(A0 + 8, 4), v(A0, 4)))
        a.i("v_mfma_f32_16x16x32_bf16 %s, %s, v[44:47], 0" % (v(A0 + 12, 4), v(A0 + 4, 4)))
    for q in range(4):
        A0 = KV + q * 16
        for r in range(4):
            a.i("ds_write2_b32 v7, v%d, v%d offset0:%d offset1:%d" % (A0 + 8 + r, A0 + 12 + r, 8 * r + 2 * q, 8 * r + 2 * q + 1))
    a.br("s_branch L_p1j")
    a.label("L_p1gu")
    for q in range(4):
        A0 = KV + q * 16
        a.i("v_mfma_f32_16x16x32_bf16 %s, v[44:47], %s, 0" % (v(A0 + 8, 4), v(A0, 4)))
        a.i("v_mfma_f32_16x16x32_bf16 %s, v[44:47], %s, 0" % (v(A0 + 12, 4), v(A0 + 4, 4)))
    for q in range(4):
        A0 = KV + q * 16
        for h in range(2):
            a.i("ds_write_b128 v7, %s offset:%d" % (v(A0 + 8 + 4 * h, 4), (2 * q + h) * 32))
    a.label("L_p1j")
    a.i("s_lshl_b32 s8, s%d, 2" % sMAT)
    a.i("s_add_u32 s8, s8, %d" % (CNT + C_P1))
    lds_inc_rtn("s8", 3, 4, 8)
    a.i("s_cmp_lg_u32 s8, 3")
    a.br("s_cbranch_scc1 L_kload")
    prio(3)
    a.i("v_lshrrev_b32 v3, 4, v0")
    a.i("v_mul_u32_u24 v3, 272, v3")
    a.i("v_and_b32 v4, 15, v0")
    a.i("v_lshl_add_u32 v3, v4, 4, v3")
    a.i("s_mul_i32 s8, s%d, %d" % (sMAT, 8 * 2176))
    a.i("s_add_u32 s8, s8, %d" % R1)
    a.i("v_add_u32 v3, s8, v3")
    for u in range(2):
        base = KV + u * 32
        for c in range(8):
            a.i("ds_read_b128 %s, v3 offset:%d" % (v(base + 4 * c, 4), c * 2176 + u * 4 * 272))
    q_addr(6, 4, 4)
    a.i("s_mul_i32 s5, s%d, %d" % (sSG, GSP))
    a.i("s_lshl_b32 s6, s%d, 11" % sCG)
    a.i("s_add_u32 s5, s5, s6")
    a.i("s_lshl_b32 s6, s%d, 19" % sMAT)
    a.i("s_add_u32 s5, s5, s6")
    a.i("s_movk_i32 s10, 1024")
    a.i("s_cmp_eq_u32 s%d, 0" % sMAT)
    a.i("s_cselect_b32 s4, s4, s5")
    a.i("s_cselect_b32 s10, 0x10000, s10")
    a.i("s_cselect_b64 vcc, -1, 0")
    a.i("v_cndmask_b32 v6, v%d, v6, vcc" % vOFFV)
    for u in range(2):
        base = KV + u * 32
        sb = 12 + u * 4
        a.i("s_waitcnt lgkmcnt(%d)" % (8 if u == 0 else 0))
        for c in (0, 2, 4, 6):
            for e in range(4):
                a.i("v_add_f32 v%d, v%d, v%d" % (base + 4 * c + e, base + 4 * c + e, base + 4 * c + 4 + e))
        for c in (0, 4):
            for e in range(4):
                a.i("v_add_f32 v%d, v%d, v%d" % (base + 4 * c + e, base + 4 * c + e, base + 4 * c + 8 + e))
        for e in range(4):
            a.i("v_add_f32 v%d, v%d, v%d" % (sb + e, base + e, base + 16 + e))
        for e in range(4):
            a.i("v_min_u32 v%d, -2, v%d" % (sb + e, sb + e))
        a.i("buffer_store_dwordx4 %s, v6, %s, s4 offen sc1" % (v(sb, 4), s(sWS, 4)))
        if u == 0:
            a.i("s_add_u32 s4, s4, s10")
    a.i("s_cmp_eq_u32 s%d, 0" % sMAT)
    a.i("s_cselect_b32 s4, 0x101, 1")
    lds_inc(C_PUB, 3, 4, val="s4")
    stamp(15)
    a.i("s_cmp_eq_u32 s%d, 0" % sMAT)
    a.br("s_cbranch_scc1 L_kload")
    a.label("L_arrb")
    a.i("s_waitcnt vmcnt(0)")
    lds_inc_rtn(C_B, 3, 4, 8)
    a.i("s_cmp_lt_u32 s2, 224")
    a.i("s_cselect_b32 s9, 5, 3")
    a.i("s_cmp_lg_u32 s8, s9")
    a.br("s_cbranch_scc1 L_kload")
    prio(3)
    arrive(1)
    stamp(18)

    a.label("L_kload")
    a.i("s_cmp_lt_u32 s3, 4")
    a.br("s_cbranch_scc1 L_comm")
    prio(0)
    a.i("s_movk_i32 s4, 0x%x" % cfg.get("hold", 0x100))
    a.i("s_cmp_lt_u32 s3, 8")
    a.i("s_cselect_b32 s4, 0x%x, s4" % cfg.get("hold4", 0x80100))
    a.i("s_cmp_lt_u32 s2, 224")
    a.i("s_cselect_b32 s4, s4, 0x100")
    a.i("s_cmp_eq_u32 s2, %d" % ROOT)
    a.i("s_cselect_b32 s4, 0x300, s4")
    l0, l1 = a.newlabel("L_sp"), a.newlabel("L_sp")
    a.i("v_mov_b32 v3, %d" % CNT)
    a.i("s_mov_b32 s%d, %d" % (sSPIN, SPIN_L))
    a.label(l0)
    a.i("ds_read_b32 v4, v3 offset:%d" % C_PUB)
    a.i("s_waitcnt lgkmcnt(0)")
    a.i("v_and_b32 v4, s4, v4")
    a.i("v_cmp_ne_u32 vcc, s4, v4")
    a.br("s_cbranch_vccz %s" % l1)
    a.i("s_sleep 1")
    a.i("s_sub_u32 s%d, s%d, 1" % (sSPIN, sSPIN))
    a.i("s_cmp_lg_u32 s%d, 0" % sSPIN)
    a.br("s_cbranch_scc1 %s" % l0)
    a.label(l1)
    if not WDLATE:
        a.i("s_cmp_ge_u32 s3, 8")
        a.br("s_cbranch_scc1 L_nowd")
        tw_dma(0)
    a.br("s_branch L_nowd")

    a.label("L_comm")
    prio(3)
    a.i("s_cmp_lg_u32 s3, 0")
    a.br("s_cbranch_scc1 L_mb_lds")
    a.i("s_cmp_eq_u32 s2, %d" % ROOT)
    a.br("s_cbranch_scc1 L_mb_done")
    if cfg.get("ms0", 0):
        a.i("s_sleep %d" % cfg["ms0"])
    mbox_pipe("L_mba", cfg.get("mpipe", 1), cfg.get("mslp", 6))
    lds_inc(C_PUB, 3, 4, val="0x200")
    stamp(16)
    a.br("s_branch L_mb_done")
    a.label("L_mb_lds")
    lds_spin(C_PUB, 0x200, 3, 4, sleep=1, mask=0x200)
    a.label("L_mb_done")
    a.i("s_lshl_b32 s4, s%d, 14" % sB)
    a.i("s_lshl_b32 s5, s%d, 12" % sKVH)
    a.i("s_add_u32 s4, s4, s5")
    a.i("s_lshl_b32 s5, s3, 10")
    a.i("s_add_u32 s4, s4, s5")
    a.i("s_add_u32 s4, s4, 0x%x" % QP)
    for sp in range(1, 4):
        a.i("s_add_u32 s%d, s4, %d" % (4 + sp, sp * 8 * 16384))
    a.i("v_lshrrev_b32 v3, 5, v0")
    a.i("v_mul_u32_u24 v3, 272, v3")
    a.i("v_and_b32 v4, 31, v0")
    a.i("v_lshl_add_u32 v3, v4, 3, v3")
    a.i("s_mul_i32 s8, s3, 544")
    a.i("v_add_u32 v3, s8, v3")
    vgather([(12 + sp * 4, ["buffer_load_dwordx4 %s, v%d, %s, s%d offen sc1" % (
        v(12 + sp * 4, 4), vOFFV, s(sWS, 4), 4 + sp)]) for sp in range(4)], 5, 6)
    for e in range(4):
        a.i("v_add_f32 v%d, v%d, v%d" % (12 + e, 12 + e, 16 + e))
        a.i("v_add_f32 v%d, v%d, v%d" % (20 + e, 20 + e, 24 + e))
    for e in range(4):
        a.i("v_add_f32 v%d, v%d, v%d" % (12 + e, 12 + e, 20 + e))
    bf16_round_pair(12, 12, 13)
    bf16_round_pair(13, 14, 15)
    a.i("ds_write_b64 v3, v[12:13] offset:%d" % QL)
    lds_inc(C_QRDY, 3, 4)
    prio(0)
    stamp(5)

    a.label("L_nowd")
    k_loads()
    lds_inc(C_KI, 3, 4)
    stamp(3)
    if diag == 1:
        a.i("s_waitcnt vmcnt(0)")
        stamp(17)
    lds_spin(C_QRDY, 4, 3, 4, sleep=2)

    a.label("L_kpass")
    stamp(6)
    Q, P, SD = 12, 20, 28
    a.i("v_and_b32 v3, 7, v0")
    a.i("v_mul_u32_u24 v3, 272, v3")
    a.i("v_bfe_u32 v4, v0, 3, 1")
    a.i("v_lshl_add_u32 v3, v4, 6, v3")
    a.i("v_lshrrev_b32 v4, 4, v0")
    a.i("v_lshl_add_u32 v3, v4, 4, v3")
    for j in range(2):
        a.i("ds_read_b128 %s, v3 offset:%d" % (v(Q + 4 * j, 4), QL + j * 128))
    for t in range(4):
        a.i("s_waitcnt vmcnt(%d)%s" % (12 - 4 * t, " lgkmcnt(0)" if t == 0 else ""))
        for j in range(2):
            for par in range(2):
                d = SD + 8 * t + 4 * par
                a.i("v_mfma_f32_16x16x32_bf16 %s, %s, %s, %s" % (
                    v(d, 4), v(KV + (t * 4 + par * 2 + j) * 4, 4), v(Q + 4 * j, 4), "0" if j == 0 else v(d, 4)))
    EARLYV = cfg.get("earlyv", 0)
    if EARLYV:
        a.i("s_cmp_ge_u32 s3, %d" % EARLYV)
        a.br("s_cbranch_scc1 L_nov1")
        lds_spin(C_KI, 16, 4, 5, sleep=1)
        v_loads()
        lds_inc(C_VI, 4, 5)
        stamp(8)
        a.label("L_nov1")
    S = []
    for t in range(4):
        for r in range(4):
            a.i("v_permlane32_swap_b32 v%d, v%d" % (SD + 8 * t + r, SD + 8 * t + 4 + r))
    for t in range(4):
        for r in range(4):
            a.i("v_add_f32_dpp v%d, v%d, v%d row_ror:8 row_mask:0xf bank_mask:0xf" % (SD + 8 * t + r, SD + 8 * t + 4 + r, SD + 8 * t + r))
            S.append(SD + 8 * t + r)

    for k in range(0, 16, 2):
        t = P + (k >> 1)
        bf16_round_pair(t, S[k], S[k + 1])
        unpack_lo(S[k], t)
        unpack_hi(S[k + 1], t)
        a.i("v_mul_f32 v%d, s%d, v%d" % (S[k], sSCALE, S[k]))
        a.i("v_mul_f32 v%d, s%d, v%d" % (S[k + 1], sSCALE, S[k + 1]))
        bf16_round_pair(t, S[k], S[k + 1])
        unpack_lo(S[k], t)
        unpack_hi(S[k + 1], t)
    a.i("v_max3_f32 v4, v%d, v%d, v%d" % (S[0], S[1], S[2]))
    for k in range(3, 15, 2):
        a.i("v_max3_f32 v4, v4, v%d, v%d" % (S[k], S[k + 1]))
    a.i("v_max_f32 v4, v4, v%d" % S[15])
    allreduce_rows("v_max_f32", 4, 5)
    a.i("v_mul_f32 v6, s%d, v4" % sLOG2E)
    for k in range(16):
        a.i("v_fma_f32 v%d, v%d, s%d, -v6" % (S[k], S[k], sLOG2E))
    for k in range(16):
        a.i("v_exp_f32 v%d, v%d" % (S[k], S[k]))
    a.i("v_add_f32 v5, v%d, v%d" % (S[0], S[1]))
    a.i("v_add_f32 v7, v%d, v%d" % (S[2], S[3]))
    for k in range(4, 16, 2):
        a.i("v_add_f32 v5, v5, v%d" % S[k])
        a.i("v_add_f32 v7, v7, v%d" % S[k + 1])
    a.i("v_add_f32 v5, v5, v7")
    allreduce_rows("v_add_f32", 5, 7)
    for p in range(8):
        bf16_round_pair(P + p, S[2 * p], S[2 * p + 1])
    a.i("v_lshlrev_b32 v3, 6, v0")
    a.i("s_lshl_b32 s4, s3, 2")
    a.i("v_add_u32 v7, s4, v3")
    a.i("s_mov_b64 exec, 0xff")
    a.i("ds_write_b32 v7, v6 offset:%d" % SM)
    a.i("ds_write_b32 v7, v5 offset:%d" % SL)
    a.i("s_mov_b64 exec, -1")
    lds_inc(C_M, 4, 5)
    stamp(7)
    a.i("s_cmp_lg_u32 s2, %d" % ROOTB)
    a.br("s_cbranch_scc1 L_notrootb")
    a.i("s_cmp_lg_u32 s3, 15")
    a.br("s_cbranch_scc1 L_notrootb")
    prio(3)
    root_bcast(1, "L_rbb")
    a.i("v_mov_b32 v3, 0")
    a.i("v_lshlrev_b32 v4, 2, v0")
    a.i("buffer_store_dword v3, v4, %s, 0 offen sc1" % s(sDBG, 4))
    prio(0)
    stamp(19)
    a.label("L_notrootb")
    if EARLYV:
        a.i("s_cmp_lt_u32 s3, %d" % EARLYV)
        a.br("s_cbranch_scc1 L_nov2")
    lds_spin(C_KI, 16, 4, 5, sleep=1)
    v_loads()
    lds_inc(C_VI, 4, 5)
    stamp(8)
    a.label("L_nov2")

    D = [28 + 4 * i for i in range(8)]
    PT = 12

    def pv_step(u):
        for q in range(4):
            for p in range(4):
                a.i("v_perm_b32 v%d, v%d, v%d, s%d" % (PT + p, KV + (8 * u + 2 * p + 1) * 4 + q, KV + (8 * u + 2 * p) * 4 + q, sSELLO))
            for p in range(4):
                a.i("v_perm_b32 v%d, v%d, v%d, s%d" % (PT + 4 + p, KV + (8 * u + 2 * p + 1) * 4 + q, KV + (8 * u + 2 * p) * 4 + q, sSELHI))
            for h in range(2):
                i = 2 * q + h
                a.i("v_mfma_f32_16x16x32_bf16 %s, %s, %s, %s" % (
                    v(D[i], 4), v(PT + 4 * h, 4), v(P + 4 * u, 4), "0" if u == 0 else v(D[i], 4)))

    a.i("v_and_b32 v3, 15, v0")
    a.i("v_mul_u32_u24 v4, 528, v3")
    a.i("v_lshrrev_b32 v5, 4, v0")
    a.i("v_lshl_add_u32 v4, v5, 7, v4")
    a.i("s_mul_i32 s4, s3, 4224")
    a.i("s_add_u32 s4, s4, %d" % ORED)
    a.i("v_add_u32 v4, s4, v4")
    a.i("v_cmp_gt_u32 vcc, 8, v3")
    a.i("v_mov_b32 v5, %d" % DUMP)
    a.i("v_cndmask_b32 v4, v5, v4, vcc")
    a.i("s_lshl_b32 s4, 1, s3")
    a.i("v_mov_b32 v5, %d" % CNT)
    a.i("v_mov_b32 v6, s4")
    a.i("s_waitcnt vmcnt(8)")
    pv_step(0)
    a.i("s_waitcnt vmcnt(0)")
    stamp(9)
    prio(3)
    pv_step(1)
    for i in range(8):
        a.i("ds_write_b128 v4, %s offset:%d" % (v(D[i], 4), i * 16))
    a.i("s_mov_b64 exec, 1")
    a.i("ds_add_u32 v5, v6 offset:%d" % C_PVM)
    a.i("s_mov_b64 exec, -1")
    stamp(10)
    a.i("s_cmp_ge_u32 s3, 12")
    a.br("s_cbranch_scc1 L_exit")
    a.i("s_cmp_ge_u32 s3, 8")
    a.br("s_cbranch_scc1 L_reducer")
    a.i("s_cmp_ge_u32 s3, 4")
    a.br("s_cbranch_scc1 L_tail")
    a.i("s_cmp_eq_u32 s3, 0")
    a.br("s_cbranch_scc1 L_hjob")
    a.i("s_cmp_lg_u32 s3, 3")
    a.br("s_cbranch_scc1 L_gather")

    lds_spin(C_M, 16, 4, 5, sleep=1)
    a.i("v_and_b32 v3, 7, v0")
    a.i("v_lshlrev_b32 v9, 6, v3")
    a.i("v_lshrrev_b32 v8, 4, v0")
    a.i("v_lshl_add_u32 v9, v8, 4, v9")
    a.i("ds_read_b128 v[44:47], v9 offset:%d" % SM)
    a.i("ds_read_b128 v[48:51], v9 offset:%d" % SL)
    a.i("v_lshrrev_b32 v8, 3, v0")
    a.i("v_lshlrev_b32 v8, 7, v8")
    a.i("v_lshl_add_u32 v8, v3, 3, v8")
    a.i("s_and_b32 s5, s%d, 0xf8" % sCH)
    a.i("s_lshl_b32 s5, s5, 7")
    a.i("s_add_u32 s5, s5, 0x%x" % ST)
    a.i("s_lshl_b32 s6, s%d, 7" % sCH)
    a.i("s_add_u32 s6, s6, 0x%x" % ST)
    a.i("s_waitcnt lgkmcnt(0)")
    a.i("v_max3_f32 v6, v44, v45, v46")
    a.i("v_max_f32 v6, v6, v47")
    allreduce_rows("v_max_f32", 6, 7)
    for k in range(4):
        a.i("v_sub_f32 v%d, v%d, v6" % (52 + k, 44 + k))
    for k in range(4):
        a.i("v_exp_f32 v%d, v%d" % (52 + k, 52 + k))
    a.i("v_mul_f32 v7, v52, v48")
    for k in range(1, 4):
        a.i("v_fmac_f32 v7, v%d, v%d" % (52 + k, 48 + k))
    allreduce_rows("v_add_f32", 7, 4)
    a.i("v_min_u32 v6, -2, v6")
    a.i("v_min_u32 v7, -2, v7")
    a.i("s_mov_b64 exec, 0xff")
    a.i("buffer_store_dwordx2 v[6:7], v8, %s, s6 offen sc1" % s(sWS, 4))
    a.i("s_mov_b64 exec, -1")
    a.i("s_mov_b32 s%d, %d" % (sSPIN, SPIN_G))
    a.label("L_poll_st")
    a.i("buffer_load_dwordx2 v[4:5], v8, %s, s5 offen sc1" % s(sWS, 4))
    a.i("s_waitcnt vmcnt(0)")
    a.i("v_max_u32 v6, v4, v5")
    a.i("v_cmp_eq_u32 vcc, -1, v6")
    a.br("s_cbranch_vccz L_poll_st_done")
    a.i("s_sleep 4")
    a.i("s_sub_u32 s%d, s%d, 1" % (sSPIN, sSPIN))
    a.i("s_cmp_lg_u32 s%d, 0" % sSPIN)
    a.br("s_cbranch_scc1 L_poll_st")
    a.label("L_poll_st_done")
    a.i("v_max_f32_dpp v6, v4, v4 row_ror:8 row_mask:0xf bank_mask:0xf")
    allreduce_rows("v_max_f32", 6, 7)
    a.i("v_sub_f32 v4, v4, v6")
    a.i("v_exp_f32 v4, v4")
    a.i("v_mul_f32 v4, v4, v5")
    a.i("v_add_f32_dpp v4, v4, v4 row_ror:8 row_mask:0xf bank_mask:0xf")
    allreduce_rows("v_add_f32", 4, 7)
    a.i("v_rcp_f32 v4, v4")
    for k in range(4):
        a.i("v_sub_f32 v%d, v%d, v6" % (52 + k, 44 + k))
    for k in range(4):
        a.i("v_exp_f32 v%d, v%d" % (52 + k, 52 + k))
    for k in range(4):
        a.i("v_mul_f32 v%d, v%d, v4" % (52 + k, 52 + k))
    a.i("ds_write_b128 v9, v[52:55] offset:%d" % WT)
    lds_inc(C_WT, 3, 4)
    stamp(4)
    a.br("s_branch L_final")

    a.label("L_hjob")
    mbox_wait_b("L_mbb")
    lds_inc(C_WT, 3, 4)
    stamp(4)
    a.i("v_cmp_gt_u32 vcc, 48, v0")
    a.i("v_mov_b32 v6, 0x7ffffff0")
    a.i("v_cndmask_b32 v3, v6, v%d, vcc" % vOFFV)
    a.i("s_mul_i32 s4, s%d, 1792" % sKS)
    a.i("s_add_u32 s4, s4, 0x%x" % GP)
    for m in range(2):
        for sp in range(4):
            a.i("s_add_u32 s5, s4, 0x%x" % (m * (UP - GP) + sp * GSP))
            for u in range(2):
                a.i("buffer_load_dwordx4 %s, v%d, %s, s5 offen offset:%d sc1" % (
                    v(KV + m * 32 + (sp * 2 + u) * 4, 4), 3 if u else vOFFV, s(sWS, 4), u * 1024))
    a.i("v_and_b32 v5, 1, v0")
    a.i("v_lshlrev_b32 v5, 8, v5")
    a.i("v_and_b32 v4, 62, v0")
    a.i("v_add_u32 v5, v5, v4")
    a.i("s_mov_b32 s4, 0x3d372713")
    a.i("s_mov_b32 s5, 0xc0135761")
    a.i("s_waitcnt vmcnt(0)")
    G0, U0 = 28, 36
    for m, dst in ((0, G0), (1, U0)):
        for e in range(8):
            r0 = KV + m * 32 + e
            a.i("v_add_f32 v%d, v%d, v%d" % (r0, r0, r0 + 8))
            a.i("v_add_f32 v%d, v%d, v%d" % (r0 + 16, r0 + 16, r0 + 24))
            a.i("v_add_f32 v%d, v%d, v%d" % (dst + e, r0, r0 + 16))
    for e in range(0, 8, 2):
        g0, g1, u0, u1 = G0 + e, G0 + e + 1, U0 + e, U0 + 1 + e
        bf16_round_pair(12, g0, g1)
        bf16_round_pair(13, u0, u1)
        unpack_lo(g0, 12)
        unpack_hi(g1, 12)
        unpack_lo(u0, 13)
        unpack_hi(u1, 13)
        for gg, tt in ((g0, 14), (g1, 15)):
            a.i("v_mul_f32 v%d, v%d, v%d" % (tt, gg, gg))
            a.i("v_mul_f32 v%d, s4, v%d" % (tt, tt))
            a.i("v_fma_f32 v%d, v%d, v%d, v%d" % (tt, tt, gg, gg))
            a.i("v_mul_f32 v%d, s5, v%d" % (tt, tt))
            a.i("v_exp_f32 v%d, v%d" % (tt, tt))
            a.i("v_add_f32 v%d, 1.0, v%d" % (tt, tt))
            a.i("v_rcp_f32 v%d, v%d" % (tt, tt))
            a.i("v_mul_f32 v%d, v%d, v%d" % (tt, tt, gg))
        bf16_round_pair(14, 14, 15)
        unpack_hi(15, 14)
        unpack_lo(14, 14)
        a.i("v_mul_f32 v14, v14, v%d" % u0)
        a.i("v_mul_f32 v15, v15, v%d" % u1)
        bf16_round_pair(16 + e // 2, 14, 15)
        off = HL + (e >> 2) * 512 + (e & 3) * 64
        a.i("ds_write_b16 v5, v%d offset:%d" % (16 + e // 2, off))
        a.i("ds_write_b16_d16_hi v5, v%d offset:%d" % (16 + e // 2, off + 64))
    lds_inc(C_H, 3, 4)
    stamp(11)
    a.br("s_branch L_exit")

    a.label("L_gather")
    a.i("v_lshrrev_b32 v7, 4, v0")
    a.i("v_lshlrev_b32 v3, 6, v7")
    a.i("v_lshlrev_b32 v7, 17, v7")
    a.i("v_and_b32 v8, 15, v0")
    a.i("v_lshl_add_u32 v7, v8, 4, v7")
    a.i("s_lshr_b32 s6, s%d, 4" % sKS)
    a.i("s_lshl_b32 s6, s6, 15")
    a.i("s_and_b32 s7, s%d, 15" % sKS)
    a.i("s_lshl_b32 s7, s7, 8")
    a.i("s_add_u32 s6, s6, s7")
    a.i("s_sub_u32 s8, s3, 1")
    a.i("s_lshl_b32 s7, s8, 19")
    a.i("s_add_u32 s6, s6, s7")
    a.i("s_add_u32 s6, s6, 0x%x" % OB1)
    a.i("v_bfe_u32 v4, v0, 3, 1")
    a.i("v_lshl_add_u32 v3, v4, 9, v3")
    a.i("v_and_b32 v4, 7, v0")
    a.i("v_lshl_add_u32 v3, v4, 3, v3")
    a.i("s_lshl_b32 s8, s8, 8")
    a.i("v_add_u32 v3, s8, v3")
    for sp in range(8):
        a.i("s_add_u32 s%d, s6, %d" % (88 + sp, sp * 4096))
    lds_spin(C_RED, 4, 8, 9, sleep=1)
    stamp(11)
    a.i("v_mov_b32 v9, 1")

    def g_issue(k):
        a.i("buffer_load_dwordx4 %s, v7, %s, s%d offen sc1" % (v(KV + k * 4, 4), s(sWS, 4), 88 + k))

    def sum8(base):
        for t in range(0, 8, 2):
            for e in range(4):
                a.i("v_add_f32 v%d, v%d, v%d" % (28 + 2 * t + e, base + 4 * t + e, base + 4 * t + 4 + e))
        for t in (0, 8):
            for e in range(4):
                a.i("v_add_f32 v%d, v%d, v%d" % (28 + t + e, 28 + t + e, 28 + t + 4 + e))
        for e in range(4):
            a.i("v_add_f32 v%d, v%d, v%d" % (12 + e, 28 + e, 36 + e))

    free_poll(KV, g_issue, GSL, 4, 5, "L_go")
    sum8(KV)
    bf16_round_pair(12, 12, 13)
    bf16_round_pair(13, 14, 15)
    a.i("ds_write_b64 v3, v[12:13] offset:%d" % OL)
    a.i("s_mov_b64 exec, 1")
    a.i("ds_add_u32 v8, v9 offset:%d" % C_ORDY)
    a.i("s_mov_b64 exec, -1")
    stamp(13)
    a.br("s_branch L_exit")

    a.label("L_reducer")
    a.i("v_lshrrev_b32 v3, 5, v0")
    a.i("s_sub_u32 s6, s3, 8")
    a.i("s_lshl_b32 s4, s6, 1")
    a.i("v_add_u32 v3, s4, v3")
    a.i("v_lshlrev_b32 v6, 6, v3")
    a.i("v_mul_u32_u24 v3, 528, v3")
    a.i("v_and_b32 v4, 31, v0")
    a.i("v_lshl_add_u32 v3, v4, 4, v3")
    a.i("v_add_u32 v3, %d, v3" % ORED)
    a.i("s_lshl_b32 s4, s%d, 12" % sCH)
    a.i("s_lshl_b32 s5, s6, 10")
    a.i("s_add_u32 s4, s4, s5")
    a.i("s_add_u32 s4, s4, 0x%x" % OB1)
    lds_spin(C_WT, 2, 8, 9, sleep=1)
    for k in range(4):
        a.i("ds_read_b128 %s, v6 offset:%d" % (v(12 + 4 * k, 4), WT + k * 16))
    lds_spin(C_PVM, 0x0fff, 8, 9, sleep=1, mask=0x0fff)
    for w2 in range(12):
        a.i("ds_read_b128 %s, v3 offset:%d" % (v(KV + 4 * w2, 4), w2 * 4224))
    a.i("s_waitcnt lgkmcnt(0)")
    for e in range(4):
        a.i("v_mul_f32 v%d, v12, v%d" % (28 + e, KV + e))
    for w2 in range(1, 12):
        for e in range(4):
            a.i("v_fmac_f32 v%d, v%d, v%d" % (28 + e, 12 + w2, KV + 4 * w2 + e))
    stamp(11)
    lds_spin(C_PVM, 0xffff, 8, 9, sleep=0)
    for w2 in range(12, 16):
        a.i("ds_read_b128 %s, v3 offset:%d" % (v(KV + 4 * w2, 4), w2 * 4224))
    for w2 in range(12, 16):
        a.i("s_waitcnt lgkmcnt(%d)" % (15 - w2))
        for e in range(4):
            a.i("v_fmac_f32 v%d, v%d, v%d" % (28 + e, 12 + w2, KV + 4 * w2 + e))
    for e in range(4):
        a.i("v_min_u32 v%d, -2, v%d" % (28 + e, 28 + e))
    a.i("buffer_store_dwordx4 v[28:31], v%d, %s, s4 offen sc1" % (vOFFV, s(sWS, 4)))
    lds_inc(C_RED, 8, 9)
    stamp(13)
    a.br("s_branch L_exit")

    a.label("L_tail")
    prio(2)
    DT = [28, 32, 36, 40]
    AD = 44
    a.i("v_lshrrev_b32 v3, 4, v0")
    a.i("v_bfe_u32 v4, v0, 2, 2")
    a.i("v_lshl_add_u32 v5, v3, 3, v4")
    a.i("v_lshlrev_b32 v5, 7, v5")
    a.i("v_and_b32 v6, 3, v0")
    a.i("v_lshl_add_u32 v5, v6, 3, v5")
    a.i("v_and_b32 v4, 2, v4")
    a.i("v_and_b32 v6, 1, v3")
    a.i("v_lshl_add_u32 v4, v6, 2, v4")
    a.i("v_lshl_add_u32 v5, v4, 4, v5")
    a.i("s_sub_u32 s4, s3, 4")
    a.i("s_lshl_b32 s5, s4, 14")
    a.i("s_add_u32 s5, s5, %d" % TW)
    a.i("v_add_u32 v5, s5, v5")
    a.i("v_cmp_le_u32 vcc, 48, v0")
    a.i("v_mov_b32 v6, 2048")
    a.i("v_cndmask_b32 v6, 0, v6, vcc")
    for T in range(4):
        a.i("v_xor_b32 v%d, %d, v5" % (AD + T, 32 * T))
        a.i("v_sub_u32 v%d, v%d, v6" % (AD + 4 + T, AD + T))
    a.i("v_and_b32 v6, 7, v0")
    a.i("v_lshlrev_b32 v6, 6, v6")
    a.i("v_lshl_add_u32 v6, v3, 4, v6")
    a.i("s_lshl_b32 s12, s2, 13")
    a.i("s_lshl_b32 s13, s4, 11")
    a.i("s_add_u32 s12, s12, s13")
    a.i("s_add_u32 s12, s12, 0x%x" % OB2)

    def b_reads(wo):
        for st in range(2):
            for T in range(4):
                for hh in range(2):
                    ad = AD + T + (4 if (not wo and st == 1) else 0)
                    a.i("ds_read_b64_tr_b16 %s, v%d offset:%d" % (
                        v(KV + wo * 32 + (st * 4 + T) * 4 + 2 * hh, 2), ad, wo * 8192 + st * 4096 + hh * 512))

    def gemm(wo):
        for st in range(2):
            for T in range(4):
                a.i("v_mfma_f32_16x16x32_bf16 %s, %s, %s, %s" % (
                    v(DT[T], 4), v(12 + 4 * st, 4), v(KV + wo * 32 + (st * 4 + T) * 4, 4),
                    "0" if (not wo and st == 0) else v(DT[T], 4)))

    def wd_part():
        b_reads(0)
        lds_spin(C_H, 1, 8, 9, sleep=1)
        a.i("ds_read_b128 v[12:15], v6 offset:%d" % HL)
        a.i("ds_read_b128 v[16:19], v6 offset:%d" % (HL + 512))
        a.i("s_waitcnt lgkmcnt(0)")
        gemm(0)

    lds_spin(C_VI, VIG, 8, 9, sleep=1, cmp="gt")
    if WDLATE:
        tw_dma(0)
    tw_dma(1)
    stamp(11)
    if WDLATE:
        a.i("s_waitcnt vmcnt(8)")
    wd_part()
    a.i("s_waitcnt vmcnt(0)")
    prio(3)
    b_reads(1)
    stamp(12)
    lds_spin(C_ORDY, 2, 8, 9, sleep=0)
    a.i("ds_read_b128 v[12:15], v6 offset:%d" % OL)
    a.i("ds_read_b128 v[16:19], v6 offset:%d" % (OL + 512))
    a.i("s_waitcnt lgkmcnt(0)")
    gemm(1)
    a.i("s_mov_b32 exec_hi, 0")
    for T in range(4):
        for e in range(4):
            a.i("v_min_u32 v%d, -2, v%d" % (DT[T] + e, DT[T] + e))
        a.i("buffer_store_dwordx4 %s, v%d, %s, s12 offen offset:%d sc1" % (v(DT[T], 4), vOFFV, s(sWS, 4), T * 512))
    a.i("s_mov_b64 exec, -1")
    lds_inc(C_ST, 8, 9)
    stamp(13)
    a.br("s_branch L_exit")

    a.label("L_final")
    a.i("s_lshr_b32 s4, s%d, 2" % sKS)
    a.i("s_lshl_b32 s4, s4, 4")
    a.i("s_lshl_b32 s5, s%d, 8" % sCB)
    a.i("s_add_u32 s4, s4, s5")
    a.i("s_and_b32 s5, s%d, 1" % sKS)
    a.i("s_lshl_b32 s5, s5, 3")
    a.i("s_add_u32 s4, s4, s5")
    a.i("s_bfe_u32 s5, s%d, 0x10001" % sKS)
    a.i("s_lshl_b32 s5, s5, 12")
    a.i("s_add_u32 s4, s4, s5")
    a.i("s_lshl_b32 s4, s4, 1")
    a.i("v_lshrrev_b32 v3, 3, v0")
    a.i("v_and_b32 v4, 7, v0")
    a.i("v_lshlrev_b32 v5, 11, v3")
    a.i("v_lshl_add_u32 v5, v4, 1, v5")
    a.i("v_add_u32 v5, s4, v5")
    a.i("v_cmp_gt_u32 vcc, 32, v0")
    a.i("v_mov_b32 v6, 0x7ffffff0")
    a.i("v_cndmask_b32 v5, v6, v5, vcc")
    a.i("buffer_load_ushort v9, v5, %s, 0 offen" % s(sX, 4))
    a.i("v_lshlrev_b32 v6, 13, v3")
    a.i("v_lshl_add_u32 v6, v4, 4, v6")
    a.i("s_lshl_b32 s5, s%d, 19" % sCB)
    a.i("s_lshl_b32 s6, s%d, 7" % sKS)
    a.i("s_add_u32 s5, s5, s6")
    a.i("s_add_u32 s5, s5, 0x%x" % OB2)
    for t in range(8):
        a.i("s_add_u32 s%d, s5, %d" % (88 + t, t * 65536))
    lds_spin(C_ST, 4, 7, 8, sleep=1)
    stamp(11)

    def f_issue(k):
        a.i("buffer_load_dwordx4 %s, v6, %s, s%d offen sc1" % (v(KV + 4 * k, 4), s(sWS, 4), 88 + k))

    free_poll(KV, f_issue, FSL, 7, 8, "L_fo")
    sum8(KV)
    stamp(12)
    for e in range(4):
        a.i("v_add_f32_dpp v%d, v%d, v%d row_ror:8 row_mask:0xf bank_mask:0xf" % (12 + e, 12 + e, 12 + e))
    for e in range(4):
        allreduce_rows("v_add_f32", 12 + e, 16 + e)
    a.i("v_cmp_eq_u32 vcc, 1, v3")
    a.i("v_cndmask_b32 v7, v12, v13, vcc")
    a.i("v_cmp_eq_u32 vcc, 2, v3")
    a.i("v_cndmask_b32 v7, v7, v14, vcc")
    a.i("v_cmp_eq_u32 vcc, 3, v3")
    a.i("v_cndmask_b32 v7, v7, v15, vcc")
    a.i("v_lshlrev_b32 v9, 16, v9")
    a.i("v_add_f32 v7, v7, v9")
    bf16_round_pair(7, 7, 7)
    a.i("buffer_store_short v7, v5, %s, 0 offen" % s(sOUT, 4))
    stamp(13)

    a.label("L_exit")
    if diag == 1:
        a.i("s_lshl_b32 s4, s2, 4")
        a.i("s_add_u32 s4, s4, s3")
        a.i("s_lshl_b32 s4, s4, 8")
        a.i("s_add_u32 s4, s4, 0x%x" % STAMP)
        a.i("v_lshlrev_b32 v3, 2, v0")
        a.i("buffer_store_dword v%d, v3, %s, s4 offen" % (vSTAMP, s(sWS, 4)))
    a.label("L_end")
    a.i("s_endpgm")

    a.raw('.section .rodata,"a"')
    a.raw(".p2align 6")
    a.raw(".amdhsa_kernel " + NAME)
    a.raw("  .amdhsa_next_free_vgpr 128")
    a.raw("  .amdhsa_next_free_sgpr 102")
    a.raw("  .amdhsa_accum_offset 128")
    a.raw("  .amdhsa_group_segment_fixed_size 0")
    a.raw("  .amdhsa_kernarg_size 96")
    a.raw("  .amdhsa_user_sgpr_count 2")
    a.raw("  .amdhsa_user_sgpr_kernarg_segment_ptr 1")
    a.raw("  .amdhsa_system_sgpr_workgroup_id_x 1")
    a.raw(".end_amdhsa_kernel")
    return a.text()


if __name__ == "__main__":
    cfg = {}
    out = sys.argv[1]
    for kv in sys.argv[2:]:
        k, val = kv.split("=")
        cfg[k] = int(val, 0)
    open(out, "w").write(gen(cfg))
```

```python
import sys
from asmlib import Asm, v, s

NAME = "parallel_sum__gqa_block_cached__glu_gated_geglu__decode_kernel"

QP = 0x000000
GP = 0x080000
UP = 0x100000
OB1 = 0x200000
ST = 0x300000
MB = 0x380000
OB2 = 0x400000
STAMP = 0x800000
WS_SIZE = 0x1000000
GSP = 3584 * 32

DUMP = 0
QL = 512
HL = 2688
OL = 3712
SM = 4736
SL = 5248
WT = 5760
CNT = 6272
C_LN, C_RED, C_PUB, C_QRDY, C_KI, C_M, C_VI, C_PVM = 0, 4, 8, 12, 16, 20, 24, 28
C_WT, C_H, C_ORDY, C_B, C_P1 = 32, 36, 40, 44, 48
C_ST = 60
ROOTB = 254
ROOT = 255
XN = 6400
R1 = 22912
ORED = 6400
TW = 75776
LDS_SIZE = TW + 65536

sX, sK, sV, sW1, sWT, sWS, sOUT, sDBG = 40, 44, 48, 52, 56, 60, 64, 68
sSELLO, sSELHI = 72, 73
sT = 74
sCH, sB, sKVH, sS, sCB, sKS = 78, 79, 80, 81, 82, 83
sW1OFF, sPITCH, sSPIN, sLOG2E = 84, 85, 86, 87
sMAT, sPUBF = 88, 89
sK0, sCG, sSG = 96, 97, 98
sSCALE = 99
sMBX = 101
sT0, sTK, sTV = 100, 90, 91

vOFFK, vOFFV = 1, 2
vSTAMP = 11
KV = 64


def gen(cfg):
    a = Asm()
    NT = " nt" if cfg.get("nt", 1) else ""
    NTW = " nt" if cfg.get("ntw", 1) else ""
    NTT = " nt" if cfg.get("ntt", 1) else ""
    diag = cfg.get("diag", 0)
    SPIN_G = cfg.get("spin_g", 1 << 17)
    SPIN_L = cfg.get("spin_l", 1 << 21)
    PF = cfg.get("pf", 2)
    PRIO = cfg.get("prio", 1)
    WDLATE = cfg.get("wdlate", 0)
    VIG = cfg.get("vig", 16)
    GD = cfg.get("gd", 2)
    FD = cfg.get("fd", 2)
    GSL = cfg.get("gsl", 2)
    FSL = cfg.get("fsl", 2)

    def prio(n):
        if PRIO:
            a.i("s_setprio %d" % n)

    def stamp(idx):
        if not diag:
            return
        a.i("s_memrealtime s[14:15]")
        a.i("s_waitcnt lgkmcnt(0)")
        a.i("v_writelane_b32 v%d, s14, %d" % (vSTAMP, idx))

    def srd(d, p, size, off_lo=None):
        if off_lo is None:
            a.i("s_mov_b32 s%d, s%d" % (d, p))
            a.i("s_and_b32 s%d, s%d, 0xffff" % (d + 1, p + 1))
        else:
            a.i("s_add_u32 s%d, s%d, s%d" % (d, p, off_lo))
            a.i("s_addc_u32 s%d, s%d, 0" % (d + 1, p + 1))
            a.i("s_and_b32 s%d, s%d, 0xffff" % (d + 1, d + 1))
        a.i("s_mov_b32 s%d, 0x%x" % (d + 2, size))
        a.i("s_mov_b32 s%d, 0x00020000" % (d + 3))

    def bf16_round_pair(dst, x0, x1):
        a.i("v_cvt_pk_bf16_f32 v%d, v%d, v%d" % (dst, x0, x1))

    def unpack_lo(dst, src):
        a.i("v_lshlrev_b32 v%d, 16, v%d" % (dst, src))

    def unpack_hi(dst, src):
        a.i("v_and_b32 v%d, 0xffff0000, v%d" % (dst, src))

    def allreduce_rows(op, x, tmp, do16=True, do32=True):
        if do16:
            a.i("v_mov_b32 v%d, v%d" % (tmp, x))
            a.i("v_permlane16_swap_b32 v%d, v%d" % (x, tmp))
            a.i("%s v%d, v%d, v%d" % (op, x, x, tmp))
        if do32:
            a.i("v_mov_b32 v%d, v%d" % (tmp, x))
            a.i("v_permlane32_swap_b32 v%d, v%d" % (x, tmp))
            a.i("%s v%d, v%d, v%d" % (op, x, x, tmp))

    def dpp_reduce16(op, x, n=4):
        pats = ["quad_perm:[1,0,3,2]", "quad_perm:[2,3,0,1]", "row_half_mirror", "row_mirror"]
        for p in pats[:n]:
            a.i("%s_dpp v%d, v%d, v%d %s row_mask:0xf bank_mask:0xf" % (op, x, x, x, p))

    def lds_spin(off, val, va, vd, sleep=1, cmp="ne", mask=None):
        l0, l1 = a.newlabel("L_sp"), a.newlabel("L_sp")
        a.i("v_mov_b32 v%d, %d" % (va, CNT))
        a.i("s_mov_b32 s%d, %d" % (sSPIN, SPIN_L))
        a.label(l0)
        a.i("ds_read_b32 v%d, v%d offset:%d" % (vd, va, off))
        a.i("s_waitcnt lgkmcnt(0)")
        if mask is not None:
            a.i("v_and_b32 v%d, 0x%x, v%d" % (vd, mask, vd))
        a.i("v_cmp_%s_u32 vcc, %s, v%d" % (cmp, val if isinstance(val, str) else "0x%x" % val, vd))
        a.br("s_cbranch_vccz %s" % l1)
        if sleep:
            a.i("s_sleep %d" % sleep)
        a.i("s_sub_u32 s%d, s%d, 1" % (sSPIN, sSPIN))
        a.i("s_cmp_lg_u32 s%d, 0" % sSPIN)
        a.br("s_cbranch_scc1 %s" % l0)
        a.label(l1)

    def lds_inc(off, va, vd, val="1"):
        a.i("v_mov_b32 v%d, %d" % (va, CNT))
        a.i("v_mov_b32 v%d, %s" % (vd, val))
        a.i("s_mov_b64 exec, 1")
        a.i("ds_add_u32 v%d, v%d offset:%d" % (va, vd, off))
        a.i("s_mov_b64 exec, -1")

    def lds_inc_rtn(off, va, vd, sd):
        if isinstance(off, str):
            a.i("v_mov_b32 v%d, %s" % (va, off))
            off = 0
        else:
            a.i("v_mov_b32 v%d, %d" % (va, CNT))
        a.i("v_mov_b32 v%d, 1" % vd)
        a.i("s_mov_b64 exec, 1")
        a.i("ds_add_rtn_u32 v%d, v%d, v%d offset:%d" % (vd, va, vd, off))
        a.i("s_mov_b64 exec, -1")
        a.i("s_waitcnt lgkmcnt(0)")
        a.i("v_readfirstlane_b32 s%d, v%d" % (sd, vd))

    def check_regs(regs, t0, t1):
        a.i("v_max3_u32 v%d, v%d, v%d, v%d" % (t0, regs[0], regs[1], regs[2]))
        a.i("v_max3_u32 v%d, v%d, v%d, v%d" % (t1, regs[3], regs[4], regs[5]))
        k = 6
        while k + 4 <= len(regs):
            a.i("v_max3_u32 v%d, v%d, v%d, v%d" % (t0, t0, regs[k], regs[k + 1]))
            a.i("v_max3_u32 v%d, v%d, v%d, v%d" % (t1, t1, regs[k + 2], regs[k + 3]))
            k += 4
        assert len(regs) - k == 2
        a.i("v_max3_u32 v%d, v%d, v%d, v%d" % (t0, t0, regs[k], regs[k + 1]))
        a.i("v_max_u32 v%d, v%d, v%d" % (t0, t0, t1))
        a.i("v_cmp_eq_u32 vcc, -1, v%d" % t0)

    def vgather(loads, t0, t1):
        ltop, ldone = a.newlabel("L_vg"), a.newlabel("L_vg")
        for dst, ins in loads:
            for x in ins:
                a.i(x)
        a.i("s_mov_b32 s%d, %d" % (sSPIN, SPIN_G))
        a.label(ltop)
        a.i("s_waitcnt vmcnt(0)")
        check_regs([dst + e for dst, _ in loads for e in range(4)], t0, t1)
        a.br("s_cbranch_vccz %s" % ldone)
        a.i("s_sub_u32 s%d, s%d, 1" % (sSPIN, sSPIN))
        a.i("s_cmp_eq_u32 s%d, 0" % sSPIN)
        a.br("s_cbranch_scc1 %s" % ldone)
        for dst, ins in loads:
            lsk = a.newlabel("L_vs")
            a.i("v_max3_u32 v%d, v%d, v%d, v%d" % (t0, dst, dst + 1, dst + 2))
            a.i("v_max_u32 v%d, v%d, v%d" % (t0, t0, dst + 3))
            a.i("v_cmp_eq_u32 vcc, -1, v%d" % t0)
            a.br("s_cbranch_vccz %s" % lsk)
            for x in ins:
                a.i(x)
            a.label(lsk)
        a.br("s_branch %s" % ltop)
        a.label(ldone)

    def pipe_poll(bases, issue, finish, slp, t0, t1, tag):
        depth = len(bases)
        a.i("s_mov_b32 s%d, %d" % (sSPIN, SPIN_G))
        for k in range(depth - 1):
            issue(bases[k])
            a.i("s_sleep %d" % slp)
        a.label(tag + "_p")
        for k in range(depth):
            issue(bases[(k + depth - 1) % depth])
            a.i("s_waitcnt vmcnt(%d)" % (8 * (depth - 1)))
            check_regs([bases[k] + e for e in range(32)], t0, t1)
            a.br("s_cbranch_vccz %s_f%d" % (tag, k))
        a.i("s_sub_u32 s%d, s%d, 1" % (sSPIN, sSPIN))
        a.i("s_cmp_lg_u32 s%d, 0" % sSPIN)
        a.br("s_cbranch_scc1 %s_p" % tag)
        a.i("s_waitcnt vmcnt(0)")
        for k in range(depth - 1, -1, -1):
            a.label("%s_f%d" % (tag, k))
            finish(bases[k])
            if k:
                a.br("s_branch %s_d" % tag)
        a.label(tag + "_d")

    def free_poll(base, issue1, slp, t0, t1, tag, thr=24):
        for e in range(32):
            a.i("v_mov_b32 v%d, -1" % (base + e))
        for k in range(8):
            issue1(k)
        a.i("s_mov_b32 s%d, %d" % (sSPIN, SPIN_G * 4))
        a.i("s_waitcnt vmcnt(0)")
        a.label(tag + "_p")
        check_regs([base + e for e in range(32)], t0, t1)
        a.br("s_cbranch_vccz %s_d" % tag)
        for k in range(8):
            lsk = a.newlabel("L_fs")
            d = base + 4 * k
            a.i("v_max3_u32 v%d, v%d, v%d, v%d" % (t0, d, d + 1, d + 2))
            a.i("v_max_u32 v%d, v%d, v%d" % (t0, t0, d + 3))
            a.i("v_cmp_eq_u32 vcc, -1, v%d" % t0)
            a.br("s_cbranch_vccz %s" % lsk)
            a.i("s_mov_b64 exec, vcc")
            issue1(k)
            a.i("s_mov_b64 exec, -1")
            a.label(lsk)
        if slp:
            a.i("s_sleep %d" % slp)
        a.i("s_waitcnt vmcnt(%d)" % thr)
        a.i("s_sub_u32 s%d, s%d, 1" % (sSPIN, sSPIN))
        a.i("s_cmp_lg_u32 s%d, 0" % sSPIN)
        a.br("s_cbranch_scc1 %s_p" % tag)
        a.label(tag + "_d")

    def pace(sreg):
        l0, l1, l2 = a.newlabel("L_pc"), a.newlabel("L_pc"), a.newlabel("L_pc")
        a.label(l0)
        a.i("s_memrealtime s[14:15]")
        a.i("s_waitcnt lgkmcnt(0)")
        a.i("s_sub_u32 s15, s%d, s14" % sreg)
        a.i("s_sub_u32 s15, s15, 1")
        a.i("s_cmp_ge_u32 s15, 8000")
        a.br("s_cbranch_scc1 %s" % l1)
        a.i("s_cmp_ge_u32 s15, 40")
        a.br("s_cbranch_scc1 %s" % l2)
        a.i("s_sleep 1")
        a.br("s_branch %s" % l0)
        a.label(l2)
        a.i("s_sleep 8")
        a.br("s_branch %s" % l0)
        a.label(l1)

    WDL = cfg.get("wdl", 0)
    WOPOS = cfg.get("wopos", 4)
    WOU = 0.5 + (0.4375 if WDL else 0)

    def sched(tau, k0):
        vord = [int(c) for c in "%04d" % cfg.get("vord", 1230)]
        wdu = 0 if WDL else 0.4375
        ak = [k0 + (4 * (1 + wdu) + 8) * tau, k0, k0 + 4 * (1 + wdu) * tau, k0 + (4 * (1 + wdu) + 4) * tau]
        v0 = k0 + (4 * (1 + wdu) + 12) * tau + cfg.get("vgap", 0)
        av = [0] * 4
        for pos, c in enumerate(vord):
            av[c] = v0 + 4 * pos * tau + (4 * WOU * tau if pos >= WOPOS else 0) + (cfg.get("hgap", 0) if pos >= 2 else 0)
        wo = v0 + (4 * WOPOS - cfg.get("woe", 0) / 10.0) * tau + cfg.get("hgap", 0)
        return [int(round(x)) for x in ak], [int(round(x)) for x in av], int(round(wo))

    TAU = cfg.get("tau", 570) / 10.0
    K0T = cfg.get("k0", 170)
    LTAU = cfg.get("ltau", cfg.get("tau", 570)) / 10.0
    LK0T = cfg.get("lk0", K0T)
    LASTC = cfg.get("vord", 1230) % 10

    BYTEA = cfg.get("bytea", 0)

    def arrive(phase):
        if BYTEA:
            a.i("v_mov_b32 v4, %d" % (1 + 2 * phase))
            a.i("s_mov_b64 exec, 1")
            a.i("buffer_store_byte v4, off, %s, s2 sc1" % s(sDBG, 4))
            a.i("s_mov_b64 exec, -1")
            return
        a.i("s_and_b32 s6, s2, 15")
        a.i("s_lshl_b32 s6, s6, 2")
        a.i("s_bfe_u32 s7, s2, 0x10004")
        a.i("s_lshl_b32 s7, s7, 7")
        a.i("s_add_u32 s6, s6, s7")
        a.i("v_mov_b32 v4, 0x%x" % (1 << (8 * phase)))
        a.i("s_mov_b64 exec, 1")
        a.i("buffer_atomic_add v4, off, %s, s6 offset:64 sc1" % s(sDBG, 4))
        a.i("s_mov_b64 exec, -1")

    def root_bcast(phase, tag):
        if BYTEA:
            a.i("v_lshlrev_b32 v3, 2, v0")
            msk = val = 0x01010101 << phase
        else:
            a.i("v_and_b32 v3, 15, v0")
            a.i("v_lshlrev_b32 v3, 2, v3")
            a.i("v_bfe_u32 v4, v0, 4, 1")
            a.i("v_lshl_add_u32 v3, v4, 7, v3")
            a.i("v_add_u32 v3, 64, v3")
            msk, val = (0xff, 8) if phase == 0 else (0xffff, 0x808)
        a.i("s_mov_b32 s%d, %d" % (sSPIN, SPIN_G))
        a.i("s_mov_b32 s4, 0x%x" % val)
        if phase == 0 and cfg.get("rs0", 0):
            a.i("s_sleep %d" % cfg["rs0"])
        a.label(tag + "_p")
        a.i("buffer_load_dword v4, v3, %s, 0 offen sc1" % s(sDBG, 4))
        a.i("s_waitcnt vmcnt(0)")
        a.i("v_and_b32 v4, 0x%x, v4" % msk)
        a.i("v_cmp_ne_u32 vcc, s4, v4")
        a.br("s_cbranch_vccz %s_d" % tag)
        a.i("s_sleep %d" % (cfg.get("rsleep", 2) if phase == 0 else 8))
        a.i("s_sub_u32 s%d, s%d, 1" % (sSPIN, sSPIN))
        a.i("s_cmp_lg_u32 s%d, 0" % sSPIN)
        a.br("s_cbranch_scc1 %s_p" % tag)
        a.label(tag + "_d")
        for k in range(4):
            a.i("v_mov_b32 v%d, %d" % (56 + k, phase + 1))
        a.i("v_lshlrev_b32 v3, 7, v0")
        a.i("s_mov_b32 s4, 0x%x" % (MB + phase * 64))
        a.i("buffer_store_dwordx4 v[56:59], v3, %s, s4 offen sc1" % s(sWS, 4))

    def mbox_pipe(tag, depth=4, slp=6):
        a.i("s_mov_b32 s%d, %d" % (sSPIN, SPIN_G))
        a.i("s_mov_b64 exec, 1")
        for k in range(depth - 1):
            a.i("buffer_load_dword v%d, off, %s, s%d sc1" % (60 + k, s(sWS, 4), sMBX))
            a.i("s_sleep %d" % slp)
        a.label(tag + "_p")
        for k in range(depth):
            a.i("buffer_load_dword v%d, off, %s, s%d sc1" % (60 + (k + depth - 1) % depth, s(sWS, 4), sMBX))
            a.i("s_waitcnt vmcnt(%d)" % (depth - 1))
            a.i("v_cmp_ne_u32 vcc, 1, v%d" % (60 + k))
            a.br("s_cbranch_vccz %s_d" % tag)
            a.i("s_sleep %d" % slp)
        a.i("s_sub_u32 s%d, s%d, 1" % (sSPIN, sSPIN))
        a.i("s_cmp_lg_u32 s%d, 0" % sSPIN)
        a.br("s_cbranch_scc1 %s_p" % tag)
        a.label(tag + "_d")
        a.i("s_mov_b64 exec, -1")

    def mbox_wait_b(tag):
        a.i("s_mov_b32 s%d, %d" % (sSPIN, SPIN_G))
        a.i("s_mov_b64 exec, 1")
        a.label(tag + "_p")
        a.i("buffer_load_dword v4, off, %s, s%d offset:64 sc1" % (s(sWS, 4), sMBX))
        a.i("s_waitcnt vmcnt(0)")
        a.i("v_cmp_ne_u32 vcc, 2, v4")
        a.br("s_cbranch_vccz %s_d" % tag)
        a.i("s_sleep 4")
        a.i("s_sub_u32 s%d, s%d, 1" % (sSPIN, sSPIN))
        a.i("s_cmp_lg_u32 s%d, 0" % sSPIN)
        a.br("s_cbranch_scc1 %s_p" % tag)
        a.label(tag + "_d")
        a.i("s_mov_b64 exec, -1")

    def q_addr(vq, t0, sd):
        a.i("v_and_b32 v%d, 15, v0" % t0)
        a.i("v_lshrrev_b32 v%d, 4, v0" % vq)
        a.i("v_lshlrev_b32 v%d, 14, v%d" % (vq, vq))
        a.i("v_lshl_add_u32 v%d, v%d, 4, v%d" % (vq, t0, vq))
        a.i("s_lshl_b32 s%d, s%d, 9" % (sd, sCB))
        a.i("s_add_u32 s%d, s%d, s%d" % (sd, sd, sKS))
        a.i("s_lshl_b32 s%d, s%d, 8" % (sd, sd))
        if QP:
            a.i("s_add_u32 s%d, s%d, 0x%x" % (sd, sd, QP))

    hdr = open("parallel_sum__gqa_block_cached__glu_gated_geglu__decode.s.ref").read().split("\n")
    for l in hdr:
        if l.startswith("; @launch"):
            break
        a.raw(l)
    a.raw("; @launch grid=(256,1,1) block=(1024,1,1) lds=%d" % LDS_SIZE)
    a.raw('.amdgcn_target "amdgcn-amd-amdhsa--gfx950"')
    a.raw(".text")
    a.raw(".globl " + NAME)
    a.raw(".p2align 8")
    a.raw(".type %s,@function" % NAME)
    a.raw(NAME + ":")

    a.i("s_memrealtime s[94:95]")
    a.i("s_cmp_ge_u32 s2, 256")
    a.i("s_cbranch_scc1 L_end")
    a.i("s_load_dwordx16 s[16:31], s[0:1], 0")
    a.i("s_load_dwordx8 s[32:39], s[0:1], 64")
    a.i("v_lshrrev_b32 v1, 6, v0")
    a.i("v_readfirstlane_b32 s3, v1")
    a.i("v_and_b32 v0, 63, v0")
    if diag:
        a.i("v_mov_b32 v%d, 0" % vSTAMP)
    a.i("s_and_b32 s4, s2, 31")
    a.i("s_lshr_b32 s%d, s2, 5" % sS)
    a.i("s_lshl_b32 s%d, s4, 3" % sCH)
    a.i("s_add_u32 s%d, s%d, s%d" % (sCH, sCH, sS))
    a.i("s_lshr_b32 s%d, s4, 2" % sB)
    a.i("s_and_b32 s%d, s4, 3" % sKVH)
    a.i("s_lshr_b32 s%d, s2, 6" % sCB)
    a.i("s_and_b32 s%d, s2, 63" % sKS)
    a.i("s_mul_i32 s%d, s2, 1171" % sSG)
    a.i("s_lshr_b32 s%d, s%d, 16" % (sSG, sSG))
    a.i("s_mul_i32 s5, s%d, 56" % sSG)
    a.i("s_sub_u32 s%d, s2, s5" % sCG)
    a.i("s_sub_u32 s8, s3, 4")
    a.i("s_lshr_b32 s%d, s8, 2" % sMAT)
    a.i("s_and_b32 s10, s8, 3")
    a.i("s_movk_i32 s%d, 7168" % sPITCH)
    a.i("s_cmp_eq_u32 s%d, 0" % sMAT)
    a.i("s_cselect_b32 s%d, 8192, s%d" % (sPITCH, sPITCH))
    a.i("s_cselect_b32 s11, s%d, s%d" % (sCB, sSG))
    a.i("s_cselect_b32 s12, s%d, s%d" % (sKS, sCG))
    a.i("s_lshl_b32 s%d, s11, 8" % sK0)
    a.i("s_lshl_b32 s13, s10, 6")
    a.i("s_add_u32 s%d, s%d, s13" % (sK0, sK0))
    a.i("s_mul_i32 s%d, s%d, s%d" % (sW1OFF, sK0, sPITCH))
    a.i("s_lshl_b32 s12, s12, 7")
    a.i("s_add_u32 s%d, s%d, s12" % (sW1OFF, sW1OFF))
    a.i("s_lshl_b32 s12, s%d, 18" % sCH)
    a.i("v_lshrrev_b32 v3, 4, v0")
    a.i("v_lshlrev_b32 v3, 3, v3")
    a.i("v_bfe_u32 v4, v0, 3, 1")
    a.i("v_lshl_add_u32 v3, v4, 5, v3")
    a.i("v_mul_lo_u32 v3, v3, s%d" % sPITCH)
    a.i("v_and_b32 v4, 7, v0")
    a.i("v_lshl_add_u32 v3, v4, 4, v3")
    a.i("v_lshrrev_b32 v5, 5, v0")
    a.i("v_lshlrev_b32 v5, 11, v5")
    a.i("v_and_b32 v4, 31, v0")
    a.i("v_lshl_add_u32 v5, v4, 4, v5")
    a.i("s_lshl_b32 s13, s3, 12")
    a.i("s_lshr_b32 s6, s2, 2")
    a.i("s_lshl_b32 s6, s6, 7")
    a.i("s_and_b32 s7, s2, 3")
    a.i("s_lshl_b32 s7, s7, 2")
    a.i("s_add_u32 s6, s6, s7")
    a.i("s_add_u32 s%d, s6, 0x%x" % (sMBX, MB))
    a.i("v_lshlrev_b32 v%d, 4, v0" % vOFFV)
    for k in range(4):
        a.i("v_mov_b32 v%d, -1" % (60 + k))
    a.i("v_lshlrev_b32 v6, 2, v0")
    q_addr(56, 7, 4)
    a.i("s_lshl_b32 s6, s%d, 7" % sCH)
    a.i("s_add_u32 s6, s6, 0x%x" % ST)
    a.i("v_add_u32 v57, s6, v6")
    a.i("v_writelane_b32 v57, s%d, 16" % sMBX)
    a.i("s_add_u32 s6, s%d, 64" % sMBX)
    a.i("v_writelane_b32 v57, s6, 17")
    a.i("s_cmp_lg_u32 s3, 0")
    a.br("s_cbranch_scc1 L_noinit")
    a.i("v_mov_b32 v7, 0")
    a.i("s_mov_b64 exec, 0xffff")
    a.i("ds_write_b32 v6, v7 offset:%d" % CNT)
    a.i("s_mov_b64 exec, -1")
    a.label("L_noinit")
    a.i("s_waitcnt lgkmcnt(0)")
    a.i("s_lshr_b32 s14, s2, 3")
    a.i("s_mul_i32 s14, s14, %d" % cfg.get("skew", 0))
    a.i("s_lshr_b32 s14, s14, 4")
    a.i("s_sub_u32 s%d, s94, s14" % sT0)
    if diag:
        a.i("v_writelane_b32 v%d, s94, 23" % vSTAMP)
        stamp(22)
    srd(sX, 16, 16384)
    srd(sWS, 38, WS_SIZE)
    a.i("s_cmp_lt_u32 s3, 4")
    a.br("s_cbranch_scc1 L_xload")
    a.i("s_cmp_eq_u32 s%d, 1" % sMAT)
    a.i("s_cselect_b32 s%d, s28, s30" % sW1)
    a.i("s_cselect_b32 s%d, s29, s31" % (sW1 + 1))
    a.i("s_mov_b32 s%d, 0x700000" % (sW1 + 2))
    a.i("s_cmp_eq_u32 s%d, 0" % sMAT)
    a.i("s_cselect_b32 s%d, s22, s%d" % (sW1, sW1))
    a.i("s_cselect_b32 s%d, s23, s%d" % (sW1 + 1, sW1 + 1))
    a.i("s_cselect_b32 s%d, 0x800000, s%d" % (sW1 + 2, sW1 + 2))
    a.i("s_and_b32 s%d, s%d, 0xffff" % (sW1 + 1, sW1 + 1))
    a.i("s_mov_b32 s%d, 0x00020000" % (sW1 + 3))
    a.i("s_cmp_lt_u32 s3, 8")
    a.br("s_cbranch_scc1 L_w1go")
    a.i("s_barrier")
    a.i("s_cmp_ge_u32 s2, 224")
    a.br("s_cbranch_scc1 L_pro3")
    a.label("L_w1go")
    a.i("s_mov_b32 s4, s%d" % sW1OFF)
    for j in range(8):
        a.i("buffer_load_dwordx4 %s, v3, %s, s4 offen%s" % (v(12 + 4 * j, 4), s(sW1, 4), NTW))
        if j < 7:
            a.i("s_add_u32 s4, s4, s%d" % sPITCH)
    a.i("s_cmp_lt_u32 s3, 8")
    a.br("s_cbranch_scc1 L_pro2")
    lds_inc(C_PUB, 6, 7, val="0x10000")
    a.br("s_branch L_pro3")
    a.label("L_xload")
    for u in range(4):
        a.i("buffer_load_dwordx4 %s, v5, %s, s13 offen offset:%d" % (v(12 + 4 * u, 4), s(sX, 4), u * 512))
    a.i("s_cmp_lg_u32 s3, 0")
    a.br("s_cbranch_scc1 L_pro2")
    a.i("buffer_store_dwordx4 v[60:63], v56, %s, s4 offen sc1" % s(sWS, 4))
    a.i("s_add_u32 s4, s4, 65536")
    a.i("buffer_store_dwordx4 v[60:63], v56, %s, s4 offen sc1" % s(sWS, 4))
    a.i("s_mov_b64 exec, 0x3ffff")
    a.i("buffer_store_dword v60, v57, %s, 0 offen sc1" % s(sWS, 4))
    a.i("s_mov_b64 exec, -1")
    a.label("L_pro2")
    prio(3)
    a.i("s_barrier")
    a.label("L_pro3")
    srd(sK, 18, 0x40000, off_lo=12)
    srd(sV, 20, 0x40000, off_lo=12)
    srd(sOUT, 34, 16384)
    srd(sDBG, 36, 256)
    a.i("s_mov_b32 s%d, 0x05040100" % sSELLO)
    a.i("s_mov_b32 s%d, 0x07060302" % sSELHI)
    a.i("s_mov_b32 s%d, 0x3fb8aa3b" % sLOG2E)
    a.i("s_mov_b32 s%d, 0x3db504f3" % sSCALE)
    a.i("v_and_b32 v6, 3, v0")
    a.i("v_lshlrev_b32 v6, 10, v6")
    a.i("v_bfe_u32 v4, v0, 2, 1")
    a.i("v_lshl_add_u32 v6, v4, 8, v6")
    a.i("v_bfe_u32 v4, v0, 3, 1")
    a.i("v_lshl_add_u32 v6, v4, 6, v6")
    a.i("v_lshrrev_b32 v4, 4, v0")
    a.i("v_lshl_add_u32 v%d, v4, 4, v6" % vOFFK)
    a.i("s_lshl_b32 s6, s3, 14")
    a.i("s_add_u32 s7, s3, s2")
    for t in range(4):
        a.i("s_add_u32 s8, s7, %d" % t)
        a.i("s_and_b32 s8, s8, 3")
        a.i("s_lshl_b32 s8, s8, 12")
        a.i("s_add_u32 s%d, s6, s8" % (sT + t))
    hk, hv, hwo = sched(TAU, K0T)
    lk, lv, lwo = sched(LTAU, LK0T)
    a.i("s_lshr_b32 s4, s3, 2")
    a.i("s_lshl_b32 s4, s4, 4")
    a.i("s_and_b32 s5, s3, 3")
    for dst, th, tl in ((sTK, hk, lk), (sTV, hv, lv)):
        a.i("s_cmp_lt_u32 s2, 224")
        a.i("s_mov_b32 s6, 0x%x" % (tl[0] | tl[1] << 16))
        a.i("s_mov_b32 s7, 0x%x" % (tl[2] | tl[3] << 16))
        a.i("s_cselect_b32 s6, 0x%x, s6" % (th[0] | th[1] << 16))
        a.i("s_cselect_b32 s7, 0x%x, s7" % (th[2] | th[3] << 16))
        a.i("s_cselect_b32 s8, %d, %d" % (int(round(TAU * 16)), int(round(LTAU * 16))) if int(round(TAU * 16)) != int(round(LTAU * 16)) and False else "s_movk_i32 s8, %d" % int(round(LTAU * 16)))
        a.i("s_cselect_b32 s8, %d, s8" % int(round(TAU * 16)))
        a.i("s_lshr_b64 s[6:7], s[6:7], s4")
        a.i("s_and_b32 s6, s6, 0xffff")
        a.i("s_mul_i32 s7, s5, s8")
        if dst == sTK and not WDL:
            a.i("s_mul_i32 s8, s7, 23")
            a.i("s_lshr_b32 s8, s8, 4")
            a.i("s_cmp_eq_u32 s4, 16")
            a.i("s_cselect_b32 s7, s8, s7")
        a.i("s_lshr_b32 s7, s7, 4")
        a.i("s_add_u32 s6, s6, s7")
        a.i("s_add_u32 s%d, s6, s%d" % (dst, sT0))
    stamp(0)
    if diag == 1:
        a.i("s_getreg_b32 s14, hwreg(HW_REG_XCC_ID)")
        a.i("v_writelane_b32 v%d, s14, 40" % vSTAMP)

    def k_loads():
        for t in range(4):
            for par in range(2):
                for j in range(2):
                    a.i("buffer_load_dwordx4 %s, v%d, %s, s%d offen offset:%d%s" % (
                        v(KV + (t * 4 + par * 2 + j) * 4, 4), vOFFK, s(sK, 4), sT + t, par * 512 + j * 128, NT))

    def v_loads():
        for t in range(4):
            for r in range(4):
                a.i("buffer_load_dwordx4 %s, v%d, %s, s%d offen offset:%d%s" % (
                    v(KV + (t * 4 + r) * 4, 4), vOFFV, s(sV, 4), sT + t, r * 1024, NT))

    def tw_dma(wo):
        srd(sWT, 24 if wo else 32, 0x800000 if wo else 0x700000)
        a.i("v_lshrrev_b32 v4, 3, v0")
        if wo:
            a.i("v_and_b32 v3, 3, v4")
            a.i("v_lshlrev_b32 v3, 14, v3")
            a.i("v_lshrrev_b32 v5, 5, v0")
            a.i("v_lshl_add_u32 v3, v5, 11, v3")
        else:
            a.i("v_lshlrev_b32 v3, 11, v4")
        a.i("v_and_b32 v4, 2, v4")
        a.i("v_and_b32 v5, 7, v0")
        a.i("v_xor_b32 v5, v4, v5")
        a.i("v_lshl_add_u32 v3, v5, 4, v3")
        a.i("v_xor_b32 v4, 64, v3")
        a.i("s_mul_i32 s8, s%d, %d" % (sKS, (64 if wo else 56) * 2048))
        a.i("s_lshl_b32 s9, s%d, 9" % sCB)
        a.i("s_add_u32 s8, s8, s9")
        a.i("s_sub_u32 s9, s3, 4")
        a.i("s_lshl_b32 s10, s9, 14")
        a.i("s_lshl_b32 s9, s9, 7")
        a.i("s_add_u32 s8, s8, s9")
        a.i("s_add_u32 s10, s10, %d" % (TW + (8192 if wo else 0)))
        for n in range(8 if wo else 7):
            ro = (32 * (n >> 2) + 2 * (n & 3)) if wo else 8 * n
            a.i("s_add_u32 s11, s8, %d" % (ro * 2048))
            a.i("s_add_u32 m0, s10, %d" % (n * 1024))
            a.i("buffer_load_dwordx4 v%d, %s, s11 offen%s lds" % (3 + (n & 1), s(sWT, 4), NTT))

    a.i("s_cmp_ge_u32 s3, 4")
    a.br("s_cbranch_scc1 L_p1")
    a.i("s_cmp_eq_u32 s3, 0")
    a.br("s_cbranch_scc1 L_ln0")
    a.i("s_waitcnt vmcnt(0)")
    a.label("L_ln0")
    a.i("s_waitcnt vmcnt(3)")
    for k in range(16):
        unpack_lo(28 + 2 * k, 12 + k)
        unpack_hi(29 + 2 * k, 12 + k)
    a.i("v_add_f32 v4, v28, v29")
    a.i("v_add_f32 v5, v30, v31")
    for k in range(4, 32, 2):
        a.i("v_add_f32 v4, v4, v%d" % (28 + k))
        a.i("v_add_f32 v5, v5, v%d" % (29 + k))
    a.i("v_add_f32 v4, v4, v5")
    dpp_reduce16("v_add_f32", 4)
    allreduce_rows("v_add_f32", 4, 5, do32=False)
    a.i("v_mul_f32 v4, 0x3a800000, v4")
    a.i("v_mov_b32 v6, 0")
    a.i("v_mov_b32 v7, 0")
    for k in range(0, 32, 2):
        a.i("v_sub_f32 v8, v%d, v4" % (28 + k))
        a.i("v_sub_f32 v9, v%d, v4" % (29 + k))
        a.i("v_fmac_f32 v6, v8, v8")
        a.i("v_fmac_f32 v7, v9, v9")
    a.i("v_add_f32 v6, v6, v7")
    dpp_reduce16("v_add_f32", 6)
    allreduce_rows("v_add_f32", 6, 7, do32=False)
    a.i("v_mul_f32 v6, 0x3a800000, v6")
    bf16_round_pair(5, 4, 6)
    unpack_lo(4, 5)
    unpack_hi(6, 5)
    a.i("v_add_f32 v6, 0x3727c5ac, v6")
    bf16_round_pair(6, 6, 6)
    unpack_lo(6, 6)
    a.i("v_sqrt_f32 v6, v6")
    bf16_round_pair(6, 6, 6)
    unpack_lo(6, 6)
    a.i("v_rcp_f32 v6, v6")
    for k in range(16):
        a.i("v_sub_f32 v8, v%d, v4" % (28 + 2 * k))
        a.i("v_sub_f32 v9, v%d, v4" % (29 + 2 * k))
        bf16_round_pair(8, 8, 9)
        unpack_hi(9, 8)
        unpack_lo(8, 8)
        a.i("v_mul_f32 v8, v8, v6")
        a.i("v_mul_f32 v9, v9, v6")
        bf16_round_pair(12 + k, 8, 9)
    a.i("v_lshrrev_b32 v4, 5, v0")
    a.i("s_lshl_b32 s5, s3, 1")
    a.i("v_add_u32 v4, s5, v4")
    a.i("v_mul_u32_u24 v4, 2064, v4")
    a.i("v_and_b32 v5, 31, v0")
    a.i("v_lshl_add_u32 v4, v5, 4, v4")
    for u in range(4):
        a.i("ds_write_b128 v4, %s offset:%d" % (v(12 + 4 * u, 4), XN + u * 512))
    a.i("s_waitcnt vmcnt(0)")
    lds_inc(C_LN, 3, 4)
    stamp(1)
    a.i("s_cmp_lg_u32 s3, 0")
    a.br("s_cbranch_scc1 L_clrb")
    arrive(0)
    stamp(14)
    a.i("s_cmp_lg_u32 s2, %d" % ROOT)
    a.br("s_cbranch_scc1 L_arrb")
    root_bcast(0, "L_rba")
    lds_inc(C_PUB, 3, 4, val="0x200")
    stamp(16)
    a.br("s_branch L_arrb")
    a.label("L_clrb")
    prio(0)
    a.i("s_lshl_b32 s7, s%d, 12" % sCH)
    a.i("s_add_u32 s7, s7, 0x%x" % OB1)
    a.i("s_lshl_b32 s8, s2, 13")
    a.i("s_lshl_b32 s9, s3, 12")
    a.i("s_add_u32 s8, s8, s9")
    a.i("s_add_u32 s8, s8, 0x%x" % (OB2 - 8192))
    a.i("s_cmp_eq_u32 s3, 1")
    a.i("s_cselect_b32 s7, s7, s8")
    for k in range(4):
        a.i("buffer_store_dwordx4 v[60:63], v%d, %s, s7 offen offset:%d sc1" % (vOFFV, s(sWS, 4), k * 1024))
    a.br("s_branch L_arrb")

    a.label("L_p1")
    a.i("s_cmp_lt_u32 s3, 8")
    a.br("s_cbranch_scc1 L_p1go")
    a.i("s_cmp_lt_u32 s2, 224")
    a.br("s_cbranch_scc1 L_p1go")
    NPF = cfg.get("npf", 5)
    if PF:
        a.i("s_cmp_lg_u32 s3, 9")
        a.br("s_cbranch_scc1 L_kload")
        a.i("s_getpc_b64 s[6:7]")
        a.label("L_pc")
        a.i("v_lshlrev_b32 v6, 6, v0")
        for k in range(NPF):
            a.i("v_min_u32 v4, L_end-L_pc, v6")
            a.i("global_load_dword v%d, v4, s[6:7]" % (60 + (k & 3)))
            if k < NPF - 1:
                a.i("v_add_u32 v6, 4096, v6")
    a.br("s_branch L_kload")
    a.label("L_p1go")
    a.i("v_and_b32 v3, 7, v0")
    a.i("v_mul_u32_u24 v3, 2064, v3")
    a.i("v_bfe_u32 v4, v0, 3, 1")
    a.i("v_lshl_add_u32 v3, v4, 6, v3")
    a.i("v_lshrrev_b32 v5, 4, v0")
    a.i("v_lshl_add_u32 v3, v5, 4, v3")
    a.i("s_lshl_b32 s4, s%d, 1" % sK0)
    a.i("v_add_u32 v3, s4, v3")
    a.i("v_lshrrev_b32 v6, 5, v0")
    a.i("s_lshl_b32 s5, s3, 1")
    a.i("s_sub_u32 s5, s5, 8")
    a.i("v_add_u32 v7, s5, v6")
    a.i("v_mul_u32_u24 v7, 2176, v7")
    a.i("v_and_b32 v8, 7, v0")
    a.i("v_mul_u32_u24 v8, 272, v8")
    a.i("v_add_u32 v7, v7, v8")
    a.i("v_bfe_u32 v8, v0, 4, 1")
    a.i("s_cmp_lt_u32 s3, 8")
    a.i("s_cselect_b32 s5, 7, 4")
    a.i("v_lshlrev_b32 v8, s5, v8")
    a.i("v_add_u32 v7, v7, v8")
    a.i("v_add_u32 v7, %d, v7" % R1)
    a.i("v_cmp_eq_u32 vcc, v4, v6")
    a.i("v_mov_b32 v8, %d" % DUMP)
    a.i("v_cndmask_b32 v7, v8, v7, vcc")
    lds_spin(C_LN, 4, 8, 9, sleep=1)
    a.i("ds_read_b128 v[44:47], v3 offset:%d" % XN)
    stamp(1)
    a.i("s_waitcnt vmcnt(0) lgkmcnt(0)")
    stamp(2)
    for q in range(4):
        A0 = KV + q * 16
        for p in range(4):
            a.i("v_perm_b32 v%d, v%d, v%d, s%d" % (A0 + p, 12 + (2 * p + 1) * 4 + q, 12 + (2 * p) * 4 + q, sSELLO))
        for p in range(4):
            a.i("v_perm_b32 v%d, v%d, v%d, s%d" % (A0 + 4 + p, 12 + (2 * p + 1) * 4 + q, 12 + (2 * p) * 4 + q, sSELHI))
    a.i("s_cmp_ge_u32 s3, 8")
    a.br("s_cbranch_scc1 L_p1gu")
    for q in range(4):
        A0 = KV + q * 16
        a.i("v_mfma_f32_16x16x32_bf16 %s, %s, v[44:47], 0" % (v(A0 + 8, 4), v(A0, 4)))
        a.i("v_mfma_f32_16x16x32_bf16 %s, %s, v[44:47], 0" % (v(A0 + 12, 4), v(A0 + 4, 4)))
    for q in range(4):
        A0 = KV + q * 16
        for r in range(4):
            a.i("ds_write2_b32 v7, v%d, v%d offset0:%d offset1:%d" % (A0 + 8 + r, A0 + 12 + r, 8 * r + 2 * q, 8 * r + 2 * q + 1))
    a.br("s_branch L_p1j")
    a.label("L_p1gu")
    for q in range(4):
        A0 = KV + q * 16
        a.i("v_mfma_f32_16x16x32_bf16 %s, v[44:47], %s, 0" % (v(A0 + 8, 4), v(A0, 4)))
        a.i("v_mfma_f32_16x16x32_bf16 %s, v[44:47], %s, 0" % (v(A0 + 12, 4), v(A0 + 4, 4)))
    for q in range(4):
        A0 = KV + q * 16
        for h in range(2):
            a.i("ds_write_b128 v7, %s offset:%d" % (v(A0 + 8 + 4 * h, 4), (2 * q + h) * 32))
    a.label("L_p1j")
    a.i("s_lshl_b32 s8, s%d, 2" % sMAT)
    a.i("s_add_u32 s8, s8, %d" % (CNT + C_P1))
    lds_inc_rtn("s8", 3, 4, 8)
    a.i("s_cmp_lg_u32 s8, 3")
    a.br("s_cbranch_scc1 L_kload")
    prio(3)
    a.i("v_lshrrev_b32 v3, 4, v0")
    a.i("v_mul_u32_u24 v3, 272, v3")
    a.i("v_and_b32 v4, 15, v0")
    a.i("v_lshl_add_u32 v3, v4, 4, v3")
    a.i("s_mul_i32 s8, s%d, %d" % (sMAT, 8 * 2176))
    a.i("s_add_u32 s8, s8, %d" % R1)
    a.i("v_add_u32 v3, s8, v3")
    for u in range(2):
        base = KV + u * 32
        for c in range(8):
            a.i("ds_read_b128 %s, v3 offset:%d" % (v(base + 4 * c, 4), c * 2176 + u * 4 * 272))
    q_addr(6, 4, 4)
    a.i("s_mul_i32 s5, s%d, %d" % (sSG, GSP))
    a.i("s_lshl_b32 s6, s%d, 11" % sCG)
    a.i("s_add_u32 s5, s5, s6")
    a.i("s_lshl_b32 s6, s%d, 19" % sMAT)
    a.i("s_add_u32 s5, s5, s6")
    a.i("s_movk_i32 s10, 1024")
    a.i("s_cmp_eq_u32 s%d, 0" % sMAT)
    a.i("s_cselect_b32 s4, s4, s5")
    a.i("s_cselect_b32 s10, 0x10000, s10")
    a.i("s_cselect_b64 vcc, -1, 0")
    a.i("v_cndmask_b32 v6, v%d, v6, vcc" % vOFFV)
    for u in range(2):
        base = KV + u * 32
        sb = 12 + u * 4
        a.i("s_waitcnt lgkmcnt(%d)" % (8 if u == 0 else 0))
        for c in (0, 2, 4, 6):
            for e in range(4):
                a.i("v_add_f32 v%d, v%d, v%d" % (base + 4 * c + e, base + 4 * c + e, base + 4 * c + 4 + e))
        for c in (0, 4):
            for e in range(4):
                a.i("v_add_f32 v%d, v%d, v%d" % (base + 4 * c + e, base + 4 * c + e, base + 4 * c + 8 + e))
        for e in range(4):
            a.i("v_add_f32 v%d, v%d, v%d" % (sb + e, base + e, base + 16 + e))
        for e in range(4):
            a.i("v_min_u32 v%d, -2, v%d" % (sb + e, sb + e))
        a.i("buffer_store_dwordx4 %s, v6, %s, s4 offen sc1" % (v(sb, 4), s(sWS, 4)))
        if u == 0:
            a.i("s_add_u32 s4, s4, s10")
    a.i("s_cmp_eq_u32 s%d, 0" % sMAT)
    a.i("s_cselect_b32 s4, 0x101, 1")
    lds_inc(C_PUB, 3, 4, val="s4")
    stamp(15)
    a.i("s_cmp_eq_u32 s%d, 0" % sMAT)
    a.br("s_cbranch_scc1 L_kload")
    a.label("L_arrb")
    a.i("s_waitcnt vmcnt(0)")
    lds_inc_rtn(C_B, 3, 4, 8)
    a.i("s_cmp_lt_u32 s2, 224")
    a.i("s_cselect_b32 s9, 5, 3")
    a.i("s_cmp_lg_u32 s8, s9")
    a.br("s_cbranch_scc1 L_kload")
    prio(3)
    arrive(1)
    stamp(18)

    a.label("L_kload")
    a.i("s_cmp_lt_u32 s3, 4")
    a.br("s_cbranch_scc1 L_comm")
    prio(0)
    if 1:
        a.i("s_movk_i32 s4, 0x%x" % cfg.get("hold", 3))
        a.i("s_cmp_lt_u32 s3, 8")
        a.i("s_cselect_b32 s4, 0x%x, s4" % cfg.get("hold4", 0x80100))
        a.i("s_cmp_lt_u32 s2, 224")
        a.i("s_cselect_b32 s4, s4, 0x%x" % cfg.get("lhold", 0x100))
        a.i("s_cmp_eq_u32 s2, %d" % ROOT)
        a.i("s_cselect_b32 s4, 0x%x, s4" % cfg.get("rhold", 0x300))
        l0, l1 = a.newlabel("L_sp"), a.newlabel("L_sp")
        a.i("v_mov_b32 v3, %d" % CNT)
        a.i("s_mov_b32 s%d, %d" % (sSPIN, SPIN_L))
        a.label(l0)
        a.i("ds_read_b32 v4, v3 offset:%d" % C_PUB)
        a.i("s_waitcnt lgkmcnt(0)")
        a.i("v_and_b32 v4, s4, v4")
        a.i("v_cmp_ne_u32 vcc, s4, v4")
        a.br("s_cbranch_vccz %s" % l1)
        a.i("s_sleep 1")
        a.i("s_sub_u32 s%d, s%d, 1" % (sSPIN, sSPIN))
        a.i("s_cmp_lg_u32 s%d, 0" % sSPIN)
        a.br("s_cbranch_scc1 %s" % l0)
        a.label(l1)

    def rootb():
        a.i("s_cmp_lg_u32 s2, %d" % ROOTB)
        a.br("s_cbranch_scc1 L_notrootb")
        a.i("s_cmp_lg_u32 s3, %d" % cfg.get("rbw", 8))
        a.br("s_cbranch_scc1 L_notrootb")
        prio(3)
        if cfg.get("rbt", 0):
            a.i("s_add_u32 s4, s%d, %d" % (sT0, cfg["rbt"]))
            pace(4)
        root_bcast(1, "L_rbb")
        a.i("v_mov_b32 v3, 0")
        a.i("v_lshlrev_b32 v4, 2, v0")
        a.i("buffer_store_dword v3, v4, %s, 0 offen sc1" % s(sDBG, 4))
        a.i("s_waitcnt vmcnt(0)")
        prio(0)
        stamp(19)
        a.label("L_notrootb")

    pace(sTK)
    if not WDL:
        a.i("s_cmp_ge_u32 s3, 8")
        a.br("s_cbranch_scc1 L_nowd")
        tw_dma(0)
    a.br("s_branch L_nowd")

    a.label("L_comm")
    prio(3)
    a.i("s_cmp_lg_u32 s3, 0")
    a.br("s_cbranch_scc1 L_mb_lds")
    a.i("s_cmp_eq_u32 s2, %d" % ROOT)
    a.br("s_cbranch_scc1 L_mb_done")
    if cfg.get("ms0", 0):
        a.i("s_sleep %d" % cfg["ms0"])
    mbox_pipe("L_mba", cfg.get("mpipe", 1), cfg.get("mslp", 6))
    lds_inc(C_PUB, 3, 4, val="0x200")
    stamp(16)
    a.br("s_branch L_mb_done")
    a.label("L_mb_lds")
    lds_spin(C_PUB, 0x200, 3, 4, sleep=1, mask=0x200)
    a.label("L_mb_done")
    a.i("s_lshl_b32 s4, s%d, 14" % sB)
    a.i("s_lshl_b32 s5, s%d, 12" % sKVH)
    a.i("s_add_u32 s4, s4, s5")
    a.i("s_lshl_b32 s5, s3, 10")
    a.i("s_add_u32 s4, s4, s5")
    a.i("s_add_u32 s4, s4, 0x%x" % QP)
    for sp in range(1, 4):
        a.i("s_add_u32 s%d, s4, %d" % (4 + sp, sp * 8 * 16384))
    a.i("v_lshrrev_b32 v3, 5, v0")
    a.i("v_mul_u32_u24 v3, 272, v3")
    a.i("v_and_b32 v4, 31, v0")
    a.i("v_lshl_add_u32 v3, v4, 3, v3")
    a.i("s_mul_i32 s8, s3, 544")
    a.i("v_add_u32 v3, s8, v3")
    vgather([(12 + sp * 4, ["buffer_load_dwordx4 %s, v%d, %s, s%d offen sc1" % (
        v(12 + sp * 4, 4), vOFFV, s(sWS, 4), 4 + sp)]) for sp in range(4)], 5, 6)
    for e in range(4):
        a.i("v_add_f32 v%d, v%d, v%d" % (12 + e, 12 + e, 16 + e))
        a.i("v_add_f32 v%d, v%d, v%d" % (20 + e, 20 + e, 24 + e))
    for e in range(4):
        a.i("v_add_f32 v%d, v%d, v%d" % (12 + e, 12 + e, 20 + e))
    bf16_round_pair(12, 12, 13)
    bf16_round_pair(13, 14, 15)
    a.i("ds_write_b64 v3, v[12:13] offset:%d" % QL)
    lds_inc(C_QRDY, 3, 4)
    prio(0)
    stamp(5)
    pace(sTK)

    a.label("L_nowd")
    k_loads()
    lds_inc(C_KI, 3, 4)
    stamp(3)
    if diag == 1:
        a.i("s_waitcnt vmcnt(0)")
        stamp(17)
    lds_spin(C_QRDY, 4, 3, 4, sleep=2)

    a.label("L_kpass")
    stamp(6)
    Q, P, SD = 12, 20, 28
    a.i("v_and_b32 v3, 7, v0")
    a.i("v_mul_u32_u24 v3, 272, v3")
    a.i("v_bfe_u32 v4, v0, 3, 1")
    a.i("v_lshl_add_u32 v3, v4, 6, v3")
    a.i("v_lshrrev_b32 v4, 4, v0")
    a.i("v_lshl_add_u32 v3, v4, 4, v3")
    for j in range(2):
        a.i("ds_read_b128 %s, v3 offset:%d" % (v(Q + 4 * j, 4), QL + j * 128))
    for t in range(4):
        a.i("s_waitcnt vmcnt(%d)%s" % (12 - 4 * t, " lgkmcnt(0)" if t == 0 else ""))
        for j in range(2):
            for par in range(2):
                d = SD + 8 * t + 4 * par
                a.i("v_mfma_f32_16x16x32_bf16 %s, %s, %s, %s" % (
                    v(d, 4), v(KV + (t * 4 + par * 2 + j) * 4, 4), v(Q + 4 * j, 4), "0" if j == 0 else v(d, 4)))
    S = []
    for t in range(4):
        for r in range(4):
            a.i("v_permlane32_swap_b32 v%d, v%d" % (SD + 8 * t + r, SD + 8 * t + 4 + r))
    for t in range(4):
        for r in range(4):
            a.i("v_add_f32_dpp v%d, v%d, v%d row_ror:8 row_mask:0xf bank_mask:0xf" % (SD + 8 * t + r, SD + 8 * t + 4 + r, SD + 8 * t + r))
            S.append(SD + 8 * t + r)

    for k in range(0, 16, 2):
        t = P + (k >> 1)
        bf16_round_pair(t, S[k], S[k + 1])
        unpack_lo(S[k], t)
        unpack_hi(S[k + 1], t)
        a.i("v_mul_f32 v%d, s%d, v%d" % (S[k], sSCALE, S[k]))
        a.i("v_mul_f32 v%d, s%d, v%d" % (S[k + 1], sSCALE, S[k + 1]))
        bf16_round_pair(t, S[k], S[k + 1])
        unpack_lo(S[k], t)
        unpack_hi(S[k + 1], t)
    a.i("v_max3_f32 v4, v%d, v%d, v%d" % (S[0], S[1], S[2]))
    for k in range(3, 15, 2):
        a.i("v_max3_f32 v4, v4, v%d, v%d" % (S[k], S[k + 1]))
    a.i("v_max_f32 v4, v4, v%d" % S[15])
    allreduce_rows("v_max_f32", 4, 5)
    a.i("v_mul_f32 v6, s%d, v4" % sLOG2E)
    for k in range(16):
        a.i("v_fma_f32 v%d, v%d, s%d, -v6" % (S[k], S[k], sLOG2E))
    for k in range(16):
        a.i("v_exp_f32 v%d, v%d" % (S[k], S[k]))
    a.i("v_add_f32 v5, v%d, v%d" % (S[0], S[1]))
    a.i("v_add_f32 v7, v%d, v%d" % (S[2], S[3]))
    for k in range(4, 16, 2):
        a.i("v_add_f32 v5, v5, v%d" % S[k])
        a.i("v_add_f32 v7, v7, v%d" % S[k + 1])
    a.i("v_add_f32 v5, v5, v7")
    allreduce_rows("v_add_f32", 5, 7)
    for p in range(8):
        bf16_round_pair(P + p, S[2 * p], S[2 * p + 1])
    a.i("v_lshlrev_b32 v3, 6, v0")
    a.i("s_lshl_b32 s4, s3, 2")
    a.i("v_add_u32 v7, s4, v3")
    a.i("s_mov_b64 exec, 0xff")
    a.i("ds_write_b32 v7, v6 offset:%d" % SM)
    a.i("ds_write_b32 v7, v5 offset:%d" % SL)
    a.i("s_mov_b64 exec, -1")
    lds_inc_rtn(C_M, 4, 5, 8)
    stamp(7)

    def st_addr():
        a.i("v_and_b32 v3, 7, v0")
        a.i("v_lshlrev_b32 v9, 6, v3")
        a.i("v_lshrrev_b32 v8, 4, v0")
        a.i("v_lshl_add_u32 v9, v8, 4, v9")
        a.i("ds_read_b128 v[44:47], v9 offset:%d" % SM)
        a.i("v_lshrrev_b32 v8, 3, v0")
        a.i("v_lshlrev_b32 v8, 7, v8")
        a.i("v_lshl_add_u32 v8, v3, 3, v8")

    a.i("s_cmp_lg_u32 s8, 15")
    a.br("s_cbranch_scc1 L_nopub")
    prio(3)
    st_addr()
    a.i("ds_read_b128 v[48:51], v9 offset:%d" % SL)
    a.i("s_lshl_b32 s6, s%d, 7" % sCH)
    a.i("s_add_u32 s6, s6, 0x%x" % ST)
    a.i("s_waitcnt lgkmcnt(0)")
    a.i("v_max3_f32 v6, v44, v45, v46")
    a.i("v_max_f32 v6, v6, v47")
    allreduce_rows("v_max_f32", 6, 7)
    for k in range(4):
        a.i("v_sub_f32 v%d, v%d, v6" % (52 + k, 44 + k))
    for k in range(4):
        a.i("v_exp_f32 v%d, v%d" % (52 + k, 52 + k))
    a.i("v_mul_f32 v7, v52, v48")
    for k in range(1, 4):
        a.i("v_fmac_f32 v7, v%d, v%d" % (52 + k, 48 + k))
    allreduce_rows("v_add_f32", 7, 4)
    a.i("v_min_u32 v6, -2, v6")
    a.i("v_min_u32 v7, -2, v7")
    a.i("s_mov_b64 exec, 0xff")
    a.i("buffer_store_dwordx2 v[6:7], v8, %s, s6 offen sc1" % s(sWS, 4))
    a.i("s_mov_b64 exec, -1")
    prio(0)
    stamp(20)
    a.label("L_nopub")
    rootb()
    a.label("L_vload")
    lds_spin(C_KI, 16, 4, 5, sleep=1)
    pace(sTV)
    v_loads()
    stamp(8)

    D = [28 + 4 * i for i in range(8)]
    PT = 12

    def pv_step(u):
        for q in range(4):
            for p in range(4):
                a.i("v_perm_b32 v%d, v%d, v%d, s%d" % (PT + p, KV + (8 * u + 2 * p + 1) * 4 + q, KV + (8 * u + 2 * p) * 4 + q, sSELLO))
            for p in range(4):
                a.i("v_perm_b32 v%d, v%d, v%d, s%d" % (PT + 4 + p, KV + (8 * u + 2 * p + 1) * 4 + q, KV + (8 * u + 2 * p) * 4 + q, sSELHI))
            for h in range(2):
                i = 2 * q + h
                a.i("v_mfma_f32_16x16x32_bf16 %s, %s, %s, %s" % (
                    v(D[i], 4), v(PT + 4 * h, 4), v(P + 4 * u, 4), "0" if u == 0 else v(D[i], 4)))

    a.i("v_and_b32 v3, 15, v0")
    a.i("v_mul_u32_u24 v4, 528, v3")
    a.i("v_lshrrev_b32 v5, 4, v0")
    a.i("v_lshl_add_u32 v4, v5, 7, v4")
    a.i("s_mul_i32 s4, s3, 4224")
    a.i("s_add_u32 s4, s4, %d" % ORED)
    a.i("v_add_u32 v4, s4, v4")
    a.i("v_cmp_gt_u32 vcc, 8, v3")
    a.i("v_mov_b32 v5, %d" % DUMP)
    a.i("v_cndmask_b32 v4, v5, v4, vcc")
    a.i("s_lshl_b32 s4, 1, s3")
    a.i("v_mov_b32 v5, %d" % CNT)
    a.i("v_mov_b32 v6, s4")
    a.i("s_waitcnt vmcnt(8)")
    pv_step(0)
    a.i("s_waitcnt vmcnt(0)")
    stamp(9)
    prio(3)
    pv_step(1)
    for i in range(8):
        a.i("ds_write_b128 v4, %s offset:%d" % (v(D[i], 4), i * 16))
    a.i("s_mov_b64 exec, 1")
    a.i("ds_add_u32 v5, v6 offset:%d" % C_PVM)
    a.i("s_mov_b64 exec, -1")
    stamp(10)
    a.i("s_cmp_ge_u32 s3, 12")
    a.br("s_cbranch_scc1 L_exit")
    a.i("s_cmp_ge_u32 s3, 8")
    a.br("s_cbranch_scc1 L_reducer")
    a.i("s_cmp_eq_u32 s3, %d" % cfg.get("hw", 4))
    a.br("s_cbranch_scc1 L_hjob")
    a.i("s_cmp_eq_u32 s3, %d" % cfg.get("sw", 5))
    a.br("s_cbranch_scc1 L_stats")
    a.i("s_cmp_ge_u32 s3, 4")
    a.br("s_cbranch_scc1 L_tail")
    a.i("s_cmp_eq_u32 s3, 0")
    a.br("s_cbranch_scc1 L_exit")
    a.i("s_cmp_lg_u32 s3, 3")
    a.br("s_cbranch_scc1 L_gather")
    a.br("s_branch L_final")

    a.label("L_stats")
    prio(cfg.get("jprio", 3))
    a.i("s_add_u32 s4, s%d, %d" % (sT0, cfg.get("stt", 2000)))
    pace(4)
    lds_spin(C_M, 16, 4, 5, sleep=1)
    st_addr()
    a.i("s_and_b32 s5, s%d, 0xf8" % sCH)
    a.i("s_lshl_b32 s5, s5, 7")
    a.i("s_add_u32 s5, s5, 0x%x" % ST)
    a.i("s_waitcnt lgkmcnt(0)")
    a.i("s_mov_b32 s%d, %d" % (sSPIN, SPIN_G))
    if cfg.get("st0", 0):
        a.i("s_sleep %d" % cfg["st0"])
    a.label("L_poll_st")
    a.i("buffer_load_dwordx2 v[4:5], v8, %s, s5 offen sc1" % s(sWS, 4))
    a.i("s_waitcnt vmcnt(0)")
    a.i("v_max_u32 v6, v4, v5")
    a.i("v_cmp_eq_u32 vcc, -1, v6")
    a.br("s_cbranch_vccz L_poll_st_done")
    a.i("s_sleep %d" % cfg.get("stsl", 4))
    a.i("s_sub_u32 s%d, s%d, 1" % (sSPIN, sSPIN))
    a.i("s_cmp_lg_u32 s%d, 0" % sSPIN)
    a.br("s_cbranch_scc1 L_poll_st")
    a.label("L_poll_st_done")
    a.i("v_max_f32_dpp v6, v4, v4 row_ror:8 row_mask:0xf bank_mask:0xf")
    allreduce_rows("v_max_f32", 6, 7)
    a.i("v_sub_f32 v4, v4, v6")
    a.i("v_exp_f32 v4, v4")
    a.i("v_mul_f32 v4, v4, v5")
    a.i("v_add_f32_dpp v4, v4, v4 row_ror:8 row_mask:0xf bank_mask:0xf")
    allreduce_rows("v_add_f32", 4, 7)
    a.i("v_rcp_f32 v4, v4")
    for k in range(4):
        a.i("v_sub_f32 v%d, v%d, v6" % (52 + k, 44 + k))
    for k in range(4):
        a.i("v_exp_f32 v%d, v%d" % (52 + k, 52 + k))
    for k in range(4):
        a.i("v_mul_f32 v%d, v%d, v4" % (52 + k, 52 + k))
    a.i("ds_write_b128 v9, v[52:55] offset:%d" % WT)
    lds_inc(C_WT, 3, 4)
    stamp(4)
    a.br("s_branch L_tail")

    a.label("L_hjob")
    prio(cfg.get("jprio", 3))
    a.i("s_bfe_u32 s4, s2, 0x30003")
    a.i("s_mul_i32 s4, s4, %d" % cfg.get("mbs", 0))
    a.i("s_add_u32 s4, s4, %d" % cfg.get("mbt", 1650))
    a.i("s_add_u32 s4, s4, s%d" % sT0)
    pace(4)
    mbox_wait_b("L_mbb")
    lds_inc(C_WT, 3, 4)
    stamp(4)
    a.i("v_cmp_gt_u32 vcc, 48, v0")
    a.i("v_mov_b32 v6, 0x7ffffff0")
    a.i("v_cndmask_b32 v3, v6, v%d, vcc" % vOFFV)
    a.i("s_mul_i32 s4, s%d, 1792" % sKS)
    a.i("s_add_u32 s4, s4, 0x%x" % GP)
    for m in range(2):
        for sp in range(4):
            a.i("s_add_u32 s5, s4, 0x%x" % (m * (UP - GP) + sp * GSP))
            for u in range(2):
                a.i("buffer_load_dwordx4 %s, v%d, %s, s5 offen offset:%d sc1" % (
                    v(KV + m * 32 + (sp * 2 + u) * 4, 4), 3 if u else vOFFV, s(sWS, 4), u * 1024))
    a.i("v_and_b32 v5, 1, v0")
    a.i("v_lshlrev_b32 v5, 8, v5")
    a.i("v_and_b32 v4, 62, v0")
    a.i("v_add_u32 v5, v5, v4")
    a.i("s_mov_b32 s4, 0x3d372713")
    a.i("s_mov_b32 s5, 0xc0135761")
    a.i("s_waitcnt vmcnt(0)")
    G0, U0 = 28, 36
    for m, dst in ((0, G0), (1, U0)):
        for e in range(8):
            r0 = KV + m * 32 + e
            a.i("v_add_f32 v%d, v%d, v%d" % (r0, r0, r0 + 8))
            a.i("v_add_f32 v%d, v%d, v%d" % (r0 + 16, r0 + 16, r0 + 24))
            a.i("v_add_f32 v%d, v%d, v%d" % (dst + e, r0, r0 + 16))
    for e in range(0, 8, 2):
        g0, g1, u0, u1 = G0 + e, G0 + e + 1, U0 + e, U0 + 1 + e
        bf16_round_pair(12, g0, g1)
        bf16_round_pair(13, u0, u1)
        unpack_lo(g0, 12)
        unpack_hi(g1, 12)
        unpack_lo(u0, 13)
        unpack_hi(u1, 13)
        for gg, tt in ((g0, 14), (g1, 15)):
            a.i("v_mul_f32 v%d, v%d, v%d" % (tt, gg, gg))
            a.i("v_mul_f32 v%d, s4, v%d" % (tt, tt))
            a.i("v_fma_f32 v%d, v%d, v%d, v%d" % (tt, tt, gg, gg))
            a.i("v_mul_f32 v%d, s5, v%d" % (tt, tt))
            a.i("v_exp_f32 v%d, v%d" % (tt, tt))
            a.i("v_add_f32 v%d, 1.0, v%d" % (tt, tt))
            a.i("v_rcp_f32 v%d, v%d" % (tt, tt))
            a.i("v_mul_f32 v%d, v%d, v%d" % (tt, tt, gg))
        bf16_round_pair(14, 14, 15)
        unpack_hi(15, 14)
        unpack_lo(14, 14)
        a.i("v_mul_f32 v14, v14, v%d" % u0)
        a.i("v_mul_f32 v15, v15, v%d" % u1)
        bf16_round_pair(16 + e // 2, 14, 15)
        off = HL + (e >> 2) * 512 + (e & 3) * 64
        a.i("ds_write_b16 v5, v%d offset:%d" % (16 + e // 2, off))
        a.i("ds_write_b16_d16_hi v5, v%d offset:%d" % (16 + e // 2, off + 64))
    lds_inc(C_H, 3, 4)
    stamp(21)
    a.br("s_branch L_tail")

    a.label("L_gather")
    a.i("v_lshrrev_b32 v7, 4, v0")
    a.i("v_lshlrev_b32 v3, 6, v7")
    a.i("v_lshlrev_b32 v7, 17, v7")
    a.i("v_and_b32 v8, 15, v0")
    a.i("v_lshl_add_u32 v7, v8, 4, v7")
    a.i("s_lshr_b32 s6, s%d, 4" % sKS)
    a.i("s_lshl_b32 s6, s6, 15")
    a.i("s_and_b32 s7, s%d, 15" % sKS)
    a.i("s_lshl_b32 s7, s7, 8")
    a.i("s_add_u32 s6, s6, s7")
    a.i("s_sub_u32 s8, s3, 1")
    a.i("s_lshl_b32 s7, s8, 19")
    a.i("s_add_u32 s6, s6, s7")
    a.i("s_add_u32 s6, s6, 0x%x" % OB1)
    a.i("v_bfe_u32 v4, v0, 3, 1")
    a.i("v_lshl_add_u32 v3, v4, 9, v3")
    a.i("v_and_b32 v4, 7, v0")
    a.i("v_lshl_add_u32 v3, v4, 3, v3")
    a.i("s_lshl_b32 s8, s8, 8")
    a.i("v_add_u32 v3, s8, v3")
    for sp in range(8):
        a.i("s_add_u32 s%d, s6, %d" % (88 + sp, sp * 4096))
    lds_spin(C_RED, 4, 8, 9, sleep=1)
    stamp(11)
    a.i("v_mov_b32 v9, 1")

    def g_issue(k):
        a.i("buffer_load_dwordx4 %s, v7, %s, s%d offen sc1" % (v(KV + k * 4, 4), s(sWS, 4), 88 + k))

    def sum8(base):
        for t in range(0, 8, 2):
            for e in range(4):
                a.i("v_add_f32 v%d, v%d, v%d" % (28 + 2 * t + e, base + 4 * t + e, base + 4 * t + 4 + e))
        for t in (0, 8):
            for e in range(4):
                a.i("v_add_f32 v%d, v%d, v%d" % (28 + t + e, 28 + t + e, 28 + t + 4 + e))
        for e in range(4):
            a.i("v_add_f32 v%d, v%d, v%d" % (12 + e, 28 + e, 36 + e))

    free_poll(KV, g_issue, GSL, 4, 5, "L_go")
    sum8(KV)
    bf16_round_pair(12, 12, 13)
    bf16_round_pair(13, 14, 15)
    a.i("ds_write_b64 v3, v[12:13] offset:%d" % OL)
    a.i("s_mov_b64 exec, 1")
    a.i("ds_add_u32 v8, v9 offset:%d" % C_ORDY)
    a.i("s_mov_b64 exec, -1")
    stamp(13)
    a.br("s_branch L_exit")

    a.label("L_reducer")
    a.i("v_lshrrev_b32 v3, 5, v0")
    a.i("s_sub_u32 s6, s3, 8")
    a.i("s_lshl_b32 s4, s6, 1")
    a.i("v_add_u32 v3, s4, v3")
    a.i("v_lshlrev_b32 v6, 6, v3")
    a.i("v_mul_u32_u24 v3, 528, v3")
    a.i("v_and_b32 v4, 31, v0")
    a.i("v_lshl_add_u32 v3, v4, 4, v3")
    a.i("v_add_u32 v3, %d, v3" % ORED)
    a.i("s_lshl_b32 s4, s%d, 12" % sCH)
    a.i("s_lshl_b32 s5, s6, 10")
    a.i("s_add_u32 s4, s4, s5")
    a.i("s_add_u32 s4, s4, 0x%x" % OB1)
    lds_spin(C_WT, 2, 8, 9, sleep=1)
    for k in range(4):
        a.i("ds_read_b128 %s, v6 offset:%d" % (v(12 + 4 * k, 4), WT + k * 16))
    last = list(range(4 * LASTC, 4 * LASTC + 4))
    first = [w2 for w2 in range(16) if w2 not in last]
    msk = sum(1 << w2 for w2 in first)
    lds_spin(C_PVM, msk, 8, 9, sleep=1, mask=msk)
    for w2 in first:
        a.i("ds_read_b128 %s, v3 offset:%d" % (v(KV + 4 * w2, 4), w2 * 4224))
    a.i("s_waitcnt lgkmcnt(0)")
    for e in range(4):
        a.i("v_mul_f32 v%d, v%d, v%d" % (28 + e, 12 + first[0], KV + 4 * first[0] + e))
    for w2 in first[1:]:
        for e in range(4):
            a.i("v_fmac_f32 v%d, v%d, v%d" % (28 + e, 12 + w2, KV + 4 * w2 + e))
    stamp(11)
    lds_spin(C_PVM, 0xffff, 8, 9, sleep=0)
    for w2 in last:
        a.i("ds_read_b128 %s, v3 offset:%d" % (v(KV + 4 * w2, 4), w2 * 4224))
    for k, w2 in enumerate(last):
        a.i("s_waitcnt lgkmcnt(%d)" % (3 - k))
        for e in range(4):
            a.i("v_fmac_f32 v%d, v%d, v%d" % (28 + e, 12 + w2, KV + 4 * w2 + e))
    for e in range(4):
        a.i("v_min_u32 v%d, -2, v%d" % (28 + e, 28 + e))
    a.i("buffer_store_dwordx4 v[28:31], v%d, %s, s4 offen sc1" % (vOFFV, s(sWS, 4)))
    lds_inc(C_RED, 8, 9)
    stamp(13)
    a.br("s_branch L_exit")

    a.label("L_tail")
    prio(2)
    DT = [28, 32, 36, 40]
    AD = 44
    a.i("v_lshrrev_b32 v3, 4, v0")
    a.i("v_bfe_u32 v4, v0, 2, 2")
    a.i("v_lshl_add_u32 v5, v3, 3, v4")
    a.i("v_lshlrev_b32 v5, 7, v5")
    a.i("v_and_b32 v6, 3, v0")
    a.i("v_lshl_add_u32 v5, v6, 3, v5")
    a.i("v_and_b32 v4, 2, v4")
    a.i("v_and_b32 v6, 1, v3")
    a.i("v_lshl_add_u32 v4, v6, 2, v4")
    a.i("v_lshl_add_u32 v5, v4, 4, v5")
    a.i("s_sub_u32 s4, s3, 4")
    a.i("s_lshl_b32 s5, s4, 14")
    a.i("s_add_u32 s5, s5, %d" % TW)
    a.i("v_add_u32 v5, s5, v5")
    a.i("v_cmp_le_u32 vcc, 48, v0")
    a.i("v_mov_b32 v6, 2048")
    a.i("v_cndmask_b32 v6, 0, v6, vcc")
    for T in range(4):
        a.i("v_xor_b32 v%d, %d, v5" % (AD + T, 32 * T))
        a.i("v_sub_u32 v%d, v%d, v6" % (AD + 4 + T, AD + T))
    a.i("v_and_b32 v6, 7, v0")
    a.i("v_lshlrev_b32 v6, 6, v6")
    a.i("v_lshl_add_u32 v6, v3, 4, v6")
    a.i("s_lshl_b32 s12, s2, 13")
    a.i("s_lshl_b32 s13, s4, 11")
    a.i("s_add_u32 s12, s12, s13")
    a.i("s_add_u32 s12, s12, 0x%x" % OB2)

    def b_reads(wo):
        for st in range(2):
            for T in range(4):
                for hh in range(2):
                    ad = AD + T + (4 if (not wo and st == 1) else 0)
                    a.i("ds_read_b64_tr_b16 %s, v%d offset:%d" % (
                        v(KV + wo * 32 + (st * 4 + T) * 4 + 2 * hh, 2), ad, wo * 8192 + st * 4096 + hh * 512))

    def gemm(wo):
        for st in range(2):
            for T in range(4):
                a.i("v_mfma_f32_16x16x32_bf16 %s, %s, %s, %s" % (
                    v(DT[T], 4), v(12 + 4 * st, 4), v(KV + wo * 32 + (st * 4 + T) * 4, 4),
                    "0" if (not wo and st == 0) else v(DT[T], 4)))

    def wd_part():
        b_reads(0)
        lds_spin(C_H, 1, 8, 9, sleep=1)
        a.i("ds_read_b128 v[12:15], v6 offset:%d" % HL)
        a.i("ds_read_b128 v[16:19], v6 offset:%d" % (HL + 512))
        a.i("s_waitcnt lgkmcnt(0)")
        gemm(0)

    a.i("s_cmp_lt_u32 s2, 224")
    a.i("s_movk_i32 s8, %d" % lwo)
    a.i("s_cselect_b32 s8, %d, s8" % hwo)
    a.i("s_mul_i32 s9, s4, %d" % int(round(TAU * WOU)))
    a.i("s_add_u32 s8, s8, s9")
    a.i("s_add_u32 s8, s8, s%d" % sT0)
    pace(8)
    if WDL:
        tw_dma(0)
    tw_dma(1)
    stamp(11)
    if WDL:
        a.i("s_waitcnt vmcnt(8)")
    wd_part()
    a.i("s_waitcnt vmcnt(0)")
    prio(3)
    b_reads(1)
    stamp(12)
    lds_spin(C_ORDY, 2, 8, 9, sleep=0)
    a.i("ds_read_b128 v[12:15], v6 offset:%d" % OL)
    a.i("ds_read_b128 v[16:19], v6 offset:%d" % (OL + 512))
    a.i("s_waitcnt lgkmcnt(0)")
    gemm(1)
    a.i("s_mov_b32 exec_hi, 0")
    for T in range(4):
        for e in range(4):
            a.i("v_min_u32 v%d, -2, v%d" % (DT[T] + e, DT[T] + e))
        a.i("buffer_store_dwordx4 %s, v%d, %s, s12 offen offset:%d sc1" % (v(DT[T], 4), vOFFV, s(sWS, 4), T * 512))
    a.i("s_mov_b64 exec, -1")
    lds_inc(C_ST, 8, 9)
    stamp(13)
    a.br("s_branch L_exit")

    a.label("L_final")
    a.i("s_lshr_b32 s4, s%d, 2" % sKS)
    a.i("s_lshl_b32 s4, s4, 4")
    a.i("s_lshl_b32 s5, s%d, 8" % sCB)
    a.i("s_add_u32 s4, s4, s5")
    a.i("s_and_b32 s5, s%d, 1" % sKS)
    a.i("s_lshl_b32 s5, s5, 3")
    a.i("s_add_u32 s4, s4, s5")
    a.i("s_bfe_u32 s5, s%d, 0x10001" % sKS)
    a.i("s_lshl_b32 s5, s5, 12")
    a.i("s_add_u32 s4, s4, s5")
    a.i("s_lshl_b32 s4, s4, 1")
    a.i("v_lshrrev_b32 v3, 3, v0")
    a.i("v_and_b32 v4, 7, v0")
    a.i("v_lshlrev_b32 v5, 11, v3")
    a.i("v_lshl_add_u32 v5, v4, 1, v5")
    a.i("v_add_u32 v5, s4, v5")
    a.i("v_cmp_gt_u32 vcc, 32, v0")
    a.i("v_mov_b32 v6, 0x7ffffff0")
    a.i("v_cndmask_b32 v5, v6, v5, vcc")
    a.i("buffer_load_ushort v9, v5, %s, 0 offen" % s(sX, 4))
    a.i("v_lshlrev_b32 v6, 13, v3")
    a.i("v_lshl_add_u32 v6, v4, 4, v6")
    a.i("s_lshl_b32 s5, s%d, 19" % sCB)
    a.i("s_lshl_b32 s6, s%d, 7" % sKS)
    a.i("s_add_u32 s5, s5, s6")
    a.i("s_add_u32 s5, s5, 0x%x" % OB2)
    for t in range(8):
        a.i("s_add_u32 s%d, s5, %d" % (88 + t, t * 65536))
    lds_spin(C_ST, 4, 7, 8, sleep=1)
    stamp(11)

    def f_issue(k):
        a.i("buffer_load_dwordx4 %s, v6, %s, s%d offen sc1" % (v(KV + 4 * k, 4), s(sWS, 4), 88 + k))

    free_poll(KV, f_issue, FSL, 7, 8, "L_fo")
    sum8(KV)
    stamp(12)
    for e in range(4):
        a.i("v_add_f32_dpp v%d, v%d, v%d row_ror:8 row_mask:0xf bank_mask:0xf" % (12 + e, 12 + e, 12 + e))
    for e in range(4):
        allreduce_rows("v_add_f32", 12 + e, 16 + e)
    a.i("v_cmp_eq_u32 vcc, 1, v3")
    a.i("v_cndmask_b32 v7, v12, v13, vcc")
    a.i("v_cmp_eq_u32 vcc, 2, v3")
    a.i("v_cndmask_b32 v7, v7, v14, vcc")
    a.i("v_cmp_eq_u32 vcc, 3, v3")
    a.i("v_cndmask_b32 v7, v7, v15, vcc")
    a.i("v_lshlrev_b32 v9, 16, v9")
    a.i("v_add_f32 v7, v7, v9")
    bf16_round_pair(7, 7, 7)
    a.i("buffer_store_short v7, v5, %s, 0 offen" % s(sOUT, 4))
    stamp(13)

    a.label("L_exit")
    if diag == 1:
        a.i("s_lshl_b32 s4, s2, 4")
        a.i("s_add_u32 s4, s4, s3")
        a.i("s_lshl_b32 s4, s4, 8")
        a.i("s_add_u32 s4, s4, 0x%x" % STAMP)
        a.i("v_lshlrev_b32 v3, 2, v0")
        a.i("buffer_store_dword v%d, v3, %s, s4 offen" % (vSTAMP, s(sWS, 4)))
    a.label("L_end")
    a.i("s_endpgm")

    a.raw('.section .rodata,"a"')
    a.raw(".p2align 6")
    a.raw(".amdhsa_kernel " + NAME)
    a.raw("  .amdhsa_next_free_vgpr 128")
    a.raw("  .amdhsa_next_free_sgpr 102")
    a.raw("  .amdhsa_accum_offset 128")
    a.raw("  .amdhsa_group_segment_fixed_size 0")
    a.raw("  .amdhsa_kernarg_size 96")
    a.raw("  .amdhsa_user_sgpr_count 2")
    a.raw("  .amdhsa_user_sgpr_kernarg_segment_ptr 1")
    a.raw("  .amdhsa_system_sgpr_workgroup_id_x 1")
    a.raw(".end_amdhsa_kernel")
    return a.text()


if __name__ == "__main__":
    cfg = {}
    out = sys.argv[1]
    for kv in sys.argv[2:]:
        k, val = kv.split("=")
        cfg[k] = int(val, 0)
    open(out, "w").write(gen(cfg))
```

```python
import sys
from asmlib import Asm, v, s

NAME = "parallel_sum__gqa_block_cached__glu_gated_geglu__decode_kernel"

QP = 0x000000
GP = 0x080000
UP = 0x100000
OB1 = 0x200000
ST = 0x300000
MB = 0x380000
OB2 = 0x400000
STAMP = 0x800000
WS_SIZE = 0x1000000
GSP = 3584 * 32

DUMP = 0
QL = 512
HL = 2688
OL = 3712
SM = 4736
SL = 5248
WT = 5760
CNT = 6272
C_LN, C_RED, C_PUB, C_QRDY, C_KI, C_M, C_VI, C_PVM = 0, 4, 8, 12, 16, 20, 24, 28
C_WT, C_H, C_ORDY, C_B, C_P1 = 32, 36, 40, 44, 48
C_ST = 60
ROOTB = 254
ROOT = 255
C_TB = C_VI
XN = 6400
R1 = 22912
ORED = 6400
TW = 75776
LDS_SIZE = TW + 65536

sX, sK, sV, sW1, sWT, sWS, sOUT, sDBG = 40, 44, 48, 52, 56, 60, 64, 68
sSELLO, sSELHI = 72, 73
sT = 74
sCH, sB, sKVH, sS, sCB, sKS = 78, 79, 80, 81, 82, 83
sW1OFF, sPITCH, sSPIN, sLOG2E = 84, 85, 86, 87
sMAT, sPUBF = 88, 89
sK0, sCG, sSG = 96, 97, 98
sSCALE = 99
sMBX = 101
sT0, sTK, sTV = 100, 90, 91

vOFFK, vOFFV = 1, 2
vSTAMP = 11
KV = 64


def gen(cfg):
    global ROOT
    a = Asm()
    GB = cfg.get("gb", 0)
    ROOT = cfg.get("root", 248 if GB else 255)
    NT = " nt" if cfg.get("nt", 1) else ""
    NTW = " nt" if cfg.get("ntw", 1) else ""
    NTT = " nt" if cfg.get("ntt", 1) else ""
    diag = cfg.get("diag", 0)
    SPIN_G = cfg.get("spin_g", 1 << 17)
    SPIN_L = cfg.get("spin_l", 1 << 21)
    PF = cfg.get("pf", 2)
    PRIO = cfg.get("prio", 1)
    WDLATE = cfg.get("wdlate", 0)
    VIG = cfg.get("vig", 16)
    GD = cfg.get("gd", 2)
    FD = cfg.get("fd", 2)
    GSL = cfg.get("gsl", 2)
    FSL = cfg.get("fsl", 2)

    def prio(n):
        if PRIO:
            a.i("s_setprio %d" % n)

    def stamp(idx):
        if not diag:
            return
        a.i("s_memrealtime s[14:15]")
        a.i("s_waitcnt lgkmcnt(0)")
        a.i("v_writelane_b32 v%d, s14, %d" % (vSTAMP, idx))

    def srd(d, p, size, off_lo=None):
        if off_lo is None:
            a.i("s_mov_b32 s%d, s%d" % (d, p))
            a.i("s_and_b32 s%d, s%d, 0xffff" % (d + 1, p + 1))
        else:
            a.i("s_add_u32 s%d, s%d, s%d" % (d, p, off_lo))
            a.i("s_addc_u32 s%d, s%d, 0" % (d + 1, p + 1))
            a.i("s_and_b32 s%d, s%d, 0xffff" % (d + 1, d + 1))
        a.i("s_mov_b32 s%d, 0x%x" % (d + 2, size))
        a.i("s_mov_b32 s%d, 0x00020000" % (d + 3))

    def bf16_round_pair(dst, x0, x1):
        a.i("v_cvt_pk_bf16_f32 v%d, v%d, v%d" % (dst, x0, x1))

    def unpack_lo(dst, src):
        a.i("v_lshlrev_b32 v%d, 16, v%d" % (dst, src))

    def unpack_hi(dst, src):
        a.i("v_and_b32 v%d, 0xffff0000, v%d" % (dst, src))

    def allreduce_rows(op, x, tmp, do16=True, do32=True):
        if do16:
            a.i("v_mov_b32 v%d, v%d" % (tmp, x))
            a.i("v_permlane16_swap_b32 v%d, v%d" % (x, tmp))
            a.i("%s v%d, v%d, v%d" % (op, x, x, tmp))
        if do32:
            a.i("v_mov_b32 v%d, v%d" % (tmp, x))
            a.i("v_permlane32_swap_b32 v%d, v%d" % (x, tmp))
            a.i("%s v%d, v%d, v%d" % (op, x, x, tmp))

    def dpp_reduce16(op, x, n=4):
        pats = ["quad_perm:[1,0,3,2]", "quad_perm:[2,3,0,1]", "row_half_mirror", "row_mirror"]
        for p in pats[:n]:
            a.i("%s_dpp v%d, v%d, v%d %s row_mask:0xf bank_mask:0xf" % (op, x, x, x, p))

    def lds_spin(off, val, va, vd, sleep=1, cmp="ne", mask=None):
        l0, l1 = a.newlabel("L_sp"), a.newlabel("L_sp")
        a.i("v_mov_b32 v%d, %d" % (va, CNT))
        a.i("s_mov_b32 s%d, %d" % (sSPIN, SPIN_L))
        a.label(l0)
        a.i("ds_read_b32 v%d, v%d offset:%d" % (vd, va, off))
        a.i("s_waitcnt lgkmcnt(0)")
        if mask is not None:
            a.i("v_and_b32 v%d, 0x%x, v%d" % (vd, mask, vd))
        a.i("v_cmp_%s_u32 vcc, %s, v%d" % (cmp, val if isinstance(val, str) else "0x%x" % val, vd))
        a.br("s_cbranch_vccz %s" % l1)
        if sleep:
            a.i("s_sleep %d" % sleep)
        a.i("s_sub_u32 s%d, s%d, 1" % (sSPIN, sSPIN))
        a.i("s_cmp_lg_u32 s%d, 0" % sSPIN)
        a.br("s_cbranch_scc1 %s" % l0)
        a.label(l1)

    def lds_inc(off, va, vd, val="1"):
        a.i("v_mov_b32 v%d, %d" % (va, CNT))
        a.i("v_mov_b32 v%d, %s" % (vd, val))
        a.i("s_mov_b64 exec, 1")
        a.i("ds_add_u32 v%d, v%d offset:%d" % (va, vd, off))
        a.i("s_mov_b64 exec, -1")

    def lds_inc_rtn(off, va, vd, sd):
        if isinstance(off, str):
            a.i("v_mov_b32 v%d, %s" % (va, off))
            off = 0
        else:
            a.i("v_mov_b32 v%d, %d" % (va, CNT))
        a.i("v_mov_b32 v%d, 1" % vd)
        a.i("s_mov_b64 exec, 1")
        a.i("ds_add_rtn_u32 v%d, v%d, v%d offset:%d" % (vd, va, vd, off))
        a.i("s_mov_b64 exec, -1")
        a.i("s_waitcnt lgkmcnt(0)")
        a.i("v_readfirstlane_b32 s%d, v%d" % (sd, vd))

    def check_regs(regs, t0, t1):
        a.i("v_max3_u32 v%d, v%d, v%d, v%d" % (t0, regs[0], regs[1], regs[2]))
        a.i("v_max3_u32 v%d, v%d, v%d, v%d" % (t1, regs[3], regs[4], regs[5]))
        k = 6
        while k + 4 <= len(regs):
            a.i("v_max3_u32 v%d, v%d, v%d, v%d" % (t0, t0, regs[k], regs[k + 1]))
            a.i("v_max3_u32 v%d, v%d, v%d, v%d" % (t1, t1, regs[k + 2], regs[k + 3]))
            k += 4
        assert len(regs) - k == 2
        a.i("v_max3_u32 v%d, v%d, v%d, v%d" % (t0, t0, regs[k], regs[k + 1]))
        a.i("v_max_u32 v%d, v%d, v%d" % (t0, t0, t1))
        a.i("v_cmp_eq_u32 vcc, -1, v%d" % t0)

    def vgather(loads, t0, t1):
        ltop, ldone = a.newlabel("L_vg"), a.newlabel("L_vg")
        for dst, ins in loads:
            for x in ins:
                a.i(x if cfg.get("qsc", 0) else x.replace(" sc1", ""))
        a.i("s_mov_b32 s%d, %d" % (sSPIN, SPIN_G))
        a.label(ltop)
        a.i("s_waitcnt vmcnt(0)")
        check_regs([dst + e for dst, _ in loads for e in range(4)], t0, t1)
        a.br("s_cbranch_vccz %s" % ldone)
        a.i("s_sub_u32 s%d, s%d, 1" % (sSPIN, sSPIN))
        a.i("s_cmp_eq_u32 s%d, 0" % sSPIN)
        a.br("s_cbranch_scc1 %s" % ldone)
        for dst, ins in loads:
            lsk = a.newlabel("L_vs")
            a.i("v_max3_u32 v%d, v%d, v%d, v%d" % (t0, dst, dst + 1, dst + 2))
            a.i("v_max_u32 v%d, v%d, v%d" % (t0, t0, dst + 3))
            a.i("v_cmp_eq_u32 vcc, -1, v%d" % t0)
            a.br("s_cbranch_vccz %s" % lsk)
            for x in ins:
                a.i(x)
            a.label(lsk)
        a.br("s_branch %s" % ltop)
        a.label(ldone)

    def pipe_poll(bases, issue, finish, slp, t0, t1, tag):
        depth = len(bases)
        a.i("s_mov_b32 s%d, %d" % (sSPIN, SPIN_G))
        for k in range(depth - 1):
            issue(bases[k])
            a.i("s_sleep %d" % slp)
        a.label(tag + "_p")
        for k in range(depth):
            issue(bases[(k + depth - 1) % depth])
            a.i("s_waitcnt vmcnt(%d)" % (8 * (depth - 1)))
            check_regs([bases[k] + e for e in range(32)], t0, t1)
            a.br("s_cbranch_vccz %s_f%d" % (tag, k))
        a.i("s_sub_u32 s%d, s%d, 1" % (sSPIN, sSPIN))
        a.i("s_cmp_lg_u32 s%d, 0" % sSPIN)
        a.br("s_cbranch_scc1 %s_p" % tag)
        a.i("s_waitcnt vmcnt(0)")
        for k in range(depth - 1, -1, -1):
            a.label("%s_f%d" % (tag, k))
            finish(bases[k])
            if k:
                a.br("s_branch %s_d" % tag)
        a.label(tag + "_d")

    def free_poll(base, issue1, slp, t0, t1, tag, thr=24):
        for e in range(32):
            a.i("v_mov_b32 v%d, -1" % (base + e))
        for k in range(8):
            issue1(k, True)
        a.i("s_mov_b32 s%d, %d" % (sSPIN, SPIN_G * 4))
        a.i("s_waitcnt vmcnt(0)")
        a.label(tag + "_p")
        check_regs([base + e for e in range(32)], t0, t1)
        a.br("s_cbranch_vccz %s_d" % tag)
        for k in range(8):
            lsk = a.newlabel("L_fs")
            d = base + 4 * k
            a.i("v_max3_u32 v%d, v%d, v%d, v%d" % (t0, d, d + 1, d + 2))
            a.i("v_max_u32 v%d, v%d, v%d" % (t0, t0, d + 3))
            a.i("v_cmp_eq_u32 vcc, -1, v%d" % t0)
            a.br("s_cbranch_vccz %s" % lsk)
            a.i("s_mov_b64 exec, vcc")
            issue1(k)
            a.i("s_mov_b64 exec, -1")
            a.label(lsk)
        if slp:
            a.i("s_sleep %d" % slp)
        a.i("s_waitcnt vmcnt(%d)" % thr)
        a.i("s_sub_u32 s%d, s%d, 1" % (sSPIN, sSPIN))
        a.i("s_cmp_lg_u32 s%d, 0" % sSPIN)
        a.br("s_cbranch_scc1 %s_p" % tag)
        a.label(tag + "_d")

    def pace(sreg):
        l0, l1, l2 = a.newlabel("L_pc"), a.newlabel("L_pc"), a.newlabel("L_pc")
        a.label(l0)
        a.i("s_memrealtime s[14:15]")
        a.i("s_waitcnt lgkmcnt(0)")
        a.i("s_sub_u32 s15, s%d, s14" % sreg)
        a.i("s_sub_u32 s15, s15, 1")
        a.i("s_cmp_ge_u32 s15, 8000")
        a.br("s_cbranch_scc1 %s" % l1)
        a.i("s_cmp_ge_u32 s15, 40")
        a.br("s_cbranch_scc1 %s" % l2)
        a.i("s_sleep 1")
        a.br("s_branch %s" % l0)
        a.label(l2)
        a.i("s_sleep 8")
        a.br("s_branch %s" % l0)
        a.label(l1)

    WDL = cfg.get("wdl", 0)
    WOPOS = cfg.get("wopos", 4)
    WOU = 0.5 + (0.4375 if WDL else 0)

    def sched(tau, k0):
        vord = [int(c) for c in "%04d" % cfg.get("vord", 1230)]
        wdu = 0 if WDL else 0.4375
        ak = [k0 + (4 * (1 + wdu) + 8) * tau, k0, k0 + 4 * (1 + wdu) * tau, k0 + (4 * (1 + wdu) + 4) * tau]
        v0 = k0 + (4 * (1 + wdu) + 12) * tau + cfg.get("vgap", 0)
        av = [0] * 4
        tau = TAUV
        for pos, c in enumerate(vord):
            av[c] = v0 + 4 * pos * tau + (4 * WOU * tau if pos >= WOPOS else 0) + (cfg.get("hgap", 0) if pos >= 2 else 0)
        wo = v0 + (4 * WOPOS - cfg.get("woe", 0) / 10.0) * tau + cfg.get("hgap", 0)
        return [int(round(x)) for x in ak], [int(round(x)) for x in av], int(round(wo))

    TAU = cfg.get("tau", 570) / 10.0
    TAUV = cfg.get("tauv", cfg.get("tau", 570)) / 10.0
    K0T = cfg.get("k0", 170)
    LTAU = cfg.get("ltau", cfg.get("tau", 570)) / 10.0
    LK0T = cfg.get("lk0", K0T)
    LASTC = cfg.get("vord", 1230) % 10

    BYTEA = cfg.get("bytea", 0)

    def arrive(phase):
        if BYTEA:
            a.i("v_mov_b32 v4, %d" % (1 + 2 * phase))
            a.i("s_mov_b64 exec, 1")
            a.i("buffer_store_byte v4, off, %s, s2 sc1" % s(sDBG, 4))
            a.i("s_mov_b64 exec, -1")
            return
        a.i("s_and_b32 s6, s2, 15")
        a.i("s_lshl_b32 s6, s6, 2")
        a.i("s_bfe_u32 s7, s2, 0x10004")
        a.i("s_lshl_b32 s7, s7, 7")
        a.i("s_add_u32 s6, s6, s7")
        a.i("v_mov_b32 v4, 0x%x" % (1 << (8 * phase)))
        if cfg.get("nomb", 0):
            return
        a.i("s_mov_b64 exec, 1")
        a.i("buffer_atomic_add v4, off, %s, s6 offset:64 sc1" % s(sDBG, 4))
        a.i("s_mov_b64 exec, -1")

    def root_bcast(phase, tag):
        if cfg.get("nomb", 0):
            a.i("v_mov_b32 v60, s%d" % sT0)
            return
        if BYTEA:
            a.i("v_lshlrev_b32 v3, 2, v0")
            msk = val = 0x01010101 << phase
        else:
            a.i("v_and_b32 v3, 15, v0")
            a.i("v_lshlrev_b32 v3, 2, v3")
            a.i("v_bfe_u32 v4, v0, 4, 1")
            a.i("v_lshl_add_u32 v3, v4, 7, v3")
            a.i("v_add_u32 v3, 64, v3")
            msk, val = (0xff, 8) if phase == 0 else (0xffff, 0x808)
        a.i("s_mov_b32 s%d, %d" % (sSPIN, SPIN_G))
        a.i("s_mov_b32 s4, 0x%x" % val)
        if phase == 0 and cfg.get("rs0", 0):
            a.i("s_sleep %d" % cfg["rs0"])
        a.label(tag + "_p")
        a.i("buffer_load_dword v4, v3, %s, 0 offen sc1" % s(sDBG, 4))
        a.i("s_waitcnt vmcnt(0)")
        a.i("v_and_b32 v4, 0x%x, v4" % msk)
        a.i("v_cmp_ne_u32 vcc, s4, v4")
        a.br("s_cbranch_vccz %s_d" % tag)
        a.i("s_sleep %d" % (cfg.get("rsleep", 2) if phase == 0 else 8))
        a.i("s_sub_u32 s%d, s%d, 1" % (sSPIN, sSPIN))
        a.i("s_cmp_lg_u32 s%d, 0" % sSPIN)
        a.br("s_cbranch_scc1 %s_p" % tag)
        a.label(tag + "_d")
        if phase == 0:
            a.i("s_add_u32 s4, s%d, %d" % (sT0, cfg.get("gofs", 0)))
            a.i("s_andn2_b32 s4, s4, 3")
            a.i("s_or_b32 s4, s4, 1")
            a.i("v_mov_b32 v60, s4")
        for k in range(4):
            a.i("v_mov_b32 v%d, %s" % (56 + k, "s4" if phase == 0 else "2"))
        a.i("v_lshlrev_b32 v3, 7, v0")
        a.i("s_mov_b32 s4, 0x%x" % (MB + phase * 64))
        a.i("buffer_store_dwordx4 v[56:59], v3, %s, s4 offen sc1" % s(sWS, 4))

    def mbox_pipe(tag, depth=4, slp=6):
        if cfg.get("nomb", 0):
            a.i("v_mov_b32 v60, s%d" % sT0)
            a.i("s_add_u32 s4, s%d, 750" % sT0)
            pace(4)
            return
        a.i("s_mov_b32 s%d, %d" % (sSPIN, SPIN_G))
        a.i("s_mov_b64 exec, 1")
        for k in range(depth - 1):
            a.i("buffer_load_dword v%d, off, %s, s%d sc1" % (60 + k, s(sWS, 4), sMBX))
            a.i("s_sleep %d" % slp)
        a.label(tag + "_p")
        for k in range(depth):
            a.i("buffer_load_dword v%d, off, %s, s%d sc1" % (60 + (k + depth - 1) % depth, s(sWS, 4), sMBX))
            a.i("s_waitcnt vmcnt(%d)" % (depth - 1))
            assert depth == 1
            a.i("v_cmp_eq_u32 vcc, -1, v%d" % (60 + k))
            a.br("s_cbranch_vccz %s_d" % tag)
            a.i("s_sleep %d" % slp)
        a.i("s_sub_u32 s%d, s%d, 1" % (sSPIN, sSPIN))
        a.i("s_cmp_lg_u32 s%d, 0" % sSPIN)
        a.br("s_cbranch_scc1 %s_p" % tag)
        a.label(tag + "_d")
        a.i("s_mov_b64 exec, -1")

    def mbox_wait_b(tag):
        if cfg.get("nomb", 0):
            return
        a.i("s_mov_b32 s%d, %d" % (sSPIN, SPIN_G))
        a.i("s_mov_b64 exec, 1")
        a.label(tag + "_p")
        a.i("buffer_load_dword v4, off, %s, s%d offset:64 sc1" % (s(sWS, 4), sMBX))
        a.i("s_waitcnt vmcnt(0)")
        a.i("v_cmp_ne_u32 vcc, 2, v4")
        a.br("s_cbranch_vccz %s_d" % tag)
        a.i("s_sleep 4")
        a.i("s_sub_u32 s%d, s%d, 1" % (sSPIN, sSPIN))
        a.i("s_cmp_lg_u32 s%d, 0" % sSPIN)
        a.br("s_cbranch_scc1 %s_p" % tag)
        a.label(tag + "_d")
        a.i("s_mov_b64 exec, -1")

    def tb_write():
        if not GB:
            return
        a.i("v_mov_b32 v3, %d" % CNT)
        a.i("s_mov_b64 exec, 1")
        a.i("ds_write_b32 v3, v60 offset:%d" % C_TB)
        a.i("s_mov_b64 exec, -1")

    def tb_read():
        if not GB:
            return
        a.i("v_mov_b32 v3, %d" % CNT)
        a.i("ds_read_b32 v4, v3 offset:%d" % C_TB)
        a.i("s_waitcnt lgkmcnt(0)")
        a.i("v_readfirstlane_b32 s4, v4")
        a.i("s_sub_u32 s4, s4, s%d" % sT0)
        a.i("s_min_i32 s4, s4, 100")
        a.i("s_max_i32 s4, s4, -200")
        for r in (sT0, sTK, sTV):
            a.i("s_add_u32 s%d, s%d, s4" % (r, r))

    def q_addr(vq, t0, sd):
        a.i("v_and_b32 v%d, 15, v0" % t0)
        a.i("v_lshrrev_b32 v%d, 4, v0" % vq)
        a.i("v_lshlrev_b32 v%d, 14, v%d" % (vq, vq))
        a.i("v_lshl_add_u32 v%d, v%d, 4, v%d" % (vq, t0, vq))
        a.i("s_lshl_b32 s%d, s%d, 9" % (sd, sCB))
        a.i("s_add_u32 s%d, s%d, s%d" % (sd, sd, sKS))
        a.i("s_lshl_b32 s%d, s%d, 8" % (sd, sd))
        if QP:
            a.i("s_add_u32 s%d, s%d, 0x%x" % (sd, sd, QP))

    hdr = open("parallel_sum__gqa_block_cached__glu_gated_geglu__decode.s.ref").read().split("\n")
    for l in hdr:
        if l.startswith("; @launch"):
            break
        a.raw(l)
    a.raw("; @launch grid=(256,1,1) block=(1024,1,1) lds=%d" % LDS_SIZE)
    a.raw('.amdgcn_target "amdgcn-amd-amdhsa--gfx950"')
    a.raw(".text")
    a.raw(".globl " + NAME)
    a.raw(".p2align 8")
    a.raw(".type %s,@function" % NAME)
    a.raw(NAME + ":")

    a.i("s_memrealtime s[94:95]")
    a.i("s_cmp_ge_u32 s2, 256")
    a.i("s_cbranch_scc1 L_end")
    a.i("s_load_dwordx16 s[16:31], s[0:1], 0")
    a.i("s_load_dwordx8 s[32:39], s[0:1], 64")
    a.i("v_lshrrev_b32 v1, 6, v0")
    a.i("v_readfirstlane_b32 s3, v1")
    a.i("v_and_b32 v0, 63, v0")
    if diag:
        a.i("v_mov_b32 v%d, 0" % vSTAMP)
    a.i("s_and_b32 s4, s2, 31")
    a.i("s_lshr_b32 s%d, s2, 5" % sS)
    a.i("s_lshl_b32 s%d, s4, 3" % sCH)
    a.i("s_add_u32 s%d, s%d, s%d" % (sCH, sCH, sS))
    a.i("s_lshr_b32 s%d, s4, 2" % sB)
    a.i("s_and_b32 s%d, s4, 3" % sKVH)
    a.i("s_lshr_b32 s%d, s2, 6" % sCB)
    a.i("s_and_b32 s%d, s2, 63" % sKS)
    a.i("s_mul_i32 s%d, s2, 1171" % sSG)
    a.i("s_lshr_b32 s%d, s%d, 16" % (sSG, sSG))
    a.i("s_mul_i32 s5, s%d, 56" % sSG)
    a.i("s_sub_u32 s%d, s2, s5" % sCG)
    if cfg.get("gph", 0) or cfg.get("uph", 0):
        a.i("s_cmp_ge_u32 s3, 12")
        a.i("s_cselect_b32 s5, %d, %d" % (cfg.get("uph", 0), cfg.get("gph", 0)))
        a.i("s_add_u32 s%d, s%d, s5" % (sCG, sCG))
        a.i("s_sub_u32 s5, s%d, 56" % sCG)
        a.i("s_cmp_ge_u32 s%d, 56" % sCG)
        a.i("s_cselect_b32 s%d, s5, s%d" % (sCG, sCG))
    a.i("s_sub_u32 s8, s3, 4")
    a.i("s_lshr_b32 s%d, s8, 2" % sMAT)
    a.i("s_and_b32 s10, s8, 3")
    a.i("s_movk_i32 s%d, 7168" % sPITCH)
    a.i("s_cmp_eq_u32 s%d, 0" % sMAT)
    a.i("s_cselect_b32 s%d, 8192, s%d" % (sPITCH, sPITCH))
    a.i("s_cselect_b32 s11, s%d, s%d" % (sCB, sSG))
    a.i("s_cselect_b32 s12, s%d, s%d" % (sKS, sCG))
    a.i("s_lshl_b32 s%d, s11, 8" % sK0)
    a.i("s_lshl_b32 s13, s10, 6")
    a.i("s_add_u32 s%d, s%d, s13" % (sK0, sK0))
    a.i("s_mul_i32 s%d, s%d, s%d" % (sW1OFF, sK0, sPITCH))
    a.i("s_lshl_b32 s12, s12, 7")
    a.i("s_add_u32 s%d, s%d, s12" % (sW1OFF, sW1OFF))
    a.i("s_lshl_b32 s12, s%d, 18" % sCH)
    a.i("v_lshrrev_b32 v3, 4, v0")
    a.i("v_lshlrev_b32 v3, 3, v3")
    a.i("v_bfe_u32 v4, v0, 3, 1")
    a.i("v_lshl_add_u32 v3, v4, 5, v3")
    a.i("v_mul_lo_u32 v3, v3, s%d" % sPITCH)
    a.i("v_and_b32 v4, 7, v0")
    a.i("v_lshl_add_u32 v3, v4, 4, v3")
    a.i("v_lshrrev_b32 v5, 5, v0")
    a.i("v_lshlrev_b32 v5, 11, v5")
    a.i("v_and_b32 v4, 31, v0")
    a.i("v_lshl_add_u32 v5, v4, 4, v5")
    a.i("s_lshl_b32 s13, s3, 12")
    a.i("s_lshr_b32 s6, s2, 2")
    a.i("s_lshl_b32 s6, s6, 7")
    a.i("s_and_b32 s7, s2, 3")
    a.i("s_lshl_b32 s7, s7, 2")
    a.i("s_add_u32 s6, s6, s7")
    a.i("s_add_u32 s%d, s6, 0x%x" % (sMBX, MB))
    a.i("v_lshlrev_b32 v%d, 4, v0" % vOFFV)
    for k in range(4):
        a.i("v_mov_b32 v%d, -1" % (60 + k))
    a.i("v_lshlrev_b32 v6, 2, v0")
    q_addr(56, 7, 4)
    a.i("s_lshl_b32 s6, s%d, 7" % sCH)
    a.i("s_add_u32 s6, s6, 0x%x" % ST)
    a.i("v_add_u32 v57, s6, v6")
    a.i("v_writelane_b32 v57, s%d, 16" % sMBX)
    a.i("s_add_u32 s6, s%d, 64" % sMBX)
    a.i("v_writelane_b32 v57, s6, 17")
    a.i("s_cmp_lg_u32 s3, 0")
    a.br("s_cbranch_scc1 L_noinit")
    a.i("v_mov_b32 v7, 0")
    a.i("s_mov_b64 exec, 0xffff")
    a.i("ds_write_b32 v6, v7 offset:%d" % CNT)
    a.i("s_mov_b64 exec, -1")
    a.label("L_noinit")
    a.i("s_waitcnt lgkmcnt(0)")
    a.i("s_lshr_b32 s14, s2, 3")
    a.i("s_mul_i32 s14, s14, %d" % cfg.get("skew", 0))
    a.i("s_lshr_b32 s14, s14, 4")
    a.i("s_sub_u32 s%d, s94, s14" % sT0)
    if diag:
        a.i("v_writelane_b32 v%d, s94, 23" % vSTAMP)
        stamp(22)
    srd(sX, 16, 16384)
    if cfg.get("wsofs", 0):
        a.i("s_mov_b32 s14, 0x%x" % (cfg["wsofs"] << 20))
        srd(sWS, 38, WS_SIZE, off_lo=14)
    else:
        srd(sWS, 38, WS_SIZE)
    a.i("s_cmp_lt_u32 s3, 4")
    a.br("s_cbranch_scc1 L_xload")
    a.i("s_cmp_eq_u32 s%d, 1" % sMAT)
    a.i("s_cselect_b32 s%d, s28, s30" % sW1)
    a.i("s_cselect_b32 s%d, s29, s31" % (sW1 + 1))
    a.i("s_mov_b32 s%d, 0x700000" % (sW1 + 2))
    a.i("s_cmp_eq_u32 s%d, 0" % sMAT)
    a.i("s_cselect_b32 s%d, s22, s%d" % (sW1, sW1))
    a.i("s_cselect_b32 s%d, s23, s%d" % (sW1 + 1, sW1 + 1))
    a.i("s_cselect_b32 s%d, 0x800000, s%d" % (sW1 + 2, sW1 + 2))
    a.i("s_and_b32 s%d, s%d, 0xffff" % (sW1 + 1, sW1 + 1))
    a.i("s_mov_b32 s%d, 0x00020000" % (sW1 + 3))
    a.i("s_cmp_lt_u32 s3, 8")
    a.br("s_cbranch_scc1 L_w1go")
    a.i("s_barrier")
    a.i("s_cmp_ge_u32 s2, 224")
    a.br("s_cbranch_scc1 L_pro3")
    a.label("L_w1go")
    if cfg.get("fst", 0):
        stamp(26)
    a.i("s_mov_b32 s4, s%d" % sW1OFF)
    for j in range(8):
        a.i("buffer_load_dwordx4 %s, v3, %s, s4 offen%s" % (v(12 + 4 * j, 4), s(sW1, 4), NTW))
        if j < 7:
            a.i("s_add_u32 s4, s4, s%d" % sPITCH)
    if cfg.get("fst", 0):
        stamp(27)
    a.i("s_cmp_lt_u32 s3, 8")
    a.br("s_cbranch_scc1 L_pro2")
    lds_inc(C_PUB, 6, 7, val="0x10000")
    a.br("s_branch L_pro3")
    a.label("L_xload")
    for u in range(4):
        a.i("buffer_load_dwordx4 %s, v5, %s, s13 offen offset:%d" % (v(12 + 4 * u, 4), s(sX, 4), u * 512))
    ECLR = cfg.get("eclr", 0)

    def clears():
        a.i("s_lshl_b32 s7, s%d, 12" % sCH)
        a.i("s_add_u32 s7, s7, 0x%x" % OB1)
        a.i("s_lshl_b32 s8, s2, 13")
        a.i("s_lshl_b32 s9, s3, 12")
        a.i("s_add_u32 s8, s8, s9")
        a.i("s_add_u32 s8, s8, 0x%x" % (OB2 - 8192))
        a.i("s_cmp_eq_u32 s3, 1")
        a.i("s_cselect_b32 s7, s7, s8")
        for k in range(0 if cfg.get("noclr", 0) else 4):
            a.i("buffer_store_dwordx4 v[60:63], v%d, %s, s7 offen offset:%d %s" % (vOFFV, s(sWS, 4), k * 1024, ["sc1", "sc1 nt", "sc0 sc1", "sc0 sc1 nt", "", "nt"][cfg.get("cpol", 0)]))

    a.i("s_cmp_lg_u32 s3, 0")
    a.br("s_cbranch_scc1 %s" % ("L_eclr" if ECLR == 1 else "L_pro2"))
    a.i("buffer_store_dwordx4 v[60:63], v56, %s, s4 offen sc1" % s(sWS, 4))
    a.i("s_add_u32 s4, s4, 65536")
    a.i("buffer_store_dwordx4 v[60:63], v56, %s, s4 offen sc1" % s(sWS, 4))
    a.i("s_mov_b64 exec, 0x3ffff")
    a.i("buffer_store_dword v60, v57, %s, 0 offen sc1" % s(sWS, 4))
    a.i("s_mov_b64 exec, -1")
    if ECLR == 1:
        a.br("s_branch L_pro2")
        a.label("L_eclr")
        clears()
    a.label("L_pro2")
    if cfg.get("fst", 0):
        stamp(28)
    prio(3)
    a.i("s_barrier")
    a.label("L_pro3")
    srd(sK, 18, 0x40000, off_lo=12)
    srd(sV, 20, 0x40000, off_lo=12)
    srd(sOUT, 34, 16384)
    srd(sDBG, 36, 256)
    a.i("s_mov_b32 s%d, 0x05040100" % sSELLO)
    a.i("s_mov_b32 s%d, 0x07060302" % sSELHI)
    a.i("s_mov_b32 s%d, 0x3fb8aa3b" % sLOG2E)
    a.i("s_mov_b32 s%d, 0x3db504f3" % sSCALE)
    a.i("v_and_b32 v6, 3, v0")
    a.i("v_lshlrev_b32 v6, 10, v6")
    a.i("v_bfe_u32 v4, v0, 2, 1")
    a.i("v_lshl_add_u32 v6, v4, 8, v6")
    a.i("v_bfe_u32 v4, v0, 3, 1")
    a.i("v_lshl_add_u32 v6, v4, 6, v6")
    a.i("v_lshrrev_b32 v4, 4, v0")
    a.i("v_lshl_add_u32 v%d, v4, 4, v6" % vOFFK)
    a.i("s_lshl_b32 s6, s3, 14")
    a.i("s_add_u32 s7, s3, s2")
    for t in range(4):
        a.i("s_add_u32 s8, s7, %d" % t)
        a.i("s_and_b32 s8, s8, 3")
        a.i("s_lshl_b32 s8, s8, 12")
        a.i("s_add_u32 s%d, s6, s8" % (sT + t))
    DEFB = cfg.get("defb", 0)
    if DEFB:
        a.i("s_mov_b32 s%d, 0" % sPUBF)
    hk, hv, hwo = sched(TAU, K0T)
    lk, lv, lwo = sched(LTAU, LK0T)
    a.i("s_lshr_b32 s4, s3, 2")
    a.i("s_lshl_b32 s4, s4, 4")
    a.i("s_and_b32 s5, s3, 3")
    for dst, th, tl in ((sTK, hk, lk), (sTV, hv, lv)):
        a.i("s_cmp_lt_u32 s2, 224")
        a.i("s_mov_b32 s6, 0x%x" % (tl[0] | tl[1] << 16))
        a.i("s_mov_b32 s7, 0x%x" % (tl[2] | tl[3] << 16))
        a.i("s_cselect_b32 s6, 0x%x, s6" % (th[0] | th[1] << 16))
        a.i("s_cselect_b32 s7, 0x%x, s7" % (th[2] | th[3] << 16))
        if dst == sTK:
            a.i("s_movk_i32 s8, %d" % int(round(LTAU * 16)))
            a.i("s_cselect_b32 s8, %d, s8" % int(round(TAU * 16)))
        else:
            a.i("s_movk_i32 s8, %d" % int(round(TAUV * 16)))
        a.i("s_lshr_b64 s[6:7], s[6:7], s4")
        a.i("s_and_b32 s6, s6, 0xffff")
        a.i("s_mul_i32 s7, s5, s8")
        if dst == sTK and not WDL:
            a.i("s_mul_i32 s8, s7, 23")
            a.i("s_lshr_b32 s8, s8, 4")
            a.i("s_cmp_eq_u32 s4, 16")
            a.i("s_cselect_b32 s7, s8, s7")
        a.i("s_lshr_b32 s7, s7, 4")
        a.i("s_add_u32 s6, s6, s7")
        a.i("s_add_u32 s%d, s6, s%d" % (dst, sT0))
    stamp(0)
    if diag == 1:
        a.i("s_getreg_b32 s14, hwreg(HW_REG_XCC_ID)")
        a.i("v_writelane_b32 v%d, s14, 40" % vSTAMP)

    def k_loads():
        for t in range(4):
            for par in range(2):
                for j in range(2):
                    a.i("buffer_load_dwordx4 %s, v%d, %s, s%d offen offset:%d%s" % (
                        v(KV + (t * 4 + par * 2 + j) * 4, 4), vOFFK, s(sK, 4), sT + t, par * 512 + j * 128, NT))

    def v_loads():
        for t in range(4):
            for r in range(4):
                a.i("buffer_load_dwordx4 %s, v%d, %s, s%d offen offset:%d%s" % (
                    v(KV + (t * 4 + r) * 4, 4), vOFFV, s(sV, 4), sT + t, r * 1024, NT))

    def tw_dma(wo):
        srd(sWT, 24 if wo else 32, 0x800000 if wo else 0x700000)
        a.i("v_lshrrev_b32 v4, 3, v0")
        if wo:
            a.i("v_and_b32 v3, 3, v4")
            a.i("v_lshlrev_b32 v3, 14, v3")
            a.i("v_lshrrev_b32 v5, 5, v0")
            a.i("v_lshl_add_u32 v3, v5, 11, v3")
        else:
            a.i("v_lshlrev_b32 v3, 11, v4")
        a.i("v_and_b32 v4, 2, v4")
        a.i("v_and_b32 v5, 7, v0")
        a.i("v_xor_b32 v5, v4, v5")
        a.i("v_lshl_add_u32 v3, v5, 4, v3")
        a.i("v_xor_b32 v4, 64, v3")
        a.i("s_mul_i32 s8, s%d, %d" % (sKS, (64 if wo else 56) * 2048))
        a.i("s_lshl_b32 s9, s%d, 9" % sCB)
        a.i("s_add_u32 s8, s8, s9")
        a.i("s_sub_u32 s9, s3, 4")
        a.i("s_lshl_b32 s10, s9, 14")
        a.i("s_lshl_b32 s9, s9, 7")
        a.i("s_add_u32 s8, s8, s9")
        a.i("s_add_u32 s10, s10, %d" % (TW + (8192 if wo else 0)))
        for n in range(8 if wo else 7):
            ro = (32 * (n >> 2) + 2 * (n & 3)) if wo else 8 * n
            a.i("s_add_u32 s11, s8, %d" % (ro * 2048))
            a.i("s_add_u32 m0, s10, %d" % (n * 1024))
            a.i("buffer_load_dwordx4 v%d, %s, s11 offen%s lds" % (3 + (n & 1), s(sWT, 4), NTT))

    a.i("s_cmp_ge_u32 s3, 4")
    a.br("s_cbranch_scc1 L_p1")
    a.i("s_cmp_eq_u32 s3, 0")
    a.br("s_cbranch_scc1 L_ln0")
    if ECLR == 2:
        clears()
    a.i("s_waitcnt vmcnt(%d)" % (4 if ECLR else 0))
    a.br("s_branch L_ln1")
    a.label("L_ln0")
    a.i("s_waitcnt vmcnt(3)")
    a.label("L_ln1")
    for k in range(16):
        unpack_lo(28 + 2 * k, 12 + k)
        unpack_hi(29 + 2 * k, 12 + k)
    a.i("v_add_f32 v4, v28, v29")
    a.i("v_add_f32 v5, v30, v31")
    for k in range(4, 32, 2):
        a.i("v_add_f32 v4, v4, v%d" % (28 + k))
        a.i("v_add_f32 v5, v5, v%d" % (29 + k))
    a.i("v_add_f32 v4, v4, v5")
    dpp_reduce16("v_add_f32", 4)
    allreduce_rows("v_add_f32", 4, 5, do32=False)
    a.i("v_mul_f32 v4, 0x3a800000, v4")
    a.i("v_mov_b32 v6, 0")
    a.i("v_mov_b32 v7, 0")
    for k in range(0, 32, 2):
        a.i("v_sub_f32 v8, v%d, v4" % (28 + k))
        a.i("v_sub_f32 v9, v%d, v4" % (29 + k))
        a.i("v_fmac_f32 v6, v8, v8")
        a.i("v_fmac_f32 v7, v9, v9")
    a.i("v_add_f32 v6, v6, v7")
    dpp_reduce16("v_add_f32", 6)
    allreduce_rows("v_add_f32", 6, 7, do32=False)
    a.i("v_mul_f32 v6, 0x3a800000, v6")
    bf16_round_pair(5, 4, 6)
    unpack_lo(4, 5)
    unpack_hi(6, 5)
    a.i("v_add_f32 v6, 0x3727c5ac, v6")
    bf16_round_pair(6, 6, 6)
    unpack_lo(6, 6)
    a.i("v_sqrt_f32 v6, v6")
    bf16_round_pair(6, 6, 6)
    unpack_lo(6, 6)
    a.i("v_rcp_f32 v6, v6")
    for k in range(16):
        a.i("v_sub_f32 v8, v%d, v4" % (28 + 2 * k))
        a.i("v_sub_f32 v9, v%d, v4" % (29 + 2 * k))
        bf16_round_pair(8, 8, 9)
        unpack_hi(9, 8)
        unpack_lo(8, 8)
        a.i("v_mul_f32 v8, v8, v6")
        a.i("v_mul_f32 v9, v9, v6")
        bf16_round_pair(12 + k, 8, 9)
    a.i("v_lshrrev_b32 v4, 5, v0")
    a.i("s_lshl_b32 s5, s3, 1")
    a.i("v_add_u32 v4, s5, v4")
    a.i("v_mul_u32_u24 v4, 2064, v4")
    a.i("v_and_b32 v5, 31, v0")
    a.i("v_lshl_add_u32 v4, v5, 4, v4")
    for u in range(4):
        a.i("ds_write_b128 v4, %s offset:%d" % (v(12 + 4 * u, 4), XN + u * 512))
    a.i("s_cmp_lg_u32 s3, 0")
    a.br("s_cbranch_scc1 L_ln2")
    a.i("s_waitcnt vmcnt(0)")
    a.label("L_ln2")
    lds_inc(C_LN, 3, 4)
    stamp(1)
    a.i("s_cmp_lg_u32 s3, 0")
    a.br("s_cbranch_scc1 L_clrb")
    arrive(0)
    stamp(14)
    a.i("s_cmp_lg_u32 s2, %d" % ROOT)
    a.br("s_cbranch_scc1 L_arrb")
    root_bcast(0, "L_rba")
    tb_write()
    lds_inc(C_PUB, 3, 4, val="0x200")
    stamp(16)
    a.br("s_branch L_arrb")
    a.label("L_clrb")
    prio(0)
    if not ECLR:
        clears()
    a.br("s_branch L_arrb")

    a.label("L_p1")
    a.i("s_cmp_lt_u32 s3, 8")
    a.br("s_cbranch_scc1 L_p1go")
    a.i("s_cmp_lt_u32 s2, 224")
    a.br("s_cbranch_scc1 L_p1go")
    NPF = cfg.get("npf", 5)
    if PF:
        a.i("s_cmp_lg_u32 s3, 9")
        a.br("s_cbranch_scc1 L_kload")
        a.i("s_getpc_b64 s[6:7]")
        a.label("L_pc")
        a.i("v_lshlrev_b32 v6, 6, v0")
        for k in range(NPF):
            a.i("v_min_u32 v4, L_end-L_pc, v6")
            a.i("global_load_dword v%d, v4, s[6:7]" % (60 + (k & 3)))
            if k < NPF - 1:
                a.i("v_add_u32 v6, 4096, v6")
    a.br("s_branch L_kload")
    a.label("L_p1go")
    a.i("v_and_b32 v3, 7, v0")
    a.i("v_mul_u32_u24 v3, 2064, v3")
    a.i("v_bfe_u32 v4, v0, 3, 1")
    a.i("v_lshl_add_u32 v3, v4, 6, v3")
    a.i("v_lshrrev_b32 v5, 4, v0")
    a.i("v_lshl_add_u32 v3, v5, 4, v3")
    a.i("s_lshl_b32 s4, s%d, 1" % sK0)
    a.i("v_add_u32 v3, s4, v3")
    a.i("v_lshrrev_b32 v6, 5, v0")
    a.i("s_lshl_b32 s5, s3, 1")
    a.i("s_sub_u32 s5, s5, 8")
    a.i("v_add_u32 v7, s5, v6")
    a.i("v_mul_u32_u24 v7, 2176, v7")
    a.i("v_and_b32 v8, 7, v0")
    a.i("v_mul_u32_u24 v8, 272, v8")
    a.i("v_add_u32 v7, v7, v8")
    a.i("v_bfe_u32 v8, v0, 4, 1")
    a.i("s_cmp_lt_u32 s3, 8")
    a.i("s_cselect_b32 s5, 7, 4")
    a.i("v_lshlrev_b32 v8, s5, v8")
    a.i("v_add_u32 v7, v7, v8")
    a.i("v_add_u32 v7, %d, v7" % R1)
    a.i("v_cmp_eq_u32 vcc, v4, v6")
    a.i("v_mov_b32 v8, %d" % DUMP)
    a.i("v_cndmask_b32 v7, v8, v7, vcc")
    lds_spin(C_LN, 4, 8, 9, sleep=1)
    a.i("ds_read_b128 v[44:47], v3 offset:%d" % XN)
    stamp(1)
    a.i("s_waitcnt vmcnt(0) lgkmcnt(0)")
    stamp(2)
    for q in range(4):
        A0 = KV + q * 16
        for p in range(4):
            a.i("v_perm_b32 v%d, v%d, v%d, s%d" % (A0 + p, 12 + (2 * p + 1) * 4 + q, 12 + (2 * p) * 4 + q, sSELLO))
        for p in range(4):
            a.i("v_perm_b32 v%d, v%d, v%d, s%d" % (A0 + 4 + p, 12 + (2 * p + 1) * 4 + q, 12 + (2 * p) * 4 + q, sSELHI))
    a.i("s_cmp_ge_u32 s3, 8")
    a.br("s_cbranch_scc1 L_p1gu")
    for q in range(4):
        A0 = KV + q * 16
        a.i("v_mfma_f32_16x16x32_bf16 %s, %s, v[44:47], 0" % (v(A0 + 8, 4), v(A0, 4)))
        a.i("v_mfma_f32_16x16x32_bf16 %s, %s, v[44:47], 0" % (v(A0 + 12, 4), v(A0 + 4, 4)))
    for q in range(4):
        A0 = KV + q * 16
        for r in range(4):
            a.i("ds_write2_b32 v7, v%d, v%d offset0:%d offset1:%d" % (A0 + 8 + r, A0 + 12 + r, 8 * r + 2 * q, 8 * r + 2 * q + 1))
    a.br("s_branch L_p1j")
    a.label("L_p1gu")
    for q in range(4):
        A0 = KV + q * 16
        a.i("v_mfma_f32_16x16x32_bf16 %s, v[44:47], %s, 0" % (v(A0 + 8, 4), v(A0, 4)))
        a.i("v_mfma_f32_16x16x32_bf16 %s, v[44:47], %s, 0" % (v(A0 + 12, 4), v(A0 + 4, 4)))
    for q in range(4):
        A0 = KV + q * 16
        for h in range(2):
            a.i("ds_write_b128 v7, %s offset:%d" % (v(A0 + 8 + 4 * h, 4), (2 * q + h) * 32))
    a.label("L_p1j")
    a.i("s_lshl_b32 s8, s%d, 2" % sMAT)
    a.i("s_add_u32 s8, s8, %d" % (CNT + C_P1))
    lds_inc_rtn("s8", 3, 4, 8)
    a.i("s_cmp_lg_u32 s8, 3")
    a.br("s_cbranch_scc1 L_kload")
    prio(3)
    a.i("v_lshrrev_b32 v3, 4, v0")
    a.i("v_mul_u32_u24 v3, 272, v3")
    a.i("v_and_b32 v4, 15, v0")
    a.i("v_lshl_add_u32 v3, v4, 4, v3")
    a.i("s_mul_i32 s8, s%d, %d" % (sMAT, 8 * 2176))
    a.i("s_add_u32 s8, s8, %d" % R1)
    a.i("v_add_u32 v3, s8, v3")
    for u in range(2):
        base = KV + u * 32
        for c in range(8):
            a.i("ds_read_b128 %s, v3 offset:%d" % (v(base + 4 * c, 4), c * 2176 + u * 4 * 272))
    q_addr(6, 4, 4)
    a.i("s_mul_i32 s5, s%d, %d" % (sSG, GSP))
    a.i("s_lshl_b32 s6, s%d, 11" % sCG)
    a.i("s_add_u32 s5, s5, s6")
    a.i("s_lshl_b32 s6, s%d, 19" % sMAT)
    a.i("s_add_u32 s5, s5, s6")
    a.i("s_movk_i32 s10, 1024")
    a.i("s_cmp_eq_u32 s%d, 0" % sMAT)
    a.i("s_cselect_b32 s4, s4, s5")
    a.i("s_cselect_b32 s10, 0x10000, s10")
    a.i("s_cselect_b64 vcc, -1, 0")
    a.i("v_cndmask_b32 v6, v%d, v6, vcc" % vOFFV)
    for u in range(2):
        base = KV + u * 32
        sb = 12 + u * 4
        a.i("s_waitcnt lgkmcnt(%d)" % (8 if u == 0 else 0))
        for c in (0, 2, 4, 6):
            for e in range(4):
                a.i("v_add_f32 v%d, v%d, v%d" % (base + 4 * c + e, base + 4 * c + e, base + 4 * c + 4 + e))
        for c in (0, 4):
            for e in range(4):
                a.i("v_add_f32 v%d, v%d, v%d" % (base + 4 * c + e, base + 4 * c + e, base + 4 * c + 8 + e))
        for e in range(4):
            a.i("v_add_f32 v%d, v%d, v%d" % (sb + e, base + e, base + 16 + e))
        for e in range(4):
            a.i("v_min_u32 v%d, -2, v%d" % (sb + e, sb + e))
        if cfg.get("nopub", 0) > 1:
            a.i("s_cmp_%s_u32 s%d, 0" % ("lg" if cfg["nopub"] == 2 else "eq", sMAT))
            a.br("s_cbranch_scc1 L_np%d" % u)
        if cfg.get("nopub", 0) != 1:
            a.i("buffer_store_dwordx4 %s, v6, %s, s4 offen sc1" % (v(sb, 4), s(sWS, 4)))
        if cfg.get("nopub", 0) > 1:
            a.label("L_np%d" % u)
        if u == 0:
            a.i("s_add_u32 s4, s4, s10")
    a.i("s_cmp_eq_u32 s%d, 0" % sMAT)
    a.i("s_cselect_b32 s4, 0x101, 1")
    lds_inc(C_PUB, 3, 4, val="s4")
    stamp(15)
    a.i("s_cmp_eq_u32 s%d, 0" % sMAT)
    a.br("s_cbranch_scc1 L_kload")
    if DEFB:
        a.i("s_mov_b32 s%d, 1" % sPUBF)
        a.br("s_branch L_kload")
    a.label("L_arrb")
    a.i("s_waitcnt vmcnt(0)")
    lds_inc_rtn(C_B, 3, 4, 8)
    a.i("s_cmp_lt_u32 s2, 224")
    a.i("s_cselect_b32 s9, 5, 3")
    a.i("s_cmp_lg_u32 s8, s9")
    a.br("s_cbranch_scc1 L_kload")
    prio(3)
    arrive(1)
    stamp(18)

    a.label("L_kload")
    a.i("s_cmp_lt_u32 s3, 4")
    a.br("s_cbranch_scc1 L_comm")
    prio(0)
    if 1:
        a.i("s_movk_i32 s4, 0x%x" % cfg.get("hold", 3))
        a.i("s_cmp_lt_u32 s3, 8")
        a.i("s_cselect_b32 s4, 0x%x, s4" % cfg.get("hold4", 0x80100))
        a.i("s_cmp_lt_u32 s2, 224")
        a.i("s_cselect_b32 s4, s4, 0x%x" % cfg.get("lhold", 0x100))
        a.i("s_cmp_eq_u32 s2, %d" % ROOT)
        a.i("s_cselect_b32 s4, 0x%x, s4" % cfg.get("rhold", 0x300))
        l0, l1 = a.newlabel("L_sp"), a.newlabel("L_sp")
        a.i("v_mov_b32 v3, %d" % CNT)
        a.i("s_mov_b32 s%d, %d" % (sSPIN, SPIN_L))
        a.label(l0)
        a.i("ds_read_b32 v4, v3 offset:%d" % C_PUB)
        a.i("s_waitcnt lgkmcnt(0)")
        a.i("v_and_b32 v4, s4, v4")
        a.i("v_cmp_ne_u32 vcc, s4, v4")
        a.br("s_cbranch_vccz %s" % l1)
        a.i("s_sleep 1")
        a.i("s_sub_u32 s%d, s%d, 1" % (sSPIN, sSPIN))
        a.i("s_cmp_lg_u32 s%d, 0" % sSPIN)
        a.br("s_cbranch_scc1 %s" % l0)
        a.label(l1)

    def rootb():
        a.i("s_cmp_lg_u32 s2, %d" % ROOTB)
        a.br("s_cbranch_scc1 L_notrootb")
        a.i("s_cmp_lg_u32 s3, %d" % cfg.get("rbw", 8))
        a.br("s_cbranch_scc1 L_notrootb")
        prio(3)
        if cfg.get("rbt", 0):
            a.i("s_add_u32 s4, s%d, %d" % (sT0, cfg["rbt"]))
            pace(4)
        root_bcast(1, "L_rbb")
        a.i("v_mov_b32 v3, 0")
        a.i("v_lshlrev_b32 v4, 2, v0")
        a.i("buffer_store_dword v3, v4, %s, 0 offen sc1" % s(sDBG, 4))
        a.i("s_waitcnt vmcnt(0)")
        prio(0)
        stamp(19)
        a.label("L_notrootb")

    pace(sTK)
    if not WDL:
        a.i("s_cmp_ge_u32 s3, 8")
        a.br("s_cbranch_scc1 L_nowd")
        tw_dma(0)
    a.br("s_branch L_nowd")

    a.label("L_comm")
    prio(3)
    a.i("s_cmp_lg_u32 s3, 0")
    a.br("s_cbranch_scc1 L_mb_lds")
    a.i("s_cmp_eq_u32 s2, %d" % ROOT)
    a.br("s_cbranch_scc1 L_mb_done")
    if cfg.get("ms0", 0):
        a.i("s_sleep %d" % cfg["ms0"])
    mbox_pipe("L_mba", cfg.get("mpipe", 1), cfg.get("mslp", 6))
    tb_write()
    lds_inc(C_PUB, 3, 4, val="0x200")
    stamp(16)
    a.br("s_branch L_mb_done")
    a.label("L_mb_lds")
    lds_spin(C_PUB, 0x200, 3, 4, sleep=1, mask=0x200)
    a.label("L_mb_done")
    a.i("s_lshl_b32 s4, s%d, 14" % sB)
    a.i("s_lshl_b32 s5, s%d, 12" % sKVH)
    a.i("s_add_u32 s4, s4, s5")
    a.i("s_lshl_b32 s5, s3, 10")
    a.i("s_add_u32 s4, s4, s5")
    a.i("s_add_u32 s4, s4, 0x%x" % QP)
    for sp in range(1, 4):
        a.i("s_add_u32 s%d, s4, %d" % (4 + sp, sp * 8 * 16384))
    a.i("v_lshrrev_b32 v3, 5, v0")
    a.i("v_mul_u32_u24 v3, 272, v3")
    a.i("v_and_b32 v4, 31, v0")
    a.i("v_lshl_add_u32 v3, v4, 3, v3")
    a.i("s_mul_i32 s8, s3, 544")
    a.i("v_add_u32 v3, s8, v3")
    if cfg.get("noq", 0):
        for e in range(16):
            a.i("v_mov_b32 v%d, 0" % (12 + e))
    else:
      vgather([(12 + sp * 4, ["buffer_load_dwordx4 %s, v%d, %s, s%d offen sc1" % (
        v(12 + sp * 4, 4), vOFFV, s(sWS, 4), 4 + sp)]) for sp in range(4)], 5, 6)
    for e in range(4):
        a.i("v_add_f32 v%d, v%d, v%d" % (12 + e, 12 + e, 16 + e))
        a.i("v_add_f32 v%d, v%d, v%d" % (20 + e, 20 + e, 24 + e))
    for e in range(4):
        a.i("v_add_f32 v%d, v%d, v%d" % (12 + e, 12 + e, 20 + e))
    bf16_round_pair(12, 12, 13)
    bf16_round_pair(13, 14, 15)
    a.i("ds_write_b64 v3, v[12:13] offset:%d" % QL)
    lds_inc(C_QRDY, 3, 4)
    prio(0)
    stamp(5)
    tb_read()
    pace(sTK)

    a.label("L_nowd")
    k_loads()
    lds_inc(C_KI, 3, 4)
    stamp(3)
    if DEFB:
        a.i("s_cmp_eq_u32 s%d, 0" % sPUBF)
        a.br("s_cbranch_scc1 L_nodefb")
        a.i("s_waitcnt vmcnt(16)")
        lds_inc_rtn(C_B, 3, 4, 8)
        a.i("s_cmp_lg_u32 s8, 5")
        a.br("s_cbranch_scc1 L_nodefb")
        arrive(1)
        a.i("s_waitcnt vmcnt(0)")
        stamp(18)
        a.label("L_nodefb")
    if diag == 1:
        a.i("s_waitcnt vmcnt(0)")
        stamp(17)
    lds_spin(C_QRDY, 4, 3, 4, sleep=2)
    tb_read()

    a.label("L_kpass")
    stamp(6)
    Q, P, SD = 12, 20, 28
    a.i("v_and_b32 v3, 7, v0")
    a.i("v_mul_u32_u24 v3, 272, v3")
    a.i("v_bfe_u32 v4, v0, 3, 1")
    a.i("v_lshl_add_u32 v3, v4, 6, v3")
    a.i("v_lshrrev_b32 v4, 4, v0")
    a.i("v_lshl_add_u32 v3, v4, 4, v3")
    for j in range(2):
        a.i("ds_read_b128 %s, v3 offset:%d" % (v(Q + 4 * j, 4), QL + j * 128))
    for t in range(4):
        a.i("s_waitcnt vmcnt(%d)%s" % (12 - 4 * t, " lgkmcnt(0)" if t == 0 else ""))
        for j in range(2):
            for par in range(2):
                d = SD + 8 * t + 4 * par
                a.i("v_mfma_f32_16x16x32_bf16 %s, %s, %s, %s" % (
                    v(d, 4), v(KV + (t * 4 + par * 2 + j) * 4, 4), v(Q + 4 * j, 4), "0" if j == 0 else v(d, 4)))
    S = []
    for t in range(4):
        for r in range(4):
            a.i("v_permlane32_swap_b32 v%d, v%d" % (SD + 8 * t + r, SD + 8 * t + 4 + r))
    for t in range(4):
        for r in range(4):
            a.i("v_add_f32_dpp v%d, v%d, v%d row_ror:8 row_mask:0xf bank_mask:0xf" % (SD + 8 * t + r, SD + 8 * t + 4 + r, SD + 8 * t + r))
            S.append(SD + 8 * t + r)

    for k in range(0, 16, 2):
        t = P + (k >> 1)
        bf16_round_pair(t, S[k], S[k + 1])
        unpack_lo(S[k], t)
        unpack_hi(S[k + 1], t)
        a.i("v_mul_f32 v%d, s%d, v%d" % (S[k], sSCALE, S[k]))
        a.i("v_mul_f32 v%d, s%d, v%d" % (S[k + 1], sSCALE, S[k + 1]))
        bf16_round_pair(t, S[k], S[k + 1])
        unpack_lo(S[k], t)
        unpack_hi(S[k + 1], t)
    a.i("v_max3_f32 v4, v%d, v%d, v%d" % (S[0], S[1], S[2]))
    for k in range(3, 15, 2):
        a.i("v_max3_f32 v4, v4, v%d, v%d" % (S[k], S[k + 1]))
    a.i("v_max_f32 v4, v4, v%d" % S[15])
    allreduce_rows("v_max_f32", 4, 5)
    a.i("v_mul_f32 v6, s%d, v4" % sLOG2E)
    for k in range(16):
        a.i("v_fma_f32 v%d, v%d, s%d, -v6" % (S[k], S[k], sLOG2E))
    for k in range(16):
        a.i("v_exp_f32 v%d, v%d" % (S[k], S[k]))
    a.i("v_add_f32 v5, v%d, v%d" % (S[0], S[1]))
    a.i("v_add_f32 v7, v%d, v%d" % (S[2], S[3]))
    for k in range(4, 16, 2):
        a.i("v_add_f32 v5, v5, v%d" % S[k])
        a.i("v_add_f32 v7, v7, v%d" % S[k + 1])
    a.i("v_add_f32 v5, v5, v7")
    allreduce_rows("v_add_f32", 5, 7)
    for p in range(8):
        bf16_round_pair(P + p, S[2 * p], S[2 * p + 1])
    a.i("v_lshlrev_b32 v3, 6, v0")
    a.i("s_lshl_b32 s4, s3, 2")
    a.i("v_add_u32 v7, s4, v3")
    a.i("s_mov_b64 exec, 0xff")
    a.i("ds_write_b32 v7, v6 offset:%d" % SM)
    a.i("ds_write_b32 v7, v5 offset:%d" % SL)
    a.i("s_mov_b64 exec, -1")
    lds_inc_rtn(C_M, 4, 5, 8)
    stamp(7)

    def st_addr():
        a.i("v_and_b32 v3, 7, v0")
        a.i("v_lshlrev_b32 v9, 6, v3")
        a.i("v_lshrrev_b32 v8, 4, v0")
        a.i("v_lshl_add_u32 v9, v8, 4, v9")
        a.i("ds_read_b128 v[44:47], v9 offset:%d" % SM)
        a.i("v_lshrrev_b32 v8, 3, v0")
        a.i("v_lshlrev_b32 v8, 7, v8")
        a.i("v_lshl_add_u32 v8, v3, 3, v8")

    a.i("s_cmp_lg_u32 s8, 15")
    a.br("s_cbranch_scc1 L_nopub")
    prio(3)
    st_addr()
    a.i("ds_read_b128 v[48:51], v9 offset:%d" % SL)
    a.i("s_lshl_b32 s6, s%d, 7" % sCH)
    a.i("s_add_u32 s6, s6, 0x%x" % ST)
    a.i("s_waitcnt lgkmcnt(0)")
    a.i("v_max3_f32 v6, v44, v45, v46")
    a.i("v_max_f32 v6, v6, v47")
    allreduce_rows("v_max_f32", 6, 7)
    for k in range(4):
        a.i("v_sub_f32 v%d, v%d, v6" % (52 + k, 44 + k))
    for k in range(4):
        a.i("v_exp_f32 v%d, v%d" % (52 + k, 52 + k))
    a.i("v_mul_f32 v7, v52, v48")
    for k in range(1, 4):
        a.i("v_fmac_f32 v7, v%d, v%d" % (52 + k, 48 + k))
    allreduce_rows("v_add_f32", 7, 4)
    a.i("v_min_u32 v6, -2, v6")
    a.i("v_min_u32 v7, -2, v7")
    a.i("s_mov_b64 exec, 0xff")
    a.i("buffer_store_dwordx2 v[6:7], v8, %s, s6 offen sc1" % s(sWS, 4))
    a.i("s_mov_b64 exec, -1")
    prio(0)
    stamp(20)
    a.label("L_nopub")
    rootb()
    a.label("L_vload")
    lds_spin(C_KI, 16, 4, 5, sleep=1)
    pace(sTV)
    v_loads()
    stamp(8)

    D = [28 + 4 * i for i in range(8)]
    PT = 12

    def pv_step(u):
        for q in range(4):
            for p in range(4):
                a.i("v_perm_b32 v%d, v%d, v%d, s%d" % (PT + p, KV + (8 * u + 2 * p + 1) * 4 + q, KV + (8 * u + 2 * p) * 4 + q, sSELLO))
            for p in range(4):
                a.i("v_perm_b32 v%d, v%d, v%d, s%d" % (PT + 4 + p, KV + (8 * u + 2 * p + 1) * 4 + q, KV + (8 * u + 2 * p) * 4 + q, sSELHI))
            for h in range(2):
                i = 2 * q + h
                a.i("v_mfma_f32_16x16x32_bf16 %s, %s, %s, %s" % (
                    v(D[i], 4), v(PT + 4 * h, 4), v(P + 4 * u, 4), "0" if u == 0 else v(D[i], 4)))

    a.i("v_and_b32 v3, 15, v0")
    a.i("v_mul_u32_u24 v4, 528, v3")
    a.i("v_lshrrev_b32 v5, 4, v0")
    a.i("v_lshl_add_u32 v4, v5, 7, v4")
    a.i("s_mul_i32 s4, s3, 4224")
    a.i("s_add_u32 s4, s4, %d" % ORED)
    a.i("v_add_u32 v4, s4, v4")
    a.i("v_cmp_gt_u32 vcc, 8, v3")
    a.i("v_mov_b32 v5, %d" % DUMP)
    a.i("v_cndmask_b32 v4, v5, v4, vcc")
    a.i("s_lshl_b32 s4, 1, s3")
    a.i("v_mov_b32 v5, %d" % CNT)
    a.i("v_mov_b32 v6, s4")
    a.i("s_waitcnt vmcnt(8)")
    pv_step(0)
    a.i("s_waitcnt vmcnt(0)")
    stamp(9)
    prio(3)
    pv_step(1)
    for i in range(8):
        a.i("ds_write_b128 v4, %s offset:%d" % (v(D[i], 4), i * 16))
    a.i("s_mov_b64 exec, 1")
    a.i("ds_add_u32 v5, v6 offset:%d" % C_PVM)
    a.i("s_mov_b64 exec, -1")
    stamp(10)
    a.i("s_cmp_ge_u32 s3, 12")
    a.br("s_cbranch_scc1 L_exit")
    a.i("s_cmp_ge_u32 s3, 8")
    a.br("s_cbranch_scc1 L_reducer")
    a.i("s_cmp_eq_u32 s3, %d" % cfg.get("hw", 4))
    a.br("s_cbranch_scc1 L_hjob")
    a.i("s_cmp_eq_u32 s3, %d" % cfg.get("sw", 5))
    a.br("s_cbranch_scc1 L_stats")
    a.i("s_cmp_ge_u32 s3, 4")
    a.br("s_cbranch_scc1 L_tail")
    a.i("s_cmp_eq_u32 s3, 0")
    a.br("s_cbranch_scc1 L_exit")
    a.i("s_cmp_lg_u32 s3, 3")
    a.br("s_cbranch_scc1 L_gather")
    a.br("s_branch L_final")

    a.label("L_stats")
    prio(cfg.get("jprio", 3))
    a.i("s_add_u32 s4, s%d, %d" % (sT0, cfg.get("stt", 2000)))
    pace(4)
    lds_spin(C_M, 16, 4, 5, sleep=1)
    st_addr()
    a.i("s_and_b32 s5, s%d, 0xf8" % sCH)
    a.i("s_lshl_b32 s5, s5, 7")
    a.i("s_add_u32 s5, s5, 0x%x" % ST)
    a.i("s_waitcnt lgkmcnt(0)")
    a.i("s_mov_b32 s%d, %d" % (sSPIN, SPIN_G))
    if cfg.get("st0", 0):
        a.i("s_sleep %d" % cfg["st0"])
    a.label("L_poll_st")
    a.i("buffer_load_dwordx2 v[4:5], v8, %s, s5 offen sc1" % s(sWS, 4))
    a.i("s_waitcnt vmcnt(0)")
    a.i("v_max_u32 v6, v4, v5")
    a.i("v_cmp_eq_u32 vcc, -1, v6")
    a.br("s_cbranch_vccz L_poll_st_done")
    a.i("s_sleep %d" % cfg.get("stsl", 4))
    a.i("s_sub_u32 s%d, s%d, 1" % (sSPIN, sSPIN))
    a.i("s_cmp_lg_u32 s%d, 0" % sSPIN)
    a.br("s_cbranch_scc1 L_poll_st")
    a.label("L_poll_st_done")
    a.i("v_max_f32_dpp v6, v4, v4 row_ror:8 row_mask:0xf bank_mask:0xf")
    allreduce_rows("v_max_f32", 6, 7)
    a.i("v_sub_f32 v4, v4, v6")
    a.i("v_exp_f32 v4, v4")
    a.i("v_mul_f32 v4, v4, v5")
    a.i("v_add_f32_dpp v4, v4, v4 row_ror:8 row_mask:0xf bank_mask:0xf")
    allreduce_rows("v_add_f32", 4, 7)
    a.i("v_rcp_f32 v4, v4")
    for k in range(4):
        a.i("v_sub_f32 v%d, v%d, v6" % (52 + k, 44 + k))
    for k in range(4):
        a.i("v_exp_f32 v%d, v%d" % (52 + k, 52 + k))
    for k in range(4):
        a.i("v_mul_f32 v%d, v%d, v4" % (52 + k, 52 + k))
    a.i("ds_write_b128 v9, v[52:55] offset:%d" % WT)
    lds_inc(C_WT, 3, 4)
    stamp(4)
    a.br("s_branch L_tail")

    a.label("L_hjob")
    prio(cfg.get("jprio", 3))
    a.i("s_bfe_u32 s4, s2, 0x30003")
    a.i("s_mul_i32 s4, s4, %d" % cfg.get("mbs", 0))
    a.i("s_add_u32 s4, s4, %d" % cfg.get("mbt", 1650))
    a.i("s_add_u32 s4, s4, s%d" % sT0)
    pace(4)
    mbox_wait_b("L_mbb")
    lds_inc(C_WT, 3, 4)
    stamp(4)
    a.i("v_cmp_gt_u32 vcc, 48, v0")
    a.i("v_mov_b32 v6, 0x7ffffff0")
    a.i("v_cndmask_b32 v3, v6, v%d, vcc" % vOFFV)
    a.i("s_mul_i32 s4, s%d, 1792" % sKS)
    a.i("s_add_u32 s4, s4, 0x%x" % GP)
    for m in range(0 if cfg.get("noh", 0) else 2):
        for sp in range(4):
            a.i("s_add_u32 s5, s4, 0x%x" % (m * (UP - GP) + sp * GSP))
            for u in range(2):
                a.i("buffer_load_dwordx4 %s, v%d, %s, s5 offen offset:%d%s" % (
                    v(KV + m * 32 + (sp * 2 + u) * 4, 4), 3 if u else vOFFV, s(sWS, 4), u * 1024, " sc1" if cfg.get("hsc", 0) else ""))
    a.i("v_and_b32 v5, 1, v0")
    a.i("v_lshlrev_b32 v5, 8, v5")
    a.i("v_and_b32 v4, 62, v0")
    a.i("v_add_u32 v5, v5, v4")
    a.i("s_mov_b32 s4, 0x3d372713")
    a.i("s_mov_b32 s5, 0xc0135761")
    a.i("s_waitcnt vmcnt(0)")
    G0, U0 = 28, 36
    for m, dst in ((0, G0), (1, U0)):
        for e in range(8):
            r0 = KV + m * 32 + e
            a.i("v_add_f32 v%d, v%d, v%d" % (r0, r0, r0 + 8))
            a.i("v_add_f32 v%d, v%d, v%d" % (r0 + 16, r0 + 16, r0 + 24))
            a.i("v_add_f32 v%d, v%d, v%d" % (dst + e, r0, r0 + 16))
    for e in range(0, 8, 2):
        g0, g1, u0, u1 = G0 + e, G0 + e + 1, U0 + e, U0 + 1 + e
        bf16_round_pair(12, g0, g1)
        bf16_round_pair(13, u0, u1)
        unpack_lo(g0, 12)
        unpack_hi(g1, 12)
        unpack_lo(u0, 13)
        unpack_hi(u1, 13)
        for gg, tt in ((g0, 14), (g1, 15)):
            a.i("v_mul_f32 v%d, v%d, v%d" % (tt, gg, gg))
            a.i("v_mul_f32 v%d, s4, v%d" % (tt, tt))
            a.i("v_fma_f32 v%d, v%d, v%d, v%d" % (tt, tt, gg, gg))
            a.i("v_mul_f32 v%d, s5, v%d" % (tt, tt))
            a.i("v_exp_f32 v%d, v%d" % (tt, tt))
            a.i("v_add_f32 v%d, 1.0, v%d" % (tt, tt))
            a.i("v_rcp_f32 v%d, v%d" % (tt, tt))
            a.i("v_mul_f32 v%d, v%d, v%d" % (tt, tt, gg))
        bf16_round_pair(14, 14, 15)
        unpack_hi(15, 14)
        unpack_lo(14, 14)
        a.i("v_mul_f32 v14, v14, v%d" % u0)
        a.i("v_mul_f32 v15, v15, v%d" % u1)
        bf16_round_pair(16 + e // 2, 14, 15)
        off = HL + (e >> 2) * 512 + (e & 3) * 64
        a.i("ds_write_b16 v5, v%d offset:%d" % (16 + e // 2, off))
        a.i("ds_write_b16_d16_hi v5, v%d offset:%d" % (16 + e // 2, off + 64))
    lds_inc(C_H, 3, 4)
    stamp(21)
    a.br("s_branch L_tail")

    a.label("L_gather")
    a.i("v_lshrrev_b32 v7, 4, v0")
    a.i("v_lshlrev_b32 v3, 6, v7")
    a.i("s_and_b32 s7, s%d, 3" % sKS)
    if cfg.get("swz", 1):
        a.i("v_xor_b32 v8, s7, v7")
    else:
        a.i("v_mov_b32 v8, s7")
    a.i("v_lshlrev_b32 v7, 17, v7")
    a.i("v_lshl_add_u32 v7, v8, 8, v7")
    a.i("v_and_b32 v8, 15, v0")
    a.i("v_lshl_add_u32 v7, v8, 4, v7")
    a.i("s_lshr_b32 s6, s%d, 4" % sKS)
    a.i("s_lshl_b32 s6, s6, 15")
    a.i("s_and_b32 s7, s%d, 12" % sKS)
    a.i("s_lshl_b32 s7, s7, 8")
    a.i("s_add_u32 s6, s6, s7")
    a.i("s_sub_u32 s8, s3, 1")
    a.i("s_lshl_b32 s7, s8, 19")
    a.i("s_add_u32 s6, s6, s7")
    a.i("s_add_u32 s6, s6, 0x%x" % OB1)
    a.i("v_bfe_u32 v4, v0, 3, 1")
    a.i("v_lshl_add_u32 v3, v4, 9, v3")
    a.i("v_and_b32 v4, 7, v0")
    a.i("v_lshl_add_u32 v3, v4, 3, v3")
    a.i("s_lshl_b32 s8, s8, 8")
    a.i("v_add_u32 v3, s8, v3")
    for sp in range(8):
        a.i("s_add_u32 s%d, s6, %d" % (88 + sp, sp * 4096))
    lds_spin(C_RED, 4, 8, 9, sleep=1)
    stamp(11)
    a.i("v_mov_b32 v9, 1")

    def g_issue(k, first=False):
        a.i("buffer_load_dwordx4 %s, v7, %s, s%d offen%s" % (v(KV + k * 4, 4), s(sWS, 4), 88 + k, "" if first and not cfg.get("gsc", 0) else " sc1"))

    def sum8(base):
        for t in range(0, 8, 2):
            for e in range(4):
                a.i("v_add_f32 v%d, v%d, v%d" % (28 + 2 * t + e, base + 4 * t + e, base + 4 * t + 4 + e))
        for t in (0, 8):
            for e in range(4):
                a.i("v_add_f32 v%d, v%d, v%d" % (28 + t + e, 28 + t + e, 28 + t + 4 + e))
        for e in range(4):
            a.i("v_add_f32 v%d, v%d, v%d" % (12 + e, 28 + e, 36 + e))

    if cfg.get("g0", 0):
        a.i("s_sleep %d" % cfg["g0"])
    free_poll(KV, g_issue, GSL, 4, 5, "L_go", thr=cfg.get("gthr", 24))
    sum8(KV)
    bf16_round_pair(12, 12, 13)
    bf16_round_pair(13, 14, 15)
    a.i("ds_write_b64 v3, v[12:13] offset:%d" % OL)
    a.i("s_mov_b64 exec, 1")
    a.i("ds_add_u32 v8, v9 offset:%d" % C_ORDY)
    a.i("s_mov_b64 exec, -1")
    stamp(13)
    a.br("s_branch L_exit")

    a.label("L_reducer")
    a.i("v_lshrrev_b32 v3, 5, v0")
    a.i("s_sub_u32 s6, s3, 8")
    a.i("s_lshl_b32 s4, s6, 1")
    a.i("v_add_u32 v3, s4, v3")
    a.i("v_lshlrev_b32 v6, 6, v3")
    a.i("v_mul_u32_u24 v3, 528, v3")
    a.i("v_and_b32 v4, 31, v0")
    a.i("v_lshl_add_u32 v3, v4, 4, v3")
    a.i("v_add_u32 v3, %d, v3" % ORED)
    a.i("s_lshl_b32 s4, s%d, 12" % sCH)
    a.i("s_lshl_b32 s5, s6, 10")
    a.i("s_add_u32 s4, s4, s5")
    a.i("s_add_u32 s4, s4, 0x%x" % OB1)
    a.i("s_and_b32 s5, s%d, %d" % (sB, 3 if cfg.get("swz", 1) else 0))
    a.i("s_lshl_b32 s5, s5, 8")
    a.i("v_xor_b32 v7, s5, v%d" % vOFFV)
    lds_spin(C_WT, 2, 8, 9, sleep=1)
    for k in range(4):
        a.i("ds_read_b128 %s, v6 offset:%d" % (v(12 + 4 * k, 4), WT + k * 16))
    last = list(range(4 * LASTC, 4 * LASTC + 4))
    first = [w2 for w2 in range(16) if w2 not in last]
    msk = sum(1 << w2 for w2 in first)
    lds_spin(C_PVM, msk, 8, 9, sleep=1, mask=msk)
    for w2 in first:
        a.i("ds_read_b128 %s, v3 offset:%d" % (v(KV + 4 * w2, 4), w2 * 4224))
    a.i("s_waitcnt lgkmcnt(0)")
    for e in range(4):
        a.i("v_mul_f32 v%d, v%d, v%d" % (28 + e, 12 + first[0], KV + 4 * first[0] + e))
    for w2 in first[1:]:
        for e in range(4):
            a.i("v_fmac_f32 v%d, v%d, v%d" % (28 + e, 12 + w2, KV + 4 * w2 + e))
    stamp(11)
    lds_spin(C_PVM, 0xffff, 8, 9, sleep=0)
    for w2 in last:
        a.i("ds_read_b128 %s, v3 offset:%d" % (v(KV + 4 * w2, 4), w2 * 4224))
    for k, w2 in enumerate(last):
        a.i("s_waitcnt lgkmcnt(%d)" % (3 - k))
        for e in range(4):
            a.i("v_fmac_f32 v%d, v%d, v%d" % (28 + e, 12 + w2, KV + 4 * w2 + e))
    for e in range(4):
        a.i("v_min_u32 v%d, -2, v%d" % (28 + e, 28 + e))
    a.i("buffer_store_dwordx4 v[28:31], v7, %s, s4 offen sc1" % s(sWS, 4))
    lds_inc(C_RED, 8, 9)
    stamp(13)
    a.br("s_branch L_exit")

    a.label("L_tail")
    prio(2)
    DT = [28, 32, 36, 40]
    AD = 44
    a.i("v_lshrrev_b32 v3, 4, v0")
    a.i("v_bfe_u32 v4, v0, 2, 2")
    a.i("v_lshl_add_u32 v5, v3, 3, v4")
    a.i("v_lshlrev_b32 v5, 7, v5")
    a.i("v_and_b32 v6, 3, v0")
    a.i("v_lshl_add_u32 v5, v6, 3, v5")
    a.i("v_and_b32 v4, 2, v4")
    a.i("v_and_b32 v6, 1, v3")
    a.i("v_lshl_add_u32 v4, v6, 2, v4")
    a.i("v_lshl_add_u32 v5, v4, 4, v5")
    a.i("s_sub_u32 s4, s3, 4")
    a.i("s_lshl_b32 s5, s4, 14")
    a.i("s_add_u32 s5, s5, %d" % TW)
    a.i("v_add_u32 v5, s5, v5")
    a.i("v_cmp_le_u32 vcc, 48, v0")
    a.i("v_mov_b32 v6, 2048")
    a.i("v_cndmask_b32 v6, 0, v6, vcc")
    for T in range(4):
        a.i("v_xor_b32 v%d, %d, v5" % (AD + T, 32 * T))
        a.i("v_sub_u32 v%d, v%d, v6" % (AD + 4 + T, AD + T))
    a.i("v_and_b32 v6, 7, v0")
    a.i("v_lshlrev_b32 v6, 6, v6")
    a.i("v_lshl_add_u32 v6, v3, 4, v6")
    a.i("s_lshl_b32 s12, s2, 13")
    a.i("s_lshl_b32 s13, s4, 11")
    a.i("s_add_u32 s12, s12, s13")
    a.i("s_add_u32 s12, s12, 0x%x" % OB2)
    a.i("s_and_b32 s13, s%d, %d" % (sKS, 7 if cfg.get("swz", 1) else 0))
    a.i("s_lshl_b32 s13, s13, 7")
    a.i("v_xor_b32 v52, s13, v%d" % vOFFV)
    a.i("v_xor_b32 v53, 0x200, v52")

    def b_reads(wo):
        for st in range(2):
            for T in range(4):
                for hh in range(2):
                    ad = AD + T + (4 if (not wo and st == 1) else 0)
                    a.i("ds_read_b64_tr_b16 %s, v%d offset:%d" % (
                        v(KV + wo * 32 + (st * 4 + T) * 4 + 2 * hh, 2), ad, wo * 8192 + st * 4096 + hh * 512))

    def gemm(wo):
        for st in range(2):
            for T in range(4):
                a.i("v_mfma_f32_16x16x32_bf16 %s, %s, %s, %s" % (
                    v(DT[T], 4), v(12 + 4 * st, 4), v(KV + wo * 32 + (st * 4 + T) * 4, 4),
                    "0" if (not wo and st == 0) else v(DT[T], 4)))

    def wd_part():
        b_reads(0)
        lds_spin(C_H, 1, 8, 9, sleep=1)
        a.i("ds_read_b128 v[12:15], v6 offset:%d" % HL)
        a.i("ds_read_b128 v[16:19], v6 offset:%d" % (HL + 512))
        a.i("s_waitcnt lgkmcnt(0)")
        gemm(0)

    a.i("s_cmp_lt_u32 s2, 224")
    a.i("s_movk_i32 s8, %d" % lwo)
    a.i("s_cselect_b32 s8, %d, s8" % hwo)
    a.i("s_add_u32 s9, s4, %d" % cfg.get("wrot", 1))
    a.i("s_and_b32 s9, s9, 3")
    a.i("s_mul_i32 s9, s9, %d" % int(round(TAUV * WOU)))
    a.i("s_add_u32 s8, s8, s9")
    a.i("s_add_u32 s8, s8, s%d" % sT0)
    pace(8)
    if WDL:
        tw_dma(0)
    tw_dma(1)
    stamp(11)
    if WDL:
        a.i("s_waitcnt vmcnt(8)")
    wd_part()
    a.i("s_waitcnt vmcnt(0)")
    prio(3)
    b_reads(1)
    stamp(12)
    lds_spin(C_ORDY, 2, 8, 9, sleep=0)
    a.i("ds_read_b128 v[12:15], v6 offset:%d" % OL)
    a.i("ds_read_b128 v[16:19], v6 offset:%d" % (OL + 512))
    a.i("s_waitcnt lgkmcnt(0)")
    gemm(1)
    a.i("s_mov_b32 exec_hi, 0")
    for T in range(4):
        for e in range(4):
            a.i("v_min_u32 v%d, -2, v%d" % (DT[T] + e, DT[T] + e))
        a.i("buffer_store_dwordx4 %s, v%d, %s, s12 offen offset:%d sc1" % (v(DT[T], 4), 52 + (T & 1), s(sWS, 4), (T >> 1) * 1024))
    a.i("s_mov_b64 exec, -1")
    lds_inc(C_ST, 8, 9)
    stamp(13)
    a.br("s_branch L_exit")

    a.label("L_final")
    a.i("s_lshr_b32 s4, s%d, 2" % sKS)
    a.i("s_lshl_b32 s4, s4, 4")
    a.i("s_lshl_b32 s5, s%d, 8" % sCB)
    a.i("s_add_u32 s4, s4, s5")
    a.i("s_and_b32 s5, s%d, 1" % sKS)
    a.i("s_lshl_b32 s5, s5, 3")
    a.i("s_add_u32 s4, s4, s5")
    a.i("s_bfe_u32 s5, s%d, 0x10001" % sKS)
    a.i("s_lshl_b32 s5, s5, 12")
    a.i("s_add_u32 s4, s4, s5")
    a.i("s_lshl_b32 s4, s4, 1")
    a.i("v_lshrrev_b32 v3, 3, v0")
    a.i("v_and_b32 v4, 7, v0")
    a.i("v_lshlrev_b32 v5, 11, v3")
    a.i("v_lshl_add_u32 v5, v4, 1, v5")
    a.i("v_add_u32 v5, s4, v5")
    a.i("v_cmp_gt_u32 vcc, 32, v0")
    a.i("v_mov_b32 v6, 0x7ffffff0")
    a.i("v_cndmask_b32 v5, v6, v5, vcc")
    a.i("buffer_load_ushort v9, v5, %s, 0 offen" % s(sX, 4))
    a.i("v_lshlrev_b32 v6, 13, v3")
    a.i("v_lshl_add_u32 v6, v4, 4, v6")
    a.i("s_and_b32 s5, s%d, 7" % sKS)
    if cfg.get("swz", 1):
        a.i("v_xor_b32 v4, s5, v3")
    else:
        a.i("v_mov_b32 v4, s5")
    a.i("v_lshl_add_u32 v6, v4, 7, v6")
    a.i("s_lshl_b32 s5, s%d, 19" % sCB)
    a.i("s_and_b32 s6, s%d, 56" % sKS)
    a.i("s_lshl_b32 s6, s6, 7")
    a.i("s_add_u32 s5, s5, s6")
    a.i("s_add_u32 s5, s5, 0x%x" % OB2)
    for t in range(8):
        a.i("s_add_u32 s%d, s5, %d" % (88 + t, t * 65536))
    lds_spin(C_ST, 4, 7, 8, sleep=1)
    stamp(11)

    def f_issue(k, first=False):
        a.i("buffer_load_dwordx4 %s, v6, %s, s%d offen sc1" % (v(KV + 4 * k, 4), s(sWS, 4), 88 + k))

    if cfg.get("f0", 0):
        a.i("s_sleep %d" % cfg["f0"])
    free_poll(KV, f_issue, FSL, 7, 8, "L_fo", thr=cfg.get("fthr", 24))
    sum8(KV)
    stamp(12)
    for e in range(4):
        a.i("v_add_f32_dpp v%d, v%d, v%d row_ror:8 row_mask:0xf bank_mask:0xf" % (12 + e, 12 + e, 12 + e))
    for e in range(4):
        allreduce_rows("v_add_f32", 12 + e, 16 + e)
    a.i("v_cmp_eq_u32 vcc, 1, v3")
    a.i("v_cndmask_b32 v7, v12, v13, vcc")
    a.i("v_cmp_eq_u32 vcc, 2, v3")
    a.i("v_cndmask_b32 v7, v7, v14, vcc")
    a.i("v_cmp_eq_u32 vcc, 3, v3")
    a.i("v_cndmask_b32 v7, v7, v15, vcc")
    a.i("v_lshlrev_b32 v9, 16, v9")
    a.i("v_add_f32 v7, v7, v9")
    bf16_round_pair(7, 7, 7)
    a.i("buffer_store_short v7, v5, %s, 0 offen" % s(sOUT, 4))
    stamp(13)

    a.label("L_exit")
    if diag == 1:
        a.i("s_lshl_b32 s4, s2, 4")
        a.i("s_add_u32 s4, s4, s3")
        a.i("s_lshl_b32 s4, s4, 8")
        a.i("s_add_u32 s4, s4, 0x%x" % STAMP)
        a.i("v_lshlrev_b32 v3, 2, v0")
        a.i("buffer_store_dword v%d, v3, %s, s4 offen" % (vSTAMP, s(sWS, 4)))
    a.label("L_end")
    a.i("s_endpgm")

    a.raw('.section .rodata,"a"')
    a.raw(".p2align 6")
    a.raw(".amdhsa_kernel " + NAME)
    a.raw("  .amdhsa_next_free_vgpr 128")
    a.raw("  .amdhsa_next_free_sgpr 102")
    a.raw("  .amdhsa_accum_offset 128")
    a.raw("  .amdhsa_group_segment_fixed_size 0")
    a.raw("  .amdhsa_kernarg_size 96")
    a.raw("  .amdhsa_user_sgpr_count 2")
    a.raw("  .amdhsa_user_sgpr_kernarg_segment_ptr 1")
    a.raw("  .amdhsa_system_sgpr_workgroup_id_x 1")
    a.raw(".end_amdhsa_kernel")
    return a.text()


if __name__ == "__main__":
    cfg = {}
    out = sys.argv[1]
    for kv in sys.argv[2:]:
        k, val = kv.split("=")
        cfg[k] = int(val, 0)
    open(out, "w").write(gen(cfg))
```
